```python
import torch

def _softmax(x, axis=-1):
    return torch.softmax(x, dim=axis)
def _gelu(x):
    return torch.nn.functional.gelu(x, approximate="tanh")
def _silu(x):
    return torch.nn.functional.silu(x)
def _sigmoid(x):
    return torch.sigmoid(x)
def _layernorm(x, axis=-1, eps=1e-5):
    m = x.mean(dim=axis, keepdim=True)
    v = x.var(dim=axis, keepdim=True, unbiased=False)
    return (x - m) / torch.sqrt(v + eps)
def _scatter_add(tgt, idx, src, axis=0):
    return tgt.clone().index_add_(axis, idx, src)
def _segment_sum(src, seg, n):
    out = torch.zeros((n,) + src.shape[1:], dtype=src.dtype)
    return out.index_add_(0, seg, src)
def _pad(x, pw):
    flat = tuple(v for pair in reversed(pw) for v in pair)
    return torch.nn.functional.pad(x, flat)

kernel_name = 'parallel_sum__gqa_block_cached__glu_gated_swiglu__decode'

def setup_inputs():

    _w = (lambda a: (lambda t: t.to(torch.bfloat16) if t.is_floating_point() else t)(torch.as_tensor(a)))
    def _A_setup():
        B, Sq, D = 1, 1, 512
        Hq, Hkv, Sk, Dh = 32, 8, 65536, 128
        assert Hq % Hkv == 0, (Hq, Hkv)
        return {
            "x": _w((lambda *s: torch.randn(*s, dtype=torch.bfloat16) * 0.05)(B, Sq, D)),
            "k_cache": _w((lambda *s: torch.randn(*s, dtype=torch.bfloat16) * 3.2)(B, Hkv, Sk, Dh)),
            "v_cache": _w((lambda *s: torch.randn(*s, dtype=torch.bfloat16) * 1.6)(B, Hkv, Sk, Dh)),
            "wq": _w((lambda *s: torch.randn(*s, dtype=torch.bfloat16) * 3.2)(D, Hq * Dh) * (D ** -0.5)),
            "wo": _w((lambda *s: torch.randn(*s, dtype=torch.bfloat16) * 1.6)(Hq * Dh, D) * ((Hq * Dh) ** -0.5)),
        }
    _A_in = _A_setup()

    def _B_setup():
        B, S, D, F = 1, 1, 512, 1792
        return {
            "x": _w((lambda *s: torch.randn(*s, dtype=torch.bfloat16) * 0.05)(B, S, D)),
            "w1": _w((lambda *s: torch.randn(*s, dtype=torch.bfloat16) * 1.6)(D, F) * (2.0 / D) ** 0.5),
            "w3": _w((lambda *s: torch.randn(*s, dtype=torch.bfloat16) * 1.6)(D, F) * (2.0 / D) ** 0.5),
            "w2": _w((lambda *s: torch.randn(*s, dtype=torch.bfloat16) * 1.6)(F, D) * (2.0 / F) ** 0.5),
        }
    _B_in = _B_setup()

    return {
        "A_x": _A_in["x"],
        "A_k_cache": _A_in["k_cache"],
        "A_v_cache": _A_in["v_cache"],
        "A_wq": _A_in["wq"],
        "A_wo": _A_in["wo"],
        "B_x": _B_in["x"],
        "B_w1": _B_in["w1"],
        "B_w3": _B_in["w3"],
        "B_w2": _B_in["w2"],
    }

def reference(A_x, A_k_cache, A_v_cache, A_wq, A_wo, B_x, B_w1, B_w3, B_w2):
    def _A_ref(x, k_cache, v_cache, wq, wo):
        B, Sq, D = x.shape
        Hq, Dh = 32, 128
        Hkv = k_cache.shape[1]
        rep = Hq // Hkv
        q = (lambda x, *d: x.permute(*d))((x @ wq).reshape(B, Sq, Hq, Dh), 0, 2, 1, 3)
        k = (lambda x, n, axis: torch.repeat_interleave(x, n, dim=axis))(k_cache, rep, axis=1)
        v = (lambda x, n, axis: torch.repeat_interleave(x, n, dim=axis))(v_cache, rep, axis=1)
        scores = torch.einsum("bhqd,bhkd->bhqk", q, k) * (Dh ** -0.5)
        p = _softmax(scores, axis=-1)
        o = torch.einsum("bhqk,bhkd->bhqd", p, v)
        return (lambda x, *d: x.permute(*d))(o, 0, 2, 1, 3).reshape(B, Sq, Hq * Dh) @ wo

    def _B_ref(x, w1, w3, w2):
        gate = torch.einsum("bsd,df->bsf", x, w1)
        up = torch.einsum("bsd,df->bsf", x, w3)
        h = _silu(gate) * up
        out = torch.einsum("bsf,fd->bsd", h, w2)
        return out

    x = A_x
    xn = _layernorm(x, axis=-1)
    return x + _A_ref(xn, A_k_cache, A_v_cache, A_wq, A_wo) + _B_ref(xn, B_w1, B_w3, B_w2)
```

```python
import sys

NAME = "parallel_sum__gqa_block_cached__glu_gated_swiglu__decode"
OUT = "cdna_kernels/%s.s" % NAME

NT = True
INIT_UNITS = 2
STAMP = False

for a in sys.argv[1:]:
    if a.startswith("nt="): NT = bool(int(a[3:]))
    elif a.startswith("init="): INIT_UNITS = int(a[5:])
    elif a.startswith("out="): OUT = a[4:]
    elif a.startswith("stamp="): STAMP = bool(int(a[6:]))

L = []
def e(s=""):
    L.append("    " + s if s and not s.endswith(":") else s)
def lab(s):
    L.append(s + ":")
def c(s):
    L.append("    ; " + s)

XN = 0
RS = XN + 2048
QL = RS + 16384
HL = QL + 1024
WL = HL + 256
OL = WL + 128
SC = OL + 512
RINGB = 24576
LDS_TOTAL = RINGB + 8 * 16384

QP = 0
GU = 0x10000
AP = 0x20000
ML = 0xA0000
YA = 0xA2000
YB = 0xB2000
TS = 0x100000

SRD_X, SRD_K, SRD_V, SRD_WQ, SRD_WO, SRD_W13, SRD_W2, SRD_OUT, SRD_DBG, SRD_WS = 40, 44, 48, 52, 56, 60, 64, 68, 72, 76
def srd(n): return "s[%d:%d]" % (n, n + 3)

LOG2E = 0x3fb8aa3b
SCALE = 0x3db504f3
EPS = 0x3727c5ac

def header():
    h = []
    h.append("; @launch grid=(256,1,1) block=(576,1,1) lds=%d" % LDS_TOTAL)
    h.append('.amdgcn_target "amdgcn-amd-amdhsa--gfx950"')
    h.append(".text")
    h.append(".globl %s_kernel" % NAME)
    h.append(".p2align 8")
    h.append(".type %s_kernel,@function" % NAME)
    h.append("%s_kernel:" % NAME)
    return h

def footer(nv):
    f = []
    f.append(".section .rodata,\"a\"")
    f.append(".p2align 6")
    f.append(".amdhsa_kernel %s_kernel" % NAME)
    f.append("  .amdhsa_next_free_vgpr %d" % nv)
    f.append("  .amdhsa_next_free_sgpr 102")
    f.append("  .amdhsa_accum_offset %d" % ((nv + 3) // 4 * 4))
    f.append("  .amdhsa_group_segment_fixed_size 0")
    f.append("  .amdhsa_kernarg_size 96")
    f.append("  .amdhsa_user_sgpr_count 2")
    f.append("  .amdhsa_user_sgpr_kernarg_segment_ptr 1")
    f.append("  .amdhsa_system_sgpr_workgroup_id_x 1")
    f.append(".end_amdhsa_kernel")
    return f

def build_srd(d, p, nbytes):
    e("s_mov_b32 s%d, s%d" % (d, p))
    e("s_mov_b32 s%d, s%d" % (d + 1, p + 1))
    e("s_mov_b32 s%d, 0x%x" % (d + 2, nbytes))
    e("s_mov_b32 s%d, 0x00020000" % (d + 3))

def rnd_bf16_pair(a, b, t):
    e("v_cvt_pk_bf16_f32 v%d, v%d, v%d" % (t, a, b))
    e("v_lshlrev_b32 v%d, 16, v%d" % (a, t))
    e("v_and_b32 v%d, 0xffff0000, v%d" % (b, t))
def rnd_bf16(a, t):
    e("v_cvt_pk_bf16_f32 v%d, v%d, v%d" % (t, a, a))
    e("v_lshlrev_b32 v%d, 16, v%d" % (a, t))

def dpp(op, d, a, b, ctrl):
    e("%s_dpp v%d, v%d, v%d %s row_mask:0xf bank_mask:0xf" % (op, d, a, b, ctrl))

def allred(op, v, t, bits):
    for b in bits:
        if b == 0:
            e("s_nop 1"); dpp(op, v, v, v, "quad_perm:[1,0,3,2]")
        elif b == 1:
            e("s_nop 1"); dpp(op, v, v, v, "quad_perm:[2,3,0,1]")
        elif b == 2:
            e("s_nop 1"); dpp(op, v, v, v, "row_ror:4")
        elif b == 3:
            e("s_nop 1"); dpp(op, v, v, v, "row_ror:8")
        elif b == 4:
            e("v_mov_b32 v%d, v%d" % (t, v)); e("s_nop 1")
            e("v_permlane16_swap_b32 v%d, v%d" % (v, t)); e("s_nop 1")
            e("%s v%d, v%d, v%d" % (op, v, v, t))
        elif b == 5:
            e("v_mov_b32 v%d, v%d" % (t, v)); e("s_nop 1")
            e("v_permlane32_swap_b32 v%d, v%d" % (v, t)); e("s_nop 1")
            e("%s v%d, v%d, v%d" % (op, v, v, t))

stamp_idx = [0]
ROLE = ["w"]
def stamp(slot):
    if not STAMP:
        return
    e("s_memrealtime s[90:91]")
    e("s_waitcnt lgkmcnt(0)")
    a, b, ad = (160, 161, 162) if ROLE[0] == "w" else (2, 3, 1)
    e("v_mov_b32 v%d, s90" % a)
    e("v_mov_b32 v%d, s91" % b)
    e("s_lshl_b32 s92, s2, 4")
    e("s_add_u32 s92, s92, s3")
    e("s_lshl_b32 s92, s92, 7")
    e("s_add_u32 s92, s92, %d" % (TS + slot * 8))
    e("v_mov_b32 v%d, s92" % ad)
    e("buffer_store_dwordx2 v[%d:%d], v%d, %s, 0 offen" % (a, b, ad, srd(SRD_WS)))

def gen():
    e("s_cmp_ge_u32 s2, 256")
    e("s_cbranch_scc1 L_end")
    e("s_load_dwordx16 s[16:31], s[0:1], 0")
    e("s_load_dwordx8 s[32:39], s[0:1], 64")
    e("v_lshrrev_b32 v1, 6, v0")
    e("v_and_b32 v0, 63, v0")
    e("s_nop 0")
    e("v_readfirstlane_b32 s3, v1")
    e("s_lshr_b32 s4, s2, 5")
    e("s_and_b32 s5, s2, 31")
    e("s_lshr_b32 s6, s2, 3")
    e("s_and_b32 s7, s2, 7")
    e("s_sub_u32 s8, s2, 224")
    e("s_cmp_ge_u32 s2, 224")
    e("s_cselect_b32 s8, s8, s2")
    e("s_cmp_ge_u32 s8, 112")
    e("s_cselect_b32 s9, 1, 0")
    e("s_mul_i32 s10, s9, 112")
    e("s_sub_u32 s10, s8, s10")
    e("s_mov_b32 s11, 0")
    for t in (28, 56, 84):
        e("s_cmp_ge_u32 s10, %d" % t)
        e("s_addc_u32 s11, s11, 0")
    e("s_mul_i32 s12, s11, 28")
    e("s_sub_u32 s12, s10, s12")
    e("s_waitcnt lgkmcnt(0)")
    build_srd(SRD_X, 16, 1024)
    build_srd(SRD_K, 18, 134217728)
    build_srd(SRD_V, 20, 134217728)
    build_srd(SRD_WQ, 22, 4194304)
    build_srd(SRD_WO, 24, 4194304)
    e("s_cmp_eq_u32 s9, 0")
    e("s_cselect_b32 s%d, s28, s30" % SRD_W13)
    e("s_cselect_b32 s%d, s29, s31" % (SRD_W13 + 1))
    e("s_mov_b32 s%d, 0x%x" % (SRD_W13 + 2, 1835008))
    e("s_mov_b32 s%d, 0x00020000" % (SRD_W13 + 3))
    build_srd(SRD_W2, 32, 1835008)
    build_srd(SRD_OUT, 34, 1024)
    build_srd(SRD_DBG, 36, 256)
    build_srd(SRD_WS, 38, 536870912)
    e("s_cmp_eq_u32 s3, 8")
    e("s_cbranch_scc1 L_service")
    worker()
    service()
    lab("L_end")
    e("s_endpgm")

def dma_unit(u):
    isK = u < 16
    uu = u if isK else u - 16
    e("s_add_u32 s20, s14, %d" % (uu * 4096))
    e("s_add_u32 m0, s15, %d" % ((u % 4) * 4096))
    e("s_nop 0")
    for j in range(4):
        vo = (2 + j) if isK else (6 + (j & 1))
        e("buffer_load_dwordx4 v%d, %s, s20 offen offset:%d%s lds" %
          (vo, srd(SRD_K if isK else SRD_V), j * 1024, " nt" if NT else ""))

def worker():
    c("================= worker waves (s3 = 0..7) =================")
    stamp(0)
    e("v_lshlrev_b32 v30, 4, v0")
    e("buffer_load_dwordx4 v[32:35], v30, %s, 0 offen" % srd(SRD_X))
    e("v_lshrrev_b32 v24, 3, v0")
    e("v_and_b32 v25, 7, v0")
    e("v_lshlrev_b32 v26, 13, v24")
    e("v_lshl_add_u32 v26, v25, 4, v26")
    e("s_lshr_b32 s16, s5, 3")
    e("s_and_b32 s17, s5, 7")
    e("s_lshl_b32 s18, s16, 7")
    e("s_lshl_b32 s19, s3, 4")
    e("s_add_u32 s18, s18, s19")
    e("s_lshl_b32 s19, s18, 13")
    e("s_lshl_b32 s20, s4, 10")
    e("s_add_u32 s19, s19, s20")
    e("s_lshl_b32 s20, s17, 7")
    e("s_add_u32 s19, s19, s20")
    e("s_add_u32 s20, s19, 65536")
    e("buffer_load_dwordx4 v[36:39], v26, %s, s19 offen" % srd(SRD_WQ))
    e("buffer_load_dwordx4 v[40:43], v26, %s, s20 offen" % srd(SRD_WQ))
    e("s_movk_i32 s21, 3584")
    e("v_mul_lo_u32 v27, v24, s21")
    e("v_lshl_add_u32 v27, v25, 4, v27")
    e("s_lshl_b32 s22, s11, 7")
    e("s_lshl_b32 s23, s3, 4")
    e("s_add_u32 s22, s22, s23")
    e("s_mul_i32 s23, s22, 3584")
    e("s_lshl_b32 s24, s12, 7")
    e("s_add_u32 s23, s23, s24")
    e("s_add_u32 s24, s23, %d" % (8 * 3584))
    e("buffer_load_dwordx4 v[44:47], v27, %s, s23 offen" % srd(SRD_W13))
    e("buffer_load_dwordx4 v[48:51], v27, %s, s24 offen" % srd(SRD_W13))
    e("s_lshl_b32 s14, s2, 19")
    e("s_lshl_b32 s15, s3, 16")
    e("s_add_u32 s14, s14, s15")
    e("s_lshl_b32 s15, s3, 14")
    e("s_add_u32 s15, s15, %d" % RINGB)
    e("v_lshrrev_b32 v20, 4, v0")
    e("v_and_b32 v21, 15, v0")
    e("v_lshlrev_b32 v22, 8, v20")
    e("v_xor_b32 v23, v21, v20")
    for j in range(4):
        e("v_xor_b32 v28, %d, v23" % (4 * j))
        e("v_lshl_add_u32 v%d, v28, 4, v22" % (2 + j))
    e("v_lshlrev_b32 v28, 1, v20")
    e("v_xor_b32 v28, v21, v28")
    e("v_lshl_add_u32 v6, v28, 4, v22")
    e("v_xor_b32 v28, 8, v28")
    e("v_lshl_add_u32 v7, v28, 4, v22")
    for u in range(INIT_UNITS):
        dma_unit(u)
    nd = 4 * INIT_UNITS
    e("v_lshlrev_b32 v29, 8, v21")
    e("v_add_u32 v29, s15, v29")
    for s in range(4):
        e("v_xor_b32 v28, %d, v23" % (4 * s))
        e("v_lshl_add_u32 v%d, v28, 4, v29" % (8 + s))
    e("v_lshrrev_b32 v28, 2, v21")
    e("v_lshl_add_u32 v28, v20, 2, v28")
    e("v_lshlrev_b32 v29, 8, v28")
    e("v_add_u32 v29, s15, v29")
    e("v_and_b32 v28, 7, v28")
    e("v_lshlrev_b32 v28, 1, v28")
    e("v_and_b32 v31, 3, v21")
    e("v_lshrrev_b32 v52, 1, v31")
    e("v_or_b32 v28, v28, v52")
    e("v_and_b32 v31, 1, v31")
    e("v_lshl_add_u32 v29, v31, 3, v29")
    for D in range(8):
        e("v_xor_b32 v52, %d, v28" % (2 * D))
        e("v_lshl_add_u32 v%d, v52, 4, v29" % (12 + D))
    e("s_waitcnt vmcnt(%d)" % (4 + nd))
    for j in range(4):
        e("v_lshlrev_b32 v%d, 16, v%d" % (56 + 2 * j, 32 + j))
        e("v_and_b32 v%d, 0xffff0000, v%d" % (57 + 2 * j, 32 + j))
    e("v_add_f32 v64, v56, v57")
    for j in range(2, 8):
        e("v_add_f32 v64, v64, v%d" % (56 + j))
    allred("v_add_f32", 64, 65, [0, 1, 2, 3, 4, 5])
    e("v_mul_f32 v64, 0x3b000000, v64")
    for j in range(8):
        e("v_sub_f32 v%d, v%d, v64" % (66 + j, 56 + j))
    e("v_mul_f32 v74, v66, v66")
    for j in range(1, 8):
        e("v_fmac_f32 v74, v%d, v%d" % (66 + j, 66 + j))
    allred("v_add_f32", 74, 65, [0, 1, 2, 3, 4, 5])
    e("v_mul_f32 v74, 0x3b000000, v74")
    rnd_bf16_pair(64, 74, 65)
    e("v_add_f32 v74, 0x%x, v74" % EPS)
    rnd_bf16(74, 65)
    e("v_sqrt_f32 v74, v74")
    e("s_nop 0")
    rnd_bf16(74, 65)
    e("v_rcp_f32 v75, v74")
    for j in range(8):
        e("v_sub_f32 v%d, v%d, v64" % (56 + j, 56 + j))
    for j in range(0, 8, 2):
        rnd_bf16_pair(56 + j, 57 + j, 65)
    for j in range(8):
        e("v_mul_f32 v%d, v%d, v75" % (66 + j, 56 + j))
    for j in range(8):
        e("v_fma_f32 v%d, -v%d, v74, v%d" % (76 + j, 66 + j, 56 + j))
    for j in range(8):
        e("v_fma_f32 v%d, v%d, v75, v%d" % (56 + j, 76 + j, 66 + j))
    for j in range(0, 8, 2):
        rnd_bf16_pair(56 + j, 57 + j, 65)
    e("v_lshlrev_b32 v65, 5, v0")
    e("ds_write_b128 v65, v[56:59] offset:%d" % XN)
    e("ds_write_b128 v65, v[60:63] offset:%d" % (XN + 16))
    e("v_add_u32 v65, s18, v24")
    e("v_lshlrev_b32 v65, 2, v65")
    e("v_add_u32 v66, s22, v24")
    e("v_lshlrev_b32 v66, 2, v66")
    e("s_waitcnt lgkmcnt(0)")
    e("ds_read_b32 v68, v65 offset:%d" % XN)
    e("ds_read_b32 v69, v65 offset:%d" % (XN + 32))
    e("ds_read_b32 v70, v66 offset:%d" % XN)
    e("ds_read_b32 v71, v66 offset:%d" % (XN + 32))
    for j in range(16):
        e("v_mov_b32 v%d, 0" % (80 + j))
    e("s_waitcnt vmcnt(%d) lgkmcnt(0)" % nd)
    for mat in range(2):
        for row in range(2):
            wbase = 36 + 8 * mat + 4 * row
            xr = 68 + 2 * mat + row
            for j in range(4):
                e("v_lshlrev_b32 v72, 16, v%d" % (wbase + j))
                e("v_and_b32 v73, 0xffff0000, v%d" % (wbase + j))
                e("v_fmac_f32 v%d, v%d, v72" % (80 + 8 * mat + 2 * j, xr))
                e("v_fmac_f32 v%d, v%d, v73" % (81 + 8 * mat + 2 * j, xr))
    e("s_nop 1")
    for j in range(16):
        dpp("v_add_f32", 80 + j, 80 + j, 80 + j, "row_ror:8")
    e("s_lshl_b32 s16, s3, 10")
    e("v_lshl_add_u32 v65, v25, 5, v22")
    e("v_add_u32 v65, s16, v65")
    e("ds_write_b128 v65, v[80:83] offset:%d" % RS)
    e("ds_write_b128 v65, v[84:87] offset:%d" % (RS + 16))
    e("ds_write_b128 v65, v[88:91] offset:%d" % (RS + 8192))
    e("ds_write_b128 v65, v[92:95] offset:%d" % (RS + 8192 + 16))
    e("s_waitcnt lgkmcnt(0)")
    e("s_barrier")
    stamp(1)
    for u in range(INIT_UNITS, 4):
        e("s_waitcnt vmcnt(%d)" % (4 * (INIT_UNITS - 1) + (1 if STAMP else 0)))
        dma_unit(u)
    e("s_barrier")
    stamp(2)
    e("v_and_b32 v28, 3, v21")
    e("v_lshlrev_b32 v28, 8, v28")
    e("v_lshl_add_u32 v28, v20, 4, v28")
    for s in range(4):
        e("ds_read_b128 v[%d:%d], v28 offset:%d" % (32 + 4 * s, 35 + 4 * s, QL + 64 * s))
    e("v_lshrrev_b32 v29, 2, v21")
    e("s_waitcnt lgkmcnt(0)")
    for T in range(4):
        e("v_cmp_eq_u32 vcc, %d, v29" % T)
        e("s_nop 1")
        for k in range(16):
            e("v_cndmask_b32 v%d, 0, v%d, vcc" % (56 + 16 * T + k, 32 + k))
    SB = 124
    for u in range(16):
        tg, T = u // 4, u % 4
        e("s_waitcnt vmcnt(12)")
        for s in range(4):
            e("ds_read_b128 v[%d:%d], v%d offset:%d" % (32 + 4 * s, 35 + 4 * s, 8 + s, (u % 4) * 4096))
        e("s_waitcnt lgkmcnt(0)")
        dma_unit(u + 4)
        for s in range(4):
            cc = "0" if (T == 0 and s == 0) else "v[%d:%d]" % (SB + 4 * tg, SB + 4 * tg + 3)
            e("v_mfma_f32_16x16x32_bf16 v[%d:%d], v[%d:%d], v[%d:%d], %s" %
              (SB + 4 * tg, SB + 4 * tg + 3, 32 + 4 * s, 35 + 4 * s, 56 + 16 * T + 4 * s, 59 + 16 * T + 4 * s, cc))
    e("s_nop 7")
    e("s_nop 1")
    for k in range(0, 16, 2):
        rnd_bf16_pair(SB + k, SB + k + 1, 28)
    for k in range(16):
        e("v_mul_f32 v%d, 0x%x, v%d" % (SB + k, SCALE, SB + k))
    for k in range(0, 16, 2):
        rnd_bf16_pair(SB + k, SB + k + 1, 28)
    e("v_max3_f32 v52, v%d, v%d, v%d" % (SB, SB + 1, SB + 2))
    for k in range(3, 15, 2):
        e("v_max3_f32 v52, v52, v%d, v%d" % (SB + k, SB + k + 1))
    e("v_max_f32 v52, v52, v%d" % (SB + 15))
    allred("v_max_f32", 52, 28, [2, 3, 4, 5])
    e("s_mov_b32 s16, 0x%x" % LOG2E)
    for k in range(16):
        e("v_sub_f32 v%d, v%d, v52" % (SB + k, SB + k))
    for k in range(16):
        e("v_mul_f32 v%d, s16, v%d" % (SB + k, SB + k))
    for k in range(16):
        e("v_exp_f32 v%d, v%d" % (SB + k, SB + k))
    e("s_nop 0")
    e("v_add_f32 v53, v%d, v%d" % (SB, SB + 1))
    for k in range(2, 16):
        e("v_add_f32 v53, v53, v%d" % (SB + k))
    allred("v_add_f32", 53, 28, [2, 3, 4, 5])
    PB = 112
    for tg in range(4):
        e("v_cvt_pk_bf16_f32 v%d, v%d, v%d" % (PB + 2 * tg, SB + 4 * tg, SB + 4 * tg + 1))
        e("v_cvt_pk_bf16_f32 v%d, v%d, v%d" % (PB + 2 * tg + 1, SB + 4 * tg + 2, SB + 4 * tg + 3))
    for uv in range(16):
        u = 16 + uv
        tg, T = uv // 4, uv % 4
        rem = min(u + 3, 31) - u
        e("s_waitcnt vmcnt(%d)" % (4 * rem))
        for D in range(8):
            e("ds_read_b64_tr_b16 v[%d:%d], v%d offset:%d" % (32 + 2 * D, 33 + 2 * D, 12 + D, (u % 4) * 4096))
        pa = 48 + 2 * (uv & 1)
        if T == 0:
            e("v_mov_b32 v%d, v%d" % (pa, PB + 2 * tg))
            e("v_mov_b32 v%d, v%d" % (pa + 1, PB + 2 * tg + 1))
        else:
            e("v_mov_b32_dpp v%d, v%d row_shl:%d row_mask:0xf bank_mask:0xf" % (pa, PB + 2 * tg, 4 * T))
            e("v_mov_b32_dpp v%d, v%d row_shl:%d row_mask:0xf bank_mask:0xf" % (pa + 1, PB + 2 * tg + 1, 4 * T))
        e("s_waitcnt lgkmcnt(0)")
        if u + 4 < 32:
            dma_unit(u + 4)
        else:
            e("s_nop 1")
        for D in range(8):
            cc = "0" if uv == 0 else "v[%d:%d]" % (56 + 4 * D, 59 + 4 * D)
            e("v_mfma_f32_16x16x16_bf16 v[%d:%d], v[%d:%d], v[%d:%d], %s" %
              (56 + 4 * D, 59 + 4 * D, pa, pa + 1, 32 + 2 * D, 33 + 2 * D, cc))
    stamp(3)
    e("s_nop 7")
    e("s_nop 1")
    e("v_lshlrev_b32 v28, 2, v0")
    e("v_add_u32 v28, s15, v28")
    e("s_mov_b64 exec, 0xffff")
    for D in range(8):
        for h in range(4):
            e("ds_write_b32 v28, v%d offset:%d" % (56 + 4 * D + h, h * 512 + D * 64))
    e("s_mov_b64 exec, 0xf")
    e("v_lshlrev_b32 v28, 3, v0")
    e("v_add_u32 v28, s15, v28")
    e("ds_write_b64 v28, v[52:53] offset:2048")
    e("s_mov_b64 exec, -1")
    e("s_waitcnt lgkmcnt(0)")
    e("s_barrier")
    e("s_endpgm")

def poll(label, vaddr, vmask, vtmp):
    e("s_mov_b32 s16, 0")
    lab(label)
    e("buffer_load_dword v%d, v%d, %s, 0 offen sc1" % (vtmp, vaddr, srd(SRD_DBG)))
    e("s_waitcnt vmcnt(0)")
    e("v_and_b32 v%d, v%d, v%d" % (vtmp, vtmp, vmask))
    e("v_cmp_ne_u32 vcc, v%d, v%d" % (vtmp, vmask))
    e("s_nop 1")
    e("s_cbranch_vccz %s_done" % label)
    e("s_add_u32 s16, s16, 1")
    e("s_cmp_ge_u32 s16, 0x40000")
    e("s_cbranch_scc1 %s_done" % label)
    e("s_sleep 2")
    e("s_branch %s" % label)
    lab(label + "_done")

def set_prog(val):
    e("s_waitcnt vmcnt(0)")
    e("v_mov_b32 v2, %d" % val)
    e("v_mov_b32 v3, s2")
    e("s_mov_b64 exec, 1")
    e("buffer_store_byte v2, v3, %s, 0 offen sc1" % srd(SRD_DBG))
    e("s_mov_b64 exec, -1")

def gemv_rows(nrows, wbase, xbase, acc):
    for j in range(8):
        e("v_mov_b32 v%d, 0" % (acc + j))
    for i in range(nrows):
        for j in range(4):
            e("v_lshlrev_b32 v4, 16, v%d" % (wbase + 4 * i + j))
            e("v_and_b32 v5, 0xffff0000, v%d" % (wbase + 4 * i + j))
            e("v_fmac_f32 v%d, v%d, v4" % (acc + 2 * j, xbase + i))
            e("v_fmac_f32 v%d, v%d, v5" % (acc + 2 * j + 1, xbase + i))
    for j in range(8):
        allred("v_add_f32", acc + j, 4, [3, 4, 5])

def service():
    lab("L_service")
    ROLE[0] = "s"
    c("================= service wave =================")
    stamp(0)
    e("v_lshrrev_b32 v24, 3, v0")
    e("v_and_b32 v25, 7, v0")
    e("s_barrier")
    stamp(1)
    e("v_lshlrev_b32 v6, 2, v0")
    for mat in range(2):
        for sl in range(32):
            e("ds_read_b32 v%d, v6 offset:%d" % (32 + 32 * mat + sl, RS + mat * 8192 + sl * 256))
        e("s_waitcnt lgkmcnt(0)")
    for mat in range(2):
        b = 32 + 32 * mat
        for st in (16, 8, 4, 2, 1):
            for k in range(st):
                e("v_add_f32 v%d, v%d, v%d" % (b + k, b + k, b + k + st))
    e("s_lshr_b32 s16, s5, 3")
    e("s_lshl_b32 s16, s16, 14")
    e("s_lshl_b32 s17, s4, 11")
    e("s_add_u32 s16, s16, s17")
    e("s_and_b32 s17, s5, 7")
    e("s_lshl_b32 s17, s17, 8")
    e("s_add_u32 s16, s16, s17")
    e("s_add_u32 s16, s16, %d" % QP)
    e("buffer_store_dword v32, v6, %s, s16 offen sc1" % srd(SRD_WS))
    e("s_mul_i32 s16, s9, %d" % (4 * 1792 * 4))
    e("s_mul_i32 s17, s11, %d" % (1792 * 4))
    e("s_add_u32 s16, s16, s17")
    e("s_lshl_b32 s17, s12, 8")
    e("s_add_u32 s16, s16, s17")
    e("s_add_u32 s16, s16, %d" % GU)
    e("buffer_store_dword v64, v6, %s, s16 offen sc1" % srd(SRD_WS))
    set_prog(1)
    stamp(2)
    e("v_and_b32 v8, 7, v0")
    e("s_lshl_b32 s16, s4, 3")
    e("v_add_u32 v8, s16, v8")
    e("v_lshlrev_b32 v8, 2, v8")
    e("v_mov_b32 v9, 0x01010101")
    poll("L_poll_q", 8, 9, 10)
    stamp(3)
    e("v_lshlrev_b32 v6, 5, v0")
    e("s_lshl_b32 s16, s4, 11")
    e("s_add_u32 s16, s16, %d" % QP)
    for kq in range(4):
        e("s_add_u32 s17, s16, %d" % (kq * 16384))
        e("buffer_load_dwordx4 v[%d:%d], v6, %s, s17 offen sc1" % (32 + 8 * kq, 35 + 8 * kq, srd(SRD_WS)))
        e("buffer_load_dwordx4 v[%d:%d], v6, %s, s17 offen offset:16 sc1" % (36 + 8 * kq, 39 + 8 * kq, srd(SRD_WS)))
    e("s_waitcnt vmcnt(0)")
    for kq in range(1, 4):
        for j in range(8):
            e("v_add_f32 v%d, v%d, v%d" % (32 + j, 32 + j, 32 + 8 * kq + j))
    for j in range(4):
        e("v_cvt_pk_bf16_f32 v%d, v%d, v%d" % (40 + j, 32 + 2 * j, 33 + 2 * j))
    e("v_lshlrev_b32 v6, 4, v0")
    e("ds_write_b128 v6, v[40:43] offset:%d" % QL)
    e("s_waitcnt lgkmcnt(0)")
    e("s_barrier")
    stamp(4)
    e("v_lshlrev_b32 v11, 2, v0")
    poll("L_poll_b", 11, 9, 10)
    e("v_lshlrev_b32 v7, 10, v24")
    e("v_lshl_add_u32 v7, v25, 4, v7")
    e("s_mul_i32 s16, s6, %d" % (56 * 1024))
    e("s_lshl_b32 s17, s7, 7")
    e("s_add_u32 s16, s16, s17")
    for i in range(7):
        e("s_add_u32 s17, s16, %d" % (i * 8192))
        e("buffer_load_dwordx4 v[%d:%d], v7, %s, s17 offen" % (64 + 4 * i, 67 + 4 * i, srd(SRD_W2)))
    e("v_min_u32 v6, 55, v0")
    e("s_mul_i32 s16, s6, 56")
    e("v_add_u32 v6, s16, v6")
    e("v_lshlrev_b32 v6, 2, v6")
    for m in range(2):
        for kq in range(4):
            e("s_mov_b32 s17, %d" % (GU + (m * 4 + kq) * 1792 * 4))
            e("buffer_load_dword v%d, v6, %s, s17 offen sc1" % (32 + 4 * m + kq, srd(SRD_WS)))
    e("s_waitcnt vmcnt(0)")
    for m in range(2):
        for kq in range(1, 4):
            e("v_add_f32 v%d, v%d, v%d" % (32 + 4 * m, 32 + 4 * m, 32 + 4 * m + kq))
    rnd_bf16_pair(32, 36, 4)
    e("v_mul_f32 v33, 0x%x, v32" % (LOG2E | 0x80000000))
    e("v_exp_f32 v33, v33")
    e("s_nop 0")
    e("v_add_f32 v33, 1.0, v33")
    e("v_rcp_f32 v34, v33")
    e("s_nop 0")
    e("v_mul_f32 v35, v32, v34")
    rnd_bf16(35, 4)
    e("v_mul_f32 v35, v35, v36")
    rnd_bf16(35, 4)
    e("v_lshlrev_b32 v6, 2, v0")
    e("ds_write_b32 v6, v35 offset:%d" % HL)
    e("v_lshlrev_b32 v6, 2, v24")
    e("s_waitcnt lgkmcnt(0)")
    for i in range(7):
        e("ds_read_b32 v%d, v6 offset:%d" % (32 + i, HL + 32 * i))
    e("s_waitcnt lgkmcnt(0)")
    gemv_rows(7, 64, 32, 40)
    e("s_lshl_b32 s16, s7, 13")
    e("s_lshl_b32 s17, s6, 8")
    e("s_add_u32 s16, s16, s17")
    e("s_add_u32 s16, s16, %d" % YB)
    e("v_lshlrev_b32 v6, 5, v0")
    e("s_mov_b64 exec, 0xff")
    e("buffer_store_dwordx4 v[40:43], v6, %s, s16 offen sc1" % srd(SRD_WS))
    e("buffer_store_dwordx4 v[44:47], v6, %s, s16 offen offset:16 sc1" % srd(SRD_WS))
    e("s_mov_b64 exec, -1")
    e("s_lshl_b32 s16, s6, 17")
    e("s_lshl_b32 s17, s7, 7")
    e("s_add_u32 s16, s16, s17")
    for i in range(16):
        e("s_add_u32 s17, s16, %d" % (i * 8192))
        e("buffer_load_dwordx4 v[%d:%d], v7, %s, s17 offen" % (64 + 4 * i, 67 + 4 * i, srd(SRD_WO)))
    stamp(5)
    e("s_barrier")
    stamp(6)
    e("v_and_b32 v6, 31, v0")
    e("v_lshrrev_b32 v8, 2, v6")
    e("v_lshlrev_b32 v8, 14, v8")
    e("v_and_b32 v10, 3, v0")
    e("v_lshl_add_u32 v8, v10, 3, v8")
    e("ds_read_b64 v[12:13], v8 offset:%d" % (RINGB + 2048))
    e("s_waitcnt lgkmcnt(0)")
    e("v_mov_b32 v14, v12")
    allred("v_max_f32", 14, 4, [2, 3, 4])
    e("v_sub_f32 v15, v12, v14")
    e("v_mul_f32 v15, 0x%x, v15" % LOG2E)
    e("v_exp_f32 v15, v15")
    e("s_nop 0")
    e("v_mul_f32 v16, v15, v13")
    allred("v_add_f32", 16, 4, [2, 3, 4])
    e("v_lshlrev_b32 v8, 2, v6")
    e("ds_write_b32 v8, v15 offset:%d" % SC)
    e("v_mov_b32 v17, v16")
    e("v_mov_b32 v16, v14")
    e("v_lshrrev_b32 v8, 4, v0")
    e("v_and_b32 v10, 15, v0")
    e("v_lshlrev_b32 v18, 9, v8")
    e("v_lshl_add_u32 v18, v10, 5, v18")
    e("v_add_u32 v18, %d, v18" % RINGB)
    e("v_add_u32 v11, 0x10000, v18")
    e("v_lshlrev_b32 v19, 2, v8")
    e("s_waitcnt lgkmcnt(0)")
    for wv in range(8):
        e("ds_read_b32 v%d, v19 offset:%d" % (20 + wv, SC + 16 * wv))
    for j in range(8):
        e("v_mov_b32 v%d, 0" % (28 + j))
    for batch in ((0, 1, 2), (3, 4, 5), (6, 7)):
        for k, wv in enumerate(batch):
            off = (wv & 3) * 16384
            ar = 18 if wv < 4 else 11
            e("ds_read_b128 v[%d:%d], v%d offset:%d" % (36 + 8 * k, 39 + 8 * k, ar, off))
            e("ds_read_b128 v[%d:%d], v%d offset:%d" % (40 + 8 * k, 43 + 8 * k, ar, off + 16))
        e("s_waitcnt lgkmcnt(0)")
        for k, wv in enumerate(batch):
            for j in range(8):
                e("v_fmac_f32 v%d, v%d, v%d" % (28 + j, 20 + wv, 36 + 8 * k + j))
    e("v_lshlrev_b32 v18, 14, v8")
    e("v_lshl_add_u32 v18, v10, 5, v18")
    e("s_lshl_b32 s16, s4, 16")
    e("s_lshl_b32 s17, s5, 9")
    e("s_add_u32 s16, s16, s17")
    e("s_add_u32 s16, s16, %d" % AP)
    e("buffer_store_dwordx4 v[28:31], v18, %s, s16 offen sc1" % srd(SRD_WS))
    e("buffer_store_dwordx4 v[32:35], v18, %s, s16 offen offset:16 sc1" % srd(SRD_WS))
    e("v_lshlrev_b32 v18, 8, v0")
    e("s_lshl_b32 s16, s4, 10")
    e("s_lshl_b32 s17, s5, 3")
    e("s_add_u32 s16, s16, s17")
    e("s_add_u32 s16, s16, %d" % ML)
    e("s_mov_b64 exec, 0xf")
    e("buffer_store_dwordx2 v[16:17], v18, %s, s16 offen sc1" % srd(SRD_WS))
    e("s_mov_b64 exec, -1")
    set_prog(3)
    stamp(7)
    e("v_and_b32 v8, 7, v0")
    e("s_lshl_b32 s16, s4, 3")
    e("v_add_u32 v8, s16, v8")
    e("v_lshlrev_b32 v8, 2, v8")
    e("v_mov_b32 v9, 0x02020202")
    poll("L_poll_a", 8, 9, 10)
    stamp(8)
    e("v_and_b32 v6, 31, v0")
    e("v_lshlrev_b32 v8, 3, v6")
    e("s_lshl_b32 s16, s6, 8")
    e("s_add_u32 s16, s16, %d" % ML)
    e("buffer_load_dwordx2 v[12:13], v8, %s, s16 offen sc1" % srd(SRD_WS))
    def apreg(i):
        return 128 + 4 * i if i < 10 else 40 + 4 * (i - 10)
    e("v_lshrrev_b32 v10, 5, v0")
    e("v_lshlrev_b32 v8, 9, v10")
    e("v_lshl_add_u32 v8, v6, 4, v8")
    e("s_lshl_b32 s16, s6, 14")
    e("s_add_u32 s16, s16, %d" % AP)
    for i in range(16):
        e("s_add_u32 s17, s16, %d" % (i * 1024))
        e("buffer_load_dwordx4 v[%d:%d], v8, %s, s17 offen sc1" % (apreg(i), apreg(i) + 3, srd(SRD_WS)))
    e("s_waitcnt vmcnt(16)")
    e("v_mov_b32 v14, v12")
    allred("v_max_f32", 14, 4, [0, 1, 2, 3, 4])
    e("v_sub_f32 v15, v12, v14")
    e("v_mul_f32 v15, 0x%x, v15" % LOG2E)
    e("v_exp_f32 v15, v15")
    e("s_nop 0")
    e("v_mul_f32 v16, v15, v13")
    allred("v_add_f32", 16, 4, [0, 1, 2, 3, 4])
    e("v_lshlrev_b32 v8, 2, v6")
    e("ds_write_b32 v8, v15 offset:%d" % WL)
    e("v_lshlrev_b32 v8, 2, v10")
    e("s_waitcnt lgkmcnt(0)")
    for i in range(16):
        e("ds_read_b32 v%d, v8 offset:%d" % (20 + i, WL + 8 * i))
    for j in range(4):
        e("v_mov_b32 v%d, 0" % (36 + j))
    e("s_waitcnt vmcnt(0) lgkmcnt(0)")
    for i in range(16):
        for j in range(4):
            e("v_fmac_f32 v%d, v%d, v%d" % (36 + j, 20 + i, apreg(i) + j))
    for j in range(4):
        allred("v_add_f32", 36 + j, 4, [5])
    e("v_rcp_f32 v17, v16")
    e("s_nop 0")
    for j in range(4):
        e("v_mul_f32 v18, v%d, v17" % (36 + j))
        e("v_fma_f32 v19, -v18, v16, v%d" % (36 + j))
        e("v_fma_f32 v%d, v19, v17, v18" % (36 + j))
    rnd_bf16_pair(36, 37, 4)
    rnd_bf16_pair(38, 39, 4)
    e("v_lshlrev_b32 v8, 4, v6")
    e("ds_write_b128 v8, v[36:39] offset:%d" % OL)
    e("v_lshrrev_b32 v8, 3, v0")
    e("v_lshlrev_b32 v8, 2, v8")
    e("s_waitcnt lgkmcnt(0)")
    for i in range(16):
        e("ds_read_b32 v%d, v8 offset:%d" % (20 + i, OL + 32 * i))
    e("s_waitcnt lgkmcnt(0)")
    gemv_rows(16, 64, 20, 48)
    e("s_lshl_b32 s16, s7, 13")
    e("s_lshl_b32 s17, s6, 8")
    e("s_add_u32 s16, s16, s17")
    e("s_add_u32 s16, s16, %d" % YA)
    e("v_lshlrev_b32 v6, 5, v0")
    e("s_mov_b64 exec, 0xff")
    e("buffer_store_dwordx4 v[48:51], v6, %s, s16 offen sc1" % srd(SRD_WS))
    e("buffer_store_dwordx4 v[52:55], v6, %s, s16 offen offset:16 sc1" % srd(SRD_WS))
    e("s_mov_b64 exec, -1")
    set_prog(7)
    stamp(9)
    e("s_cmp_ge_u32 s2, 8")
    e("s_cbranch_scc1 L_end")
    e("v_and_b32 v6, 15, v0")
    e("v_lshlrev_b32 v8, 3, v6")
    e("s_lshl_b32 s16, s7, 7")
    e("buffer_load_dwordx2 v[20:21], v8, %s, s16 offen" % srd(SRD_X))
    e("s_and_b32 s16, s7, 3")
    e("s_lshl_b32 s16, s16, 3")
    e("s_lshl_b32 s16, 4, s16")
    e("s_lshr_b32 s17, s7, 2")
    e("v_and_b32 v10, 1, v0")
    e("v_cmp_eq_u32 vcc, s17, v10")
    e("v_mov_b32 v9, s16")
    e("s_nop 0")
    e("v_cndmask_b32 v9, 0, v9, vcc")
    e("v_lshlrev_b32 v11, 2, v0")
    poll("L_poll_f", 11, 9, 10)
    stamp(10)
    e("v_lshrrev_b32 v10, 4, v0")
    e("v_lshlrev_b32 v8, 8, v10")
    e("v_lshl_add_u32 v8, v6, 4, v8")
    e("s_lshl_b32 s16, s7, 13")
    for i in range(8):
        e("s_add_u32 s17, s16, %d" % (YA + i * 1024))
        e("buffer_load_dwordx4 v[%d:%d], v8, %s, s17 offen sc1" % (32 + 4 * i, 35 + 4 * i, srd(SRD_WS)))
    for i in range(8):
        e("s_add_u32 s17, s16, %d" % (YB + i * 1024))
        e("buffer_load_dwordx4 v[%d:%d], v8, %s, s17 offen sc1" % (64 + 4 * i, 67 + 4 * i, srd(SRD_WS)))
    e("s_waitcnt vmcnt(0)")
    for b in (32, 64):
        for i in range(1, 8):
            for j in range(4):
                e("v_add_f32 v%d, v%d, v%d" % (b + j, b + j, b + 4 * i + j))
        for j in range(4):
            allred("v_add_f32", b + j, 4, [4, 5])
    rnd_bf16_pair(32, 33, 4)
    rnd_bf16_pair(34, 35, 4)
    rnd_bf16_pair(64, 65, 4)
    rnd_bf16_pair(66, 67, 4)
    e("v_lshlrev_b32 v22, 16, v20")
    e("v_and_b32 v23, 0xffff0000, v20")
    e("v_lshlrev_b32 v24, 16, v21")
    e("v_and_b32 v25, 0xffff0000, v21")
    for j in range(4):
        e("v_add_f32 v%d, v%d, v%d" % (32 + j, 22 + j, 32 + j))
    rnd_bf16_pair(32, 33, 4)
    rnd_bf16_pair(34, 35, 4)
    for j in range(4):
        e("v_add_f32 v%d, v%d, v%d" % (32 + j, 32 + j, 64 + j))
    e("v_cvt_pk_bf16_f32 v36, v32, v33")
    e("v_cvt_pk_bf16_f32 v37, v34, v35")
    e("v_lshlrev_b32 v8, 3, v6")
    e("s_lshl_b32 s16, s7, 7")
    e("s_mov_b64 exec, 0xffff")
    e("buffer_store_dwordx2 v[36:37], v8, %s, s16 offen" % srd(SRD_OUT))
    e("s_mov_b64 exec, -1")
    stamp(11)

gen()
txt = "\n".join(header() + L + footer(168)) + "\n"
open(OUT, "w").write(txt)
print("wrote", OUT, len(txt), "bytes")
```

```python
import sys

NAME = "parallel_sum__gqa_block_cached__glu_gated_swiglu__decode"
OUT = "cdna_kernels/%s.s" % NAME

NT = True
PACE = 3
LAYOUT = "A"
SLEEP = 2
FLG = 0x180000
STAMP = False

for a in sys.argv[1:]:
    if a.startswith("nt="): NT = bool(int(a[3:]))
    elif a.startswith("pace="): PACE = int(a[5:])
    elif a.startswith("layout="): LAYOUT = a[7:]
    elif a.startswith("sleep="): SLEEP = int(a[6:])
    elif a.startswith("out="): OUT = a[4:]
    elif a.startswith("stamp="): STAMP = bool(int(a[6:]))

L = []
def e(s=""):
    L.append("    " + s if s and not s.endswith(":") else s)
def lab(s):
    L.append(s + ":")
def c(s):
    L.append("    ; " + s)

XN = 0
RS = XN + 2048
QL = RS + 16384
HL = QL + 1024
WL = HL + 256
OL = WL + 128
SC = OL + 512
RINGB = 24576
LDS_TOTAL = RINGB + 8 * 16384

QP = 0
GU = 0x10000
AP = 0x20000
ML = 0xA0000
YA = 0xA2000
YB = 0xB2000
TS = 0x100000

SRD_X, SRD_K, SRD_V, SRD_WQ, SRD_WO, SRD_W13, SRD_W2, SRD_OUT, SRD_DBG, SRD_WS = 40, 44, 48, 52, 56, 60, 64, 68, 72, 76
def srd(n): return "s[%d:%d]" % (n, n + 3)

LOG2E = 0x3fb8aa3b
SCALE = 0x3db504f3
EPS = 0x3727c5ac

def header():
    h = []
    h.append("; @launch grid=(256,1,1) block=(576,1,1) lds=%d" % LDS_TOTAL)
    h.append('.amdgcn_target "amdgcn-amd-amdhsa--gfx950"')
    h.append(".text")
    h.append(".globl %s_kernel" % NAME)
    h.append(".p2align 8")
    h.append(".type %s_kernel,@function" % NAME)
    h.append("%s_kernel:" % NAME)
    return h

def footer(nv):
    f = []
    f.append(".section .rodata,\"a\"")
    f.append(".p2align 6")
    f.append(".amdhsa_kernel %s_kernel" % NAME)
    f.append("  .amdhsa_next_free_vgpr %d" % nv)
    f.append("  .amdhsa_next_free_sgpr 102")
    f.append("  .amdhsa_accum_offset %d" % ((nv + 3) // 4 * 4))
    f.append("  .amdhsa_group_segment_fixed_size 0")
    f.append("  .amdhsa_kernarg_size 96")
    f.append("  .amdhsa_user_sgpr_count 2")
    f.append("  .amdhsa_user_sgpr_kernarg_segment_ptr 1")
    f.append("  .amdhsa_system_sgpr_workgroup_id_x 1")
    f.append(".end_amdhsa_kernel")
    return f

def build_srd(d, p, nbytes):
    e("s_mov_b32 s%d, s%d" % (d, p))
    e("s_mov_b32 s%d, s%d" % (d + 1, p + 1))
    e("s_mov_b32 s%d, 0x%x" % (d + 2, nbytes))
    e("s_mov_b32 s%d, 0x00020000" % (d + 3))

def rnd_bf16_pair(a, b, t):
    e("v_cvt_pk_bf16_f32 v%d, v%d, v%d" % (t, a, b))
    e("v_lshlrev_b32 v%d, 16, v%d" % (a, t))
    e("v_and_b32 v%d, 0xffff0000, v%d" % (b, t))
def rnd_bf16(a, t):
    e("v_cvt_pk_bf16_f32 v%d, v%d, v%d" % (t, a, a))
    e("v_lshlrev_b32 v%d, 16, v%d" % (a, t))

def dpp(op, d, a, b, ctrl):
    e("%s_dpp v%d, v%d, v%d %s row_mask:0xf bank_mask:0xf" % (op, d, a, b, ctrl))

def allred(op, v, t, bits):
    for b in bits:
        if b == 0:
            e("s_nop 1"); dpp(op, v, v, v, "quad_perm:[1,0,3,2]")
        elif b == 1:
            e("s_nop 1"); dpp(op, v, v, v, "quad_perm:[2,3,0,1]")
        elif b == 2:
            e("s_nop 1"); dpp(op, v, v, v, "row_ror:4")
        elif b == 3:
            e("s_nop 1"); dpp(op, v, v, v, "row_ror:8")
        elif b == 4:
            e("v_mov_b32 v%d, v%d" % (t, v)); e("s_nop 1")
            e("v_permlane16_swap_b32 v%d, v%d" % (v, t)); e("s_nop 1")
            e("%s v%d, v%d, v%d" % (op, v, v, t))
        elif b == 5:
            e("v_mov_b32 v%d, v%d" % (t, v)); e("s_nop 1")
            e("v_permlane32_swap_b32 v%d, v%d" % (v, t)); e("s_nop 1")
            e("%s v%d, v%d, v%d" % (op, v, v, t))

stamp_idx = [0]
ROLE = ["w"]
def stamp(slot):
    if not STAMP:
        return
    e("s_memrealtime s[90:91]")
    e("s_waitcnt lgkmcnt(0)")
    a, b, ad = (160, 161, 162) if ROLE[0] == "w" else (2, 3, 1)
    e("v_mov_b32 v%d, s90" % a)
    e("v_mov_b32 v%d, s91" % b)
    e("s_lshl_b32 s92, s2, 4")
    e("s_add_u32 s92, s92, s3")
    e("s_lshl_b32 s92, s92, 7")
    e("s_add_u32 s92, s92, %d" % (TS + slot * 8))
    e("v_mov_b32 v%d, s92" % ad)
    e("buffer_store_dwordx2 v[%d:%d], v%d, %s, 0 offen" % (a, b, ad, srd(SRD_WS)))

def gen():
    e("s_cmp_ge_u32 s2, 256")
    e("s_cbranch_scc1 L_end")
    e("s_load_dwordx16 s[16:31], s[0:1], 0")
    e("s_load_dwordx8 s[32:39], s[0:1], 64")
    e("v_lshrrev_b32 v1, 6, v0")
    e("v_and_b32 v0, 63, v0")
    e("s_nop 0")
    e("v_readfirstlane_b32 s3, v1")
    e("s_lshr_b32 s4, s2, 5")
    e("s_and_b32 s5, s2, 31")
    e("s_lshr_b32 s6, s2, 3")
    e("s_and_b32 s7, s2, 7")
    e("s_sub_u32 s8, s2, 224")
    e("s_cmp_ge_u32 s2, 224")
    e("s_cselect_b32 s8, s8, s2")
    e("s_cmp_ge_u32 s8, 112")
    e("s_cselect_b32 s9, 1, 0")
    e("s_mul_i32 s10, s9, 112")
    e("s_sub_u32 s10, s8, s10")
    e("s_mov_b32 s11, 0")
    for t in (28, 56, 84):
        e("s_cmp_ge_u32 s10, %d" % t)
        e("s_addc_u32 s11, s11, 0")
    e("s_mul_i32 s12, s11, 28")
    e("s_sub_u32 s12, s10, s12")
    e("s_waitcnt lgkmcnt(0)")
    build_srd(SRD_X, 16, 1024)
    build_srd(SRD_K, 18, 134217728)
    build_srd(SRD_V, 20, 134217728)
    build_srd(SRD_WQ, 22, 4194304)
    build_srd(SRD_WO, 24, 4194304)
    e("s_cmp_eq_u32 s9, 0")
    e("s_cselect_b32 s%d, s28, s30" % SRD_W13)
    e("s_cselect_b32 s%d, s29, s31" % (SRD_W13 + 1))
    e("s_mov_b32 s%d, 0x%x" % (SRD_W13 + 2, 1835008))
    e("s_mov_b32 s%d, 0x00020000" % (SRD_W13 + 3))
    build_srd(SRD_W2, 32, 1835008)
    build_srd(SRD_OUT, 34, 1024)
    build_srd(SRD_DBG, 36, 256)
    build_srd(SRD_WS, 38, 536870912)
    e("s_cmp_eq_u32 s3, 8")
    e("s_cbranch_scc1 L_service")
    worker()
    service()
    lab("L_end")
    e("s_endpgm")

USTRIDE = {"A": 4096, "B": 32768, "C": 1 << 20}
def dma_setup(u):
    isK = u < 16
    uu = u if isK else u - 16
    e("s_add_u32 s20, s14, %d" % (uu * USTRIDE[LAYOUT]))
    e("s_add_u32 m0, s15, %d" % ((u % 4) * 4096))
    e("s_nop 0")
def dma_one(u, j):
    isK = u < 16
    vo = (2 + j) if isK else (6 + (j & 1))
    e("buffer_load_dwordx4 v%d, %s, s20 offen offset:%d%s lds" %
      (vo, srd(SRD_K if isK else SRD_V), j * 1024, " nt" if NT else ""))
def dma_unit(u):
    dma_setup(u)
    for j in range(4):
        dma_one(u, j)

def worker():
    c("================= worker waves (s3 = 0..7) =================")
    stamp(0)
    e("v_lshlrev_b32 v30, 4, v0")
    e("buffer_load_dwordx4 v[32:35], v30, %s, 0 offen" % srd(SRD_X))
    e("v_lshrrev_b32 v24, 3, v0")
    e("v_and_b32 v25, 7, v0")
    e("v_lshlrev_b32 v26, 13, v24")
    e("v_lshl_add_u32 v26, v25, 4, v26")
    e("s_lshr_b32 s16, s5, 3")
    e("s_and_b32 s17, s5, 7")
    e("s_lshl_b32 s18, s16, 7")
    e("s_lshl_b32 s19, s3, 4")
    e("s_add_u32 s18, s18, s19")
    e("s_lshl_b32 s19, s18, 13")
    e("s_lshl_b32 s20, s4, 10")
    e("s_add_u32 s19, s19, s20")
    e("s_lshl_b32 s20, s17, 7")
    e("s_add_u32 s19, s19, s20")
    e("s_add_u32 s20, s19, 65536")
    e("buffer_load_dwordx4 v[36:39], v26, %s, s19 offen" % srd(SRD_WQ))
    e("buffer_load_dwordx4 v[40:43], v26, %s, s20 offen" % srd(SRD_WQ))
    e("s_movk_i32 s21, 3584")
    e("v_mul_lo_u32 v27, v24, s21")
    e("v_lshl_add_u32 v27, v25, 4, v27")
    e("s_lshl_b32 s22, s11, 7")
    e("s_lshl_b32 s23, s3, 4")
    e("s_add_u32 s22, s22, s23")
    e("s_mul_i32 s23, s22, 3584")
    e("s_lshl_b32 s24, s12, 7")
    e("s_add_u32 s23, s23, s24")
    e("s_add_u32 s24, s23, %d" % (8 * 3584))
    e("buffer_load_dwordx4 v[44:47], v27, %s, s23 offen" % srd(SRD_W13))
    e("buffer_load_dwordx4 v[48:51], v27, %s, s24 offen" % srd(SRD_W13))
    if LAYOUT == "A":
        e("s_lshl_b32 s14, s2, 19")
        e("s_lshl_b32 s15, s3, 16")
        e("s_add_u32 s14, s14, s15")
    elif LAYOUT == "B":
        e("s_lshl_b32 s14, s2, 19")
        e("s_lshl_b32 s15, s3, 12")
        e("s_add_u32 s14, s14, s15")
    else:
        e("s_lshl_b32 s14, s4, 24")
        e("s_lshl_b32 s15, s5, 15")
        e("s_add_u32 s14, s14, s15")
        e("s_lshl_b32 s15, s3, 12")
        e("s_add_u32 s14, s14, s15")
    e("s_lshl_b32 s15, s3, 14")
    e("s_add_u32 s15, s15, %d" % RINGB)
    e("v_lshrrev_b32 v20, 4, v0")
    e("v_and_b32 v21, 15, v0")
    e("v_lshlrev_b32 v22, 8, v20")
    e("v_xor_b32 v23, v21, v20")
    for j in range(4):
        e("v_xor_b32 v28, %d, v23" % (4 * j))
        e("v_lshl_add_u32 v%d, v28, 4, v22" % (2 + j))
    e("v_lshlrev_b32 v28, 1, v20")
    e("v_xor_b32 v28, v21, v28")
    e("v_lshl_add_u32 v6, v28, 4, v22")
    e("v_xor_b32 v28, 8, v28")
    e("v_lshl_add_u32 v7, v28, 4, v22")
    for i in range(PACE):
        if i % 4 == 0:
            dma_setup(i // 4)
        dma_one(i // 4, i % 4)
    nd = PACE
    e("v_lshlrev_b32 v29, 8, v21")
    e("v_add_u32 v29, s15, v29")
    for s in range(4):
        e("v_xor_b32 v28, %d, v23" % (4 * s))
        e("v_lshl_add_u32 v%d, v28, 4, v29" % (8 + s))
    e("v_lshrrev_b32 v28, 2, v21")
    e("v_lshl_add_u32 v28, v20, 2, v28")
    e("v_lshlrev_b32 v29, 8, v28")
    e("v_add_u32 v29, s15, v29")
    e("v_and_b32 v28, 7, v28")
    e("v_lshlrev_b32 v28, 1, v28")
    e("v_and_b32 v31, 3, v21")
    e("v_lshrrev_b32 v52, 1, v31")
    e("v_or_b32 v28, v28, v52")
    e("v_and_b32 v31, 1, v31")
    e("v_lshl_add_u32 v29, v31, 3, v29")
    for D in range(8):
        e("v_xor_b32 v52, %d, v28" % (2 * D))
        e("v_lshl_add_u32 v%d, v52, 4, v29" % (12 + D))
    e("s_waitcnt vmcnt(%d)" % (4 + nd))
    for j in range(4):
        e("v_lshlrev_b32 v%d, 16, v%d" % (56 + 2 * j, 32 + j))
        e("v_and_b32 v%d, 0xffff0000, v%d" % (57 + 2 * j, 32 + j))
    e("v_add_f32 v64, v56, v57")
    for j in range(2, 8):
        e("v_add_f32 v64, v64, v%d" % (56 + j))
    allred("v_add_f32", 64, 65, [0, 1, 2, 3, 4, 5])
    e("v_mul_f32 v64, 0x3b000000, v64")
    for j in range(8):
        e("v_sub_f32 v%d, v%d, v64" % (66 + j, 56 + j))
    e("v_mul_f32 v74, v66, v66")
    for j in range(1, 8):
        e("v_fmac_f32 v74, v%d, v%d" % (66 + j, 66 + j))
    allred("v_add_f32", 74, 65, [0, 1, 2, 3, 4, 5])
    e("v_mul_f32 v74, 0x3b000000, v74")
    rnd_bf16_pair(64, 74, 65)
    e("v_add_f32 v74, 0x%x, v74" % EPS)
    rnd_bf16(74, 65)
    e("v_sqrt_f32 v74, v74")
    e("s_nop 0")
    rnd_bf16(74, 65)
    e("v_rcp_f32 v75, v74")
    for j in range(8):
        e("v_sub_f32 v%d, v%d, v64" % (56 + j, 56 + j))
    for j in range(0, 8, 2):
        rnd_bf16_pair(56 + j, 57 + j, 65)
    for j in range(8):
        e("v_mul_f32 v%d, v%d, v75" % (66 + j, 56 + j))
    for j in range(8):
        e("v_fma_f32 v%d, -v%d, v74, v%d" % (76 + j, 66 + j, 56 + j))
    for j in range(8):
        e("v_fma_f32 v%d, v%d, v75, v%d" % (56 + j, 76 + j, 66 + j))
    for j in range(0, 8, 2):
        rnd_bf16_pair(56 + j, 57 + j, 65)
    e("v_lshlrev_b32 v65, 5, v0")
    e("ds_write_b128 v65, v[56:59] offset:%d" % XN)
    e("ds_write_b128 v65, v[60:63] offset:%d" % (XN + 16))
    e("v_add_u32 v65, s18, v24")
    e("v_lshlrev_b32 v65, 2, v65")
    e("v_add_u32 v66, s22, v24")
    e("v_lshlrev_b32 v66, 2, v66")
    e("s_waitcnt lgkmcnt(0)")
    e("ds_read_b32 v68, v65 offset:%d" % XN)
    e("ds_read_b32 v69, v65 offset:%d" % (XN + 32))
    e("ds_read_b32 v70, v66 offset:%d" % XN)
    e("ds_read_b32 v71, v66 offset:%d" % (XN + 32))
    for j in range(16):
        e("v_mov_b32 v%d, 0" % (80 + j))
    e("s_waitcnt vmcnt(%d) lgkmcnt(0)" % nd)
    for mat in range(2):
        for row in range(2):
            wbase = 36 + 8 * mat + 4 * row
            xr = 68 + 2 * mat + row
            for j in range(4):
                e("v_lshlrev_b32 v72, 16, v%d" % (wbase + j))
                e("v_and_b32 v73, 0xffff0000, v%d" % (wbase + j))
                e("v_fmac_f32 v%d, v%d, v72" % (80 + 8 * mat + 2 * j, xr))
                e("v_fmac_f32 v%d, v%d, v73" % (81 + 8 * mat + 2 * j, xr))
    e("s_nop 1")
    for j in range(16):
        dpp("v_add_f32", 80 + j, 80 + j, 80 + j, "row_ror:8")
    e("s_lshl_b32 s16, s3, 10")
    e("v_lshl_add_u32 v65, v25, 5, v22")
    e("v_add_u32 v65, s16, v65")
    e("ds_write_b128 v65, v[80:83] offset:%d" % RS)
    e("ds_write_b128 v65, v[84:87] offset:%d" % (RS + 16))
    e("ds_write_b128 v65, v[88:91] offset:%d" % (RS + 8192))
    e("ds_write_b128 v65, v[92:95] offset:%d" % (RS + 8192 + 16))
    e("s_waitcnt lgkmcnt(0)")
    e("s_barrier")
    stamp(1)
    for i in range(PACE, 16):
        e("s_waitcnt vmcnt(%d)" % (PACE - 1))
        if i % 4 == 0 or i == PACE:
            dma_setup(i // 4)
        dma_one(i // 4, i % 4)
    e("s_barrier")
    stamp(2)
    e("v_and_b32 v28, 3, v21")
    e("v_lshlrev_b32 v28, 8, v28")
    e("v_lshl_add_u32 v28, v20, 4, v28")
    for s in range(4):
        e("ds_read_b128 v[%d:%d], v28 offset:%d" % (32 + 4 * s, 35 + 4 * s, QL + 64 * s))
    e("v_lshrrev_b32 v29, 2, v21")
    e("s_waitcnt lgkmcnt(0)")
    for T in range(4):
        e("v_cmp_eq_u32 vcc, %d, v29" % T)
        e("s_nop 1")
        for k in range(16):
            e("v_cndmask_b32 v%d, 0, v%d, vcc" % (56 + 16 * T + k, 32 + k))
    SB = 124
    for u in range(16):
        tg, T = u // 4, u % 4
        e("s_waitcnt vmcnt(12)")
        for s in range(4):
            e("ds_read_b128 v[%d:%d], v%d offset:%d" % (32 + 4 * s, 35 + 4 * s, 8 + s, (u % 4) * 4096))
        e("s_waitcnt lgkmcnt(0)")
        dma_unit(u + 4)
        for s in range(4):
            cc = "0" if (T == 0 and s == 0) else "v[%d:%d]" % (SB + 4 * tg, SB + 4 * tg + 3)
            e("v_mfma_f32_16x16x32_bf16 v[%d:%d], v[%d:%d], v[%d:%d], %s" %
              (SB + 4 * tg, SB + 4 * tg + 3, 32 + 4 * s, 35 + 4 * s, 56 + 16 * T + 4 * s, 59 + 16 * T + 4 * s, cc))
    e("s_nop 7")
    e("s_nop 1")
    for k in range(0, 16, 2):
        rnd_bf16_pair(SB + k, SB + k + 1, 28)
    for k in range(16):
        e("v_mul_f32 v%d, 0x%x, v%d" % (SB + k, SCALE, SB + k))
    for k in range(0, 16, 2):
        rnd_bf16_pair(SB + k, SB + k + 1, 28)
    e("v_max3_f32 v52, v%d, v%d, v%d" % (SB, SB + 1, SB + 2))
    for k in range(3, 15, 2):
        e("v_max3_f32 v52, v52, v%d, v%d" % (SB + k, SB + k + 1))
    e("v_max_f32 v52, v52, v%d" % (SB + 15))
    allred("v_max_f32", 52, 28, [2, 3, 4, 5])
    e("s_mov_b32 s16, 0x%x" % LOG2E)
    for k in range(16):
        e("v_sub_f32 v%d, v%d, v52" % (SB + k, SB + k))
    for k in range(16):
        e("v_mul_f32 v%d, s16, v%d" % (SB + k, SB + k))
    for k in range(16):
        e("v_exp_f32 v%d, v%d" % (SB + k, SB + k))
    e("s_nop 0")
    e("v_add_f32 v53, v%d, v%d" % (SB, SB + 1))
    for k in range(2, 16):
        e("v_add_f32 v53, v53, v%d" % (SB + k))
    allred("v_add_f32", 53, 28, [2, 3, 4, 5])
    PB = 112
    for tg in range(4):
        e("v_cvt_pk_bf16_f32 v%d, v%d, v%d" % (PB + 2 * tg, SB + 4 * tg, SB + 4 * tg + 1))
        e("v_cvt_pk_bf16_f32 v%d, v%d, v%d" % (PB + 2 * tg + 1, SB + 4 * tg + 2, SB + 4 * tg + 3))
    for uv in range(16):
        u = 16 + uv
        tg, T = uv // 4, uv % 4
        rem = min(u + 3, 31) - u
        e("s_waitcnt vmcnt(%d)" % (4 * rem))
        for D in range(8):
            e("ds_read_b64_tr_b16 v[%d:%d], v%d offset:%d" % (32 + 2 * D, 33 + 2 * D, 12 + D, (u % 4) * 4096))
        pa = 48 + 2 * (uv & 1)
        if T == 0:
            e("v_mov_b32 v%d, v%d" % (pa, PB + 2 * tg))
            e("v_mov_b32 v%d, v%d" % (pa + 1, PB + 2 * tg + 1))
        else:
            e("v_mov_b32_dpp v%d, v%d row_shl:%d row_mask:0xf bank_mask:0xf" % (pa, PB + 2 * tg, 4 * T))
            e("v_mov_b32_dpp v%d, v%d row_shl:%d row_mask:0xf bank_mask:0xf" % (pa + 1, PB + 2 * tg + 1, 4 * T))
        e("s_waitcnt lgkmcnt(0)")
        if u + 4 < 32:
            dma_unit(u + 4)
        else:
            e("s_nop 1")
        for D in range(8):
            cc = "0" if uv == 0 else "v[%d:%d]" % (56 + 4 * D, 59 + 4 * D)
            e("v_mfma_f32_16x16x16_bf16 v[%d:%d], v[%d:%d], v[%d:%d], %s" %
              (56 + 4 * D, 59 + 4 * D, pa, pa + 1, 32 + 2 * D, 33 + 2 * D, cc))
    stamp(3)
    e("s_nop 7")
    e("s_nop 1")
    e("v_lshlrev_b32 v28, 2, v0")
    e("v_add_u32 v28, s15, v28")
    e("s_mov_b64 exec, 0xffff")
    for D in range(8):
        for h in range(4):
            e("ds_write_b32 v28, v%d offset:%d" % (56 + 4 * D + h, h * 512 + D * 64))
    e("s_mov_b64 exec, 0xf")
    e("v_lshlrev_b32 v28, 3, v0")
    e("v_add_u32 v28, s15, v28")
    e("ds_write_b64 v28, v[52:53] offset:2048")
    e("s_mov_b64 exec, -1")
    e("s_waitcnt lgkmcnt(0)")
    e("s_barrier")
    e("s_endpgm")

def poll(label, vaddr, vtmp):
    e("s_mov_b32 s16, 0")
    lab(label)
    e("buffer_load_dwordx2 v[%d:%d], v%d, %s, 0 offen sc1" % (vtmp, vtmp + 1, vaddr, srd(SRD_WS)))
    e("s_waitcnt vmcnt(0)")
    e("v_cmp_ne_u64 vcc, s[94:95], v[%d:%d]" % (vtmp, vtmp + 1))
    e("s_nop 1")
    e("s_cbranch_vccz %s_done" % label)
    e("s_add_u32 s16, s16, 1")
    e("s_cmp_ge_u32 s16, 0x40000")
    e("s_cbranch_scc1 %s_done" % label)
    e("s_sleep %d" % SLEEP)
    e("s_branch %s" % label)
    lab(label + "_done")

def set_flag(ph):
    e("s_waitcnt vmcnt(0)")
    e("v_mov_b32 v2, s94")
    e("v_mov_b32 v3, s95")
    e("s_lshl_b32 s17, s17, 3")
    e("s_add_u32 s17, s17, %d" % (FLG + ph * 2048))
    e("v_mov_b32 v1, s17")
    e("s_mov_b64 exec, 1")
    e("buffer_store_dwordx2 v[2:3], v1, %s, 0 offen sc1" % srd(SRD_WS))
    e("s_mov_b64 exec, -1")

def gemv_rows(nrows, wbase, xbase, acc):
    for j in range(8):
        e("v_mov_b32 v%d, 0" % (acc + j))
    for i in range(nrows):
        for j in range(4):
            e("v_lshlrev_b32 v4, 16, v%d" % (wbase + 4 * i + j))
            e("v_and_b32 v5, 0xffff0000, v%d" % (wbase + 4 * i + j))
            e("v_fmac_f32 v%d, v%d, v4" % (acc + 2 * j, xbase + i))
            e("v_fmac_f32 v%d, v%d, v5" % (acc + 2 * j + 1, xbase + i))
    for j in range(8):
        allred("v_add_f32", acc + j, 4, [3, 4, 5])

def service():
    lab("L_service")
    ROLE[0] = "s"
    c("================= service wave =================")
    stamp(0)
    e("v_lshrrev_b32 v24, 3, v0")
    e("v_and_b32 v25, 7, v0")
    e("v_mov_b32 v1, 0")
    e("s_cmp_lg_u32 s2, 0")
    e("s_cbranch_scc1 L_nonce_wait")
    e("s_memrealtime s[94:95]")
    e("s_waitcnt lgkmcnt(0)")
    e("s_or_b32 s94, s94, 1")
    e("v_mov_b32 v2, s94")
    e("v_mov_b32 v3, s95")
    e("s_mov_b64 exec, 1")
    e("buffer_store_dwordx2 v[2:3], v1, %s, 0 offen sc1" % srd(SRD_DBG))
    e("s_mov_b64 exec, -1")
    lab("L_nonce_wait")
    e("s_mov_b32 s16, 0")
    lab("L_nonce_loop")
    e("buffer_load_dwordx2 v[2:3], v1, %s, 0 offen sc1" % srd(SRD_DBG))
    e("s_waitcnt vmcnt(0)")
    e("v_readfirstlane_b32 s94, v2")
    e("v_readfirstlane_b32 s95, v3")
    e("s_nop 3")
    e("s_and_b32 s17, s94, 1")
    e("s_cmp_lg_u32 s17, 0")
    e("s_cbranch_scc1 L_nonce_done")
    e("s_add_u32 s16, s16, 1")
    e("s_cmp_ge_u32 s16, 0x40000")
    e("s_cbranch_scc1 L_nonce_done")
    e("s_sleep 4")
    e("s_branch L_nonce_loop")
    lab("L_nonce_done")
    e("s_barrier")
    stamp(1)
    e("v_lshlrev_b32 v6, 2, v0")
    for mat in range(2):
        for sl in range(32):
            e("ds_read_b32 v%d, v6 offset:%d" % (32 + 32 * mat + sl, RS + mat * 8192 + sl * 256))
        e("s_waitcnt lgkmcnt(0)")
    for mat in range(2):
        b = 32 + 32 * mat
        for st in (16, 8, 4, 2, 1):
            for k in range(st):
                e("v_add_f32 v%d, v%d, v%d" % (b + k, b + k, b + k + st))
    e("s_lshr_b32 s16, s5, 3")
    e("s_lshl_b32 s16, s16, 14")
    e("s_lshl_b32 s17, s4, 11")
    e("s_add_u32 s16, s16, s17")
    e("s_and_b32 s17, s5, 7")
    e("s_lshl_b32 s17, s17, 8")
    e("s_add_u32 s16, s16, s17")
    e("s_add_u32 s16, s16, %d" % QP)
    e("buffer_store_dword v32, v6, %s, s16 offen sc1" % srd(SRD_WS))
    e("s_mul_i32 s16, s9, %d" % (4 * 1792 * 4))
    e("s_mul_i32 s17, s11, %d" % (1792 * 4))
    e("s_add_u32 s16, s16, s17")
    e("s_lshl_b32 s17, s12, 8")
    e("s_add_u32 s16, s16, s17")
    e("s_add_u32 s16, s16, %d" % GU)
    e("buffer_store_dword v64, v6, %s, s16 offen sc1" % srd(SRD_WS))
    e("s_mov_b32 s17, s2")
    set_flag(0)
    stamp(2)
    e("v_and_b32 v8, 31, v0")
    e("s_lshl_b32 s16, s4, 5")
    e("v_add_u32 v8, s16, v8")
    e("v_lshlrev_b32 v8, 3, v8")
    e("v_add_u32 v8, %d, v8" % FLG)
    poll("L_poll_q", 8, 10)
    stamp(3)
    e("v_lshlrev_b32 v6, 5, v0")
    e("s_lshl_b32 s16, s4, 11")
    e("s_add_u32 s16, s16, %d" % QP)
    for kq in range(4):
        e("s_add_u32 s17, s16, %d" % (kq * 16384))
        e("buffer_load_dwordx4 v[%d:%d], v6, %s, s17 offen sc1" % (32 + 8 * kq, 35 + 8 * kq, srd(SRD_WS)))
        e("buffer_load_dwordx4 v[%d:%d], v6, %s, s17 offen offset:16 sc1" % (36 + 8 * kq, 39 + 8 * kq, srd(SRD_WS)))
    e("s_waitcnt vmcnt(0)")
    for kq in range(1, 4):
        for j in range(8):
            e("v_add_f32 v%d, v%d, v%d" % (32 + j, 32 + j, 32 + 8 * kq + j))
    for j in range(4):
        e("v_cvt_pk_bf16_f32 v%d, v%d, v%d" % (40 + j, 32 + 2 * j, 33 + 2 * j))
    e("v_lshlrev_b32 v6, 4, v0")
    e("ds_write_b128 v6, v[40:43] offset:%d" % QL)
    e("s_waitcnt lgkmcnt(0)")
    e("s_barrier")
    stamp(4)
    for k in range(4):
        e("v_lshlrev_b32 v8, 3, v0")
        e("v_add_u32 v8, %d, v8" % (FLG + 512 * k))
        poll("L_poll_b%d" % k, 8, 10)
    e("v_lshlrev_b32 v7, 10, v24")
    e("v_lshl_add_u32 v7, v25, 4, v7")
    e("s_mul_i32 s16, s6, %d" % (56 * 1024))
    e("s_lshl_b32 s17, s7, 7")
    e("s_add_u32 s16, s16, s17")
    for i in range(7):
        e("s_add_u32 s17, s16, %d" % (i * 8192))
        e("buffer_load_dwordx4 v[%d:%d], v7, %s, s17 offen" % (64 + 4 * i, 67 + 4 * i, srd(SRD_W2)))
    e("v_min_u32 v6, 55, v0")
    e("s_mul_i32 s16, s6, 56")
    e("v_add_u32 v6, s16, v6")
    e("v_lshlrev_b32 v6, 2, v6")
    for m in range(2):
        for kq in range(4):
            e("s_mov_b32 s17, %d" % (GU + (m * 4 + kq) * 1792 * 4))
            e("buffer_load_dword v%d, v6, %s, s17 offen sc1" % (32 + 4 * m + kq, srd(SRD_WS)))
    e("s_waitcnt vmcnt(0)")
    for m in range(2):
        for kq in range(1, 4):
            e("v_add_f32 v%d, v%d, v%d" % (32 + 4 * m, 32 + 4 * m, 32 + 4 * m + kq))
    rnd_bf16_pair(32, 36, 4)
    e("v_mul_f32 v33, 0x%x, v32" % (LOG2E | 0x80000000))
    e("v_exp_f32 v33, v33")
    e("s_nop 0")
    e("v_add_f32 v33, 1.0, v33")
    e("v_rcp_f32 v34, v33")
    e("s_nop 0")
    e("v_mul_f32 v35, v32, v34")
    rnd_bf16(35, 4)
    e("v_mul_f32 v35, v35, v36")
    rnd_bf16(35, 4)
    e("v_lshlrev_b32 v6, 2, v0")
    e("ds_write_b32 v6, v35 offset:%d" % HL)
    e("v_lshlrev_b32 v6, 2, v24")
    e("s_waitcnt lgkmcnt(0)")
    for i in range(7):
        e("ds_read_b32 v%d, v6 offset:%d" % (32 + i, HL + 32 * i))
    e("s_waitcnt lgkmcnt(0)")
    gemv_rows(7, 64, 32, 40)
    e("s_lshl_b32 s16, s7, 13")
    e("s_lshl_b32 s17, s6, 8")
    e("s_add_u32 s16, s16, s17")
    e("s_add_u32 s16, s16, %d" % YB)
    e("v_lshlrev_b32 v6, 5, v0")
    e("s_mov_b64 exec, 0xff")
    e("buffer_store_dwordx4 v[40:43], v6, %s, s16 offen sc1" % srd(SRD_WS))
    e("buffer_store_dwordx4 v[44:47], v6, %s, s16 offen offset:16 sc1" % srd(SRD_WS))
    e("s_mov_b64 exec, -1")
    e("s_lshl_b32 s16, s6, 17")
    e("s_lshl_b32 s17, s7, 7")
    e("s_add_u32 s16, s16, s17")
    for i in range(16):
        e("s_add_u32 s17, s16, %d" % (i * 8192))
        e("buffer_load_dwordx4 v[%d:%d], v7, %s, s17 offen" % (64 + 4 * i, 67 + 4 * i, srd(SRD_WO)))
    stamp(5)
    e("s_barrier")
    stamp(6)
    e("v_and_b32 v6, 31, v0")
    e("v_lshrrev_b32 v8, 2, v6")
    e("v_lshlrev_b32 v8, 14, v8")
    e("v_and_b32 v10, 3, v0")
    e("v_lshl_add_u32 v8, v10, 3, v8")
    e("ds_read_b64 v[12:13], v8 offset:%d" % (RINGB + 2048))
    e("s_waitcnt lgkmcnt(0)")
    e("v_mov_b32 v14, v12")
    allred("v_max_f32", 14, 4, [2, 3, 4])
    e("v_sub_f32 v15, v12, v14")
    e("v_mul_f32 v15, 0x%x, v15" % LOG2E)
    e("v_exp_f32 v15, v15")
    e("s_nop 0")
    e("v_mul_f32 v16, v15, v13")
    allred("v_add_f32", 16, 4, [2, 3, 4])
    e("v_lshlrev_b32 v8, 2, v6")
    e("ds_write_b32 v8, v15 offset:%d" % SC)
    e("v_mov_b32 v17, v16")
    e("v_mov_b32 v16, v14")
    e("v_lshrrev_b32 v8, 4, v0")
    e("v_and_b32 v10, 15, v0")
    e("v_lshlrev_b32 v18, 9, v8")
    e("v_lshl_add_u32 v18, v10, 5, v18")
    e("v_add_u32 v18, %d, v18" % RINGB)
    e("v_add_u32 v11, 0x10000, v18")
    e("v_lshlrev_b32 v19, 2, v8")
    e("s_waitcnt lgkmcnt(0)")
    for wv in range(8):
        e("ds_read_b32 v%d, v19 offset:%d" % (20 + wv, SC + 16 * wv))
    for j in range(8):
        e("v_mov_b32 v%d, 0" % (28 + j))
    for batch in ((0, 1, 2), (3, 4, 5), (6, 7)):
        for k, wv in enumerate(batch):
            off = (wv & 3) * 16384
            ar = 18 if wv < 4 else 11
            e("ds_read_b128 v[%d:%d], v%d offset:%d" % (36 + 8 * k, 39 + 8 * k, ar, off))
            e("ds_read_b128 v[%d:%d], v%d offset:%d" % (40 + 8 * k, 43 + 8 * k, ar, off + 16))
        e("s_waitcnt lgkmcnt(0)")
        for k, wv in enumerate(batch):
            for j in range(8):
                e("v_fmac_f32 v%d, v%d, v%d" % (28 + j, 20 + wv, 36 + 8 * k + j))
    e("v_lshlrev_b32 v18, 14, v8")
    e("v_lshl_add_u32 v18, v10, 5, v18")
    e("s_lshl_b32 s16, s4, 16")
    e("s_lshl_b32 s17, s5, 9")
    e("s_add_u32 s16, s16, s17")
    e("s_add_u32 s16, s16, %d" % AP)
    e("buffer_store_dwordx4 v[28:31], v18, %s, s16 offen sc1" % srd(SRD_WS))
    e("buffer_store_dwordx4 v[32:35], v18, %s, s16 offen offset:16 sc1" % srd(SRD_WS))
    e("v_lshlrev_b32 v18, 8, v0")
    e("s_lshl_b32 s16, s4, 10")
    e("s_lshl_b32 s17, s5, 3")
    e("s_add_u32 s16, s16, s17")
    e("s_add_u32 s16, s16, %d" % ML)
    e("s_mov_b64 exec, 0xf")
    e("buffer_store_dwordx2 v[16:17], v18, %s, s16 offen sc1" % srd(SRD_WS))
    e("s_mov_b64 exec, -1")
    e("s_mov_b32 s17, s2")
    set_flag(1)
    stamp(7)
    e("v_and_b32 v8, 31, v0")
    e("s_lshl_b32 s16, s4, 5")
    e("v_add_u32 v8, s16, v8")
    e("v_lshlrev_b32 v8, 3, v8")
    e("v_add_u32 v8, %d, v8" % (FLG + 2048))
    poll("L_poll_a", 8, 10)
    stamp(8)
    e("v_and_b32 v6, 31, v0")
    e("v_lshlrev_b32 v8, 3, v6")
    e("s_lshl_b32 s16, s6, 8")
    e("s_add_u32 s16, s16, %d" % ML)
    e("buffer_load_dwordx2 v[12:13], v8, %s, s16 offen sc1" % srd(SRD_WS))
    def apreg(i):
        return 128 + 4 * i if i < 10 else 40 + 4 * (i - 10)
    e("v_lshrrev_b32 v10, 5, v0")
    e("v_lshlrev_b32 v8, 9, v10")
    e("v_lshl_add_u32 v8, v6, 4, v8")
    e("s_lshl_b32 s16, s6, 14")
    e("s_add_u32 s16, s16, %d" % AP)
    for i in range(16):
        e("s_add_u32 s17, s16, %d" % (i * 1024))
        e("buffer_load_dwordx4 v[%d:%d], v8, %s, s17 offen sc1" % (apreg(i), apreg(i) + 3, srd(SRD_WS)))
    e("s_waitcnt vmcnt(16)")
    e("v_mov_b32 v14, v12")
    allred("v_max_f32", 14, 4, [0, 1, 2, 3, 4])
    e("v_sub_f32 v15, v12, v14")
    e("v_mul_f32 v15, 0x%x, v15" % LOG2E)
    e("v_exp_f32 v15, v15")
    e("s_nop 0")
    e("v_mul_f32 v16, v15, v13")
    allred("v_add_f32", 16, 4, [0, 1, 2, 3, 4])
    e("v_lshlrev_b32 v8, 2, v6")
    e("ds_write_b32 v8, v15 offset:%d" % WL)
    e("v_lshlrev_b32 v8, 2, v10")
    e("s_waitcnt lgkmcnt(0)")
    for i in range(16):
        e("ds_read_b32 v%d, v8 offset:%d" % (20 + i, WL + 8 * i))
    for j in range(4):
        e("v_mov_b32 v%d, 0" % (36 + j))
    e("s_waitcnt vmcnt(0) lgkmcnt(0)")
    for i in range(16):
        for j in range(4):
            e("v_fmac_f32 v%d, v%d, v%d" % (36 + j, 20 + i, apreg(i) + j))
    for j in range(4):
        allred("v_add_f32", 36 + j, 4, [5])
    e("v_rcp_f32 v17, v16")
    e("s_nop 0")
    for j in range(4):
        e("v_mul_f32 v18, v%d, v17" % (36 + j))
        e("v_fma_f32 v19, -v18, v16, v%d" % (36 + j))
        e("v_fma_f32 v%d, v19, v17, v18" % (36 + j))
    rnd_bf16_pair(36, 37, 4)
    rnd_bf16_pair(38, 39, 4)
    e("v_lshlrev_b32 v8, 4, v6")
    e("ds_write_b128 v8, v[36:39] offset:%d" % OL)
    e("v_lshrrev_b32 v8, 3, v0")
    e("v_lshlrev_b32 v8, 2, v8")
    e("s_waitcnt lgkmcnt(0)")
    for i in range(16):
        e("ds_read_b32 v%d, v8 offset:%d" % (20 + i, OL + 32 * i))
    e("s_waitcnt lgkmcnt(0)")
    gemv_rows(16, 64, 20, 48)
    e("s_lshl_b32 s16, s7, 13")
    e("s_lshl_b32 s17, s6, 8")
    e("s_add_u32 s16, s16, s17")
    e("s_add_u32 s16, s16, %d" % YA)
    e("v_lshlrev_b32 v6, 5, v0")
    e("s_mov_b64 exec, 0xff")
    e("buffer_store_dwordx4 v[48:51], v6, %s, s16 offen sc1" % srd(SRD_WS))
    e("buffer_store_dwordx4 v[52:55], v6, %s, s16 offen offset:16 sc1" % srd(SRD_WS))
    e("s_mov_b64 exec, -1")
    e("s_lshl_b32 s17, s7, 5")
    e("s_add_u32 s17, s17, s6")
    set_flag(2)
    stamp(9)
    e("s_cmp_ge_u32 s2, 8")
    e("s_cbranch_scc1 L_end")
    e("v_and_b32 v6, 15, v0")
    e("v_lshlrev_b32 v8, 3, v6")
    e("s_lshl_b32 s16, s7, 7")
    e("buffer_load_dwordx2 v[20:21], v8, %s, s16 offen" % srd(SRD_X))
    e("v_and_b32 v12, 31, v0")
    e("s_lshl_b32 s16, s7, 5")
    e("v_add_u32 v12, s16, v12")
    e("v_lshlrev_b32 v12, 3, v12")
    e("v_add_u32 v12, %d, v12" % (FLG + 4096))
    poll("L_poll_f", 12, 10)
    stamp(10)
    e("v_lshrrev_b32 v10, 4, v0")
    e("v_lshlrev_b32 v8, 8, v10")
    e("v_lshl_add_u32 v8, v6, 4, v8")
    e("s_lshl_b32 s16, s7, 13")
    for i in range(8):
        e("s_add_u32 s17, s16, %d" % (YA + i * 1024))
        e("buffer_load_dwordx4 v[%d:%d], v8, %s, s17 offen sc1" % (32 + 4 * i, 35 + 4 * i, srd(SRD_WS)))
    for i in range(8):
        e("s_add_u32 s17, s16, %d" % (YB + i * 1024))
        e("buffer_load_dwordx4 v[%d:%d], v8, %s, s17 offen sc1" % (64 + 4 * i, 67 + 4 * i, srd(SRD_WS)))
    e("s_waitcnt vmcnt(0)")
    for b in (32, 64):
        for i in range(1, 8):
            for j in range(4):
                e("v_add_f32 v%d, v%d, v%d" % (b + j, b + j, b + 4 * i + j))
        for j in range(4):
            allred("v_add_f32", b + j, 4, [4, 5])
    rnd_bf16_pair(32, 33, 4)
    rnd_bf16_pair(34, 35, 4)
    rnd_bf16_pair(64, 65, 4)
    rnd_bf16_pair(66, 67, 4)
    e("v_lshlrev_b32 v22, 16, v20")
    e("v_and_b32 v23, 0xffff0000, v20")
    e("v_lshlrev_b32 v24, 16, v21")
    e("v_and_b32 v25, 0xffff0000, v21")
    for j in range(4):
        e("v_add_f32 v%d, v%d, v%d" % (32 + j, 22 + j, 32 + j))
    rnd_bf16_pair(32, 33, 4)
    rnd_bf16_pair(34, 35, 4)
    for j in range(4):
        e("v_add_f32 v%d, v%d, v%d" % (32 + j, 32 + j, 64 + j))
    e("v_cvt_pk_bf16_f32 v36, v32, v33")
    e("v_cvt_pk_bf16_f32 v37, v34, v35")
    e("v_lshlrev_b32 v8, 3, v6")
    e("s_lshl_b32 s16, s7, 7")
    e("s_mov_b64 exec, 0xffff")
    e("buffer_store_dwordx2 v[36:37], v8, %s, s16 offen" % srd(SRD_OUT))
    e("s_mov_b64 exec, -1")
    stamp(11)

gen()
txt = "\n".join(header() + L + footer(168)) + "\n"
open(OUT, "w").write(txt)
print("wrote", OUT, len(txt), "bytes")
```

```python
import sys

NAME = "parallel_sum__gqa_block_cached__glu_gated_swiglu__decode"
OUT = "cdna_kernels/%s.s" % NAME

NT = True
PACE = 3
LAYOUT = "B"
INIT = 8
NREG = 5
SLEEP = 2
FLG = 0x180000
STAMP = False

for a in sys.argv[1:]:
    if a.startswith("nt="): NT = bool(int(a[3:]))
    elif a.startswith("pace="): PACE = int(a[5:])
    elif a.startswith("layout="): LAYOUT = a[7:]
    elif a.startswith("init="): INIT = int(a[5:])
    elif a.startswith("nreg="): NREG = int(a[5:])
    elif a.startswith("sleep="): SLEEP = int(a[6:])
    elif a.startswith("out="): OUT = a[4:]
    elif a.startswith("stamp="): STAMP = bool(int(a[6:]))

L = []
def e(s=""):
    L.append("    " + s if s and not s.endswith(":") else s)
def lab(s):
    L.append(s + ":")
def c(s):
    L.append("    ; " + s)

XN = 0
RS = XN + 2048
QL = RS + 16384
HL = QL + 1024
WL = HL + 256
OL = WL + 128
SC = OL + 512
RINGB = 24576
LDS_TOTAL = RINGB + 8 * 16384

QP = 0
GU = 0x10000
AP = 0x20000
ML = 0xA0000
YA = 0xA2000
YB = 0xB2000
TS = 0x100000

SRD_X, SRD_K, SRD_V, SRD_WQ, SRD_WO, SRD_W13, SRD_W2, SRD_OUT, SRD_DBG, SRD_WS = 40, 44, 48, 52, 56, 60, 64, 68, 72, 76
def srd(n): return "s[%d:%d]" % (n, n + 3)

LOG2E = 0x3fb8aa3b
SCALE = 0x3db504f3
EPS = 0x3727c5ac

def header():
    h = []
    h.append("; @launch grid=(256,1,1) block=(576,1,1) lds=%d" % LDS_TOTAL)
    h.append('.amdgcn_target "amdgcn-amd-amdhsa--gfx950"')
    h.append(".text")
    h.append(".globl %s_kernel" % NAME)
    h.append(".p2align 8")
    h.append(".type %s_kernel,@function" % NAME)
    h.append("%s_kernel:" % NAME)
    return h

def footer(nv):
    f = []
    f.append(".section .rodata,\"a\"")
    f.append(".p2align 6")
    f.append(".amdhsa_kernel %s_kernel" % NAME)
    f.append("  .amdhsa_next_free_vgpr %d" % nv)
    f.append("  .amdhsa_next_free_sgpr 102")
    f.append("  .amdhsa_accum_offset %d" % ((nv + 3) // 4 * 4))
    f.append("  .amdhsa_group_segment_fixed_size 0")
    f.append("  .amdhsa_kernarg_size 96")
    f.append("  .amdhsa_user_sgpr_count 2")
    f.append("  .amdhsa_user_sgpr_kernarg_segment_ptr 1")
    f.append("  .amdhsa_system_sgpr_workgroup_id_x 1")
    f.append(".end_amdhsa_kernel")
    return f

def build_srd(d, p, nbytes):
    e("s_mov_b32 s%d, s%d" % (d, p))
    e("s_mov_b32 s%d, s%d" % (d + 1, p + 1))
    e("s_mov_b32 s%d, 0x%x" % (d + 2, nbytes))
    e("s_mov_b32 s%d, 0x00020000" % (d + 3))

def rnd_bf16_pair(a, b, t):
    e("v_cvt_pk_bf16_f32 v%d, v%d, v%d" % (t, a, b))
    e("v_lshlrev_b32 v%d, 16, v%d" % (a, t))
    e("v_and_b32 v%d, 0xffff0000, v%d" % (b, t))
def rnd_bf16(a, t):
    e("v_cvt_pk_bf16_f32 v%d, v%d, v%d" % (t, a, a))
    e("v_lshlrev_b32 v%d, 16, v%d" % (a, t))

def dpp(op, d, a, b, ctrl):
    e("%s_dpp v%d, v%d, v%d %s row_mask:0xf bank_mask:0xf" % (op, d, a, b, ctrl))

def allred(op, v, t, bits):
    for b in bits:
        if b == 0:
            e("s_nop 1"); dpp(op, v, v, v, "quad_perm:[1,0,3,2]")
        elif b == 1:
            e("s_nop 1"); dpp(op, v, v, v, "quad_perm:[2,3,0,1]")
        elif b == 2:
            e("s_nop 1"); dpp(op, v, v, v, "row_ror:4")
        elif b == 3:
            e("s_nop 1"); dpp(op, v, v, v, "row_ror:8")
        elif b == 4:
            e("v_mov_b32 v%d, v%d" % (t, v)); e("s_nop 1")
            e("v_permlane16_swap_b32 v%d, v%d" % (v, t)); e("s_nop 1")
            e("%s v%d, v%d, v%d" % (op, v, v, t))
        elif b == 5:
            e("v_mov_b32 v%d, v%d" % (t, v)); e("s_nop 1")
            e("v_permlane32_swap_b32 v%d, v%d" % (v, t)); e("s_nop 1")
            e("%s v%d, v%d, v%d" % (op, v, v, t))

stamp_idx = [0]
ROLE = ["w"]
def stamp(slot):
    if not STAMP:
        return
    e("s_memrealtime s[90:91]")
    e("s_waitcnt lgkmcnt(0)")
    a, b, ad = (160, 161, 162) if ROLE[0] == "w" else (2, 3, 1)
    e("v_mov_b32 v%d, s90" % a)
    e("v_mov_b32 v%d, s91" % b)
    e("s_lshl_b32 s92, s2, 4")
    e("s_add_u32 s92, s92, s3")
    e("s_lshl_b32 s92, s92, 7")
    e("s_add_u32 s92, s92, %d" % (TS + slot * 8))
    e("v_mov_b32 v%d, s92" % ad)
    e("buffer_store_dwordx2 v[%d:%d], v%d, %s, 0 offen" % (a, b, ad, srd(SRD_WS)))

def stampS(slot):
    if not STAMP: return
    r = 80 + 2 * (slot - 4)
    e("s_memrealtime s[%d:%d]" % (r, r + 1))
    e("s_waitcnt lgkmcnt(0)")
def stampFlush(slots):
    if not STAMP: return
    for slot in slots:
        r = 80 + 2 * (slot - 4)
        e("v_mov_b32 v160, s%d" % r)
        e("v_mov_b32 v161, s%d" % (r + 1))
        e("s_lshl_b32 s92, s2, 4")
        e("s_add_u32 s92, s92, s3")
        e("s_lshl_b32 s92, s92, 7")
        e("s_add_u32 s92, s92, %d" % (TS + slot * 8))
        e("v_mov_b32 v162, s92")
        e("buffer_store_dwordx2 v[160:161], v162, %s, 0 offen" % srd(SRD_WS))
        e("s_nop 4")

def gen():
    e("s_cmp_ge_u32 s2, 256")
    e("s_cbranch_scc1 L_end")
    e("s_load_dwordx16 s[16:31], s[0:1], 0")
    e("s_load_dwordx8 s[32:39], s[0:1], 64")
    e("v_lshrrev_b32 v1, 6, v0")
    e("v_and_b32 v0, 63, v0")
    e("s_nop 0")
    e("v_readfirstlane_b32 s3, v1")
    e("s_lshr_b32 s4, s2, 5")
    e("s_and_b32 s5, s2, 31")
    e("s_lshr_b32 s6, s2, 3")
    e("s_and_b32 s7, s2, 7")
    e("s_sub_u32 s8, s2, 224")
    e("s_cmp_ge_u32 s2, 224")
    e("s_cselect_b32 s8, s8, s2")
    e("s_cmp_ge_u32 s8, 112")
    e("s_cselect_b32 s9, 1, 0")
    e("s_mul_i32 s10, s9, 112")
    e("s_sub_u32 s10, s8, s10")
    e("s_mov_b32 s11, 0")
    for t in (28, 56, 84):
        e("s_cmp_ge_u32 s10, %d" % t)
        e("s_addc_u32 s11, s11, 0")
    e("s_mul_i32 s12, s11, 28")
    e("s_sub_u32 s12, s10, s12")
    e("s_waitcnt lgkmcnt(0)")
    build_srd(SRD_X, 16, 1024)
    build_srd(SRD_K, 18, 134217728)
    build_srd(SRD_V, 20, 134217728)
    build_srd(SRD_WQ, 22, 4194304)
    build_srd(SRD_WO, 24, 4194304)
    e("s_cmp_eq_u32 s9, 0")
    e("s_cselect_b32 s%d, s28, s30" % SRD_W13)
    e("s_cselect_b32 s%d, s29, s31" % (SRD_W13 + 1))
    e("s_mov_b32 s%d, 0x%x" % (SRD_W13 + 2, 1835008))
    e("s_mov_b32 s%d, 0x00020000" % (SRD_W13 + 3))
    build_srd(SRD_W2, 32, 1835008)
    build_srd(SRD_OUT, 34, 1024)
    build_srd(SRD_DBG, 36, 256)
    build_srd(SRD_WS, 38, 536870912)
    e("s_cmp_eq_u32 s3, 8")
    e("s_cbranch_scc1 L_service")
    worker()
    service()
    lab("L_end")
    e("s_endpgm")

USTRIDE = {"A": 4096, "B": 32768, "C": 1 << 20}
def dma_setup(u):
    isK = u < 16
    uu = u if isK else u - 16
    e("s_add_u32 s20, s14, %d" % (uu * USTRIDE[LAYOUT]))
    e("s_add_u32 m0, s15, %d" % ((u % 4) * 4096))
    e("s_nop 0")
def dma_one(u, j):
    isK = u < 16
    vo = (2 + j) if isK else (6 + (j & 1))
    e("buffer_load_dwordx4 v%d, %s, s20 offen offset:%d%s lds" %
      (vo, srd(SRD_K if isK else SRD_V), j * 1024, " nt" if NT else ""))
def dma_unit(u):
    dma_setup(u)
    for j in range(4):
        dma_one(u, j)

def worker():
    c("================= worker waves (s3 = 0..7) =================")
    stamp(0)
    e("v_lshlrev_b32 v30, 4, v0")
    e("buffer_load_dwordx4 v[32:35], v30, %s, 0 offen" % srd(SRD_X))
    e("v_lshrrev_b32 v24, 3, v0")
    e("v_and_b32 v25, 7, v0")
    e("v_lshlrev_b32 v26, 13, v24")
    e("v_lshl_add_u32 v26, v25, 4, v26")
    e("s_lshr_b32 s16, s5, 3")
    e("s_and_b32 s17, s5, 7")
    e("s_lshl_b32 s18, s16, 7")
    e("s_lshl_b32 s19, s3, 4")
    e("s_add_u32 s18, s18, s19")
    e("s_lshl_b32 s19, s18, 13")
    e("s_lshl_b32 s20, s4, 10")
    e("s_add_u32 s19, s19, s20")
    e("s_lshl_b32 s20, s17, 7")
    e("s_add_u32 s19, s19, s20")
    e("s_add_u32 s20, s19, 65536")
    e("buffer_load_dwordx4 v[36:39], v26, %s, s19 offen" % srd(SRD_WQ))
    e("buffer_load_dwordx4 v[40:43], v26, %s, s20 offen" % srd(SRD_WQ))
    e("s_movk_i32 s21, 3584")
    e("v_mul_lo_u32 v27, v24, s21")
    e("v_lshl_add_u32 v27, v25, 4, v27")
    e("s_lshl_b32 s22, s11, 7")
    e("s_lshl_b32 s23, s3, 4")
    e("s_add_u32 s22, s22, s23")
    e("s_mul_i32 s23, s22, 3584")
    e("s_lshl_b32 s24, s12, 7")
    e("s_add_u32 s23, s23, s24")
    e("s_add_u32 s24, s23, %d" % (8 * 3584))
    e("buffer_load_dwordx4 v[44:47], v27, %s, s23 offen" % srd(SRD_W13))
    e("buffer_load_dwordx4 v[48:51], v27, %s, s24 offen" % srd(SRD_W13))
    if LAYOUT == "A":
        e("s_lshl_b32 s14, s2, 19")
        e("s_lshl_b32 s15, s3, 16")
        e("s_add_u32 s14, s14, s15")
    elif LAYOUT == "B":
        e("s_lshl_b32 s14, s2, 19")
        e("s_lshl_b32 s15, s3, 12")
        e("s_add_u32 s14, s14, s15")
    else:
        e("s_lshl_b32 s14, s4, 24")
        e("s_lshl_b32 s15, s5, 15")
        e("s_add_u32 s14, s14, s15")
        e("s_lshl_b32 s15, s3, 12")
        e("s_add_u32 s14, s14, s15")
    e("s_lshl_b32 s15, s3, 14")
    e("s_add_u32 s15, s15, %d" % RINGB)
    e("v_lshrrev_b32 v20, 4, v0")
    e("v_and_b32 v21, 15, v0")
    e("v_lshlrev_b32 v22, 8, v20")
    e("v_xor_b32 v23, v21, v20")
    for j in range(4):
        e("v_xor_b32 v28, %d, v23" % (4 * j))
        e("v_lshl_add_u32 v%d, v28, 4, v22" % (2 + j))
    e("v_lshlrev_b32 v28, 1, v20")
    e("v_xor_b32 v28, v21, v28")
    e("v_lshl_add_u32 v6, v28, 4, v22")
    e("v_xor_b32 v28, 8, v28")
    e("v_lshl_add_u32 v7, v28, 4, v22")
    for i in range(INIT):
        if i % 4 == 0:
            dma_setup(i // 4)
        dma_one(i // 4, i % 4)
    nd = INIT
    e("v_lshlrev_b32 v29, 8, v21")
    e("v_add_u32 v29, s15, v29")
    for s in range(4):
        e("v_xor_b32 v28, %d, v23" % (4 * s))
        e("v_lshl_add_u32 v%d, v28, 4, v29" % (8 + s))
    e("v_lshrrev_b32 v28, 2, v21")
    e("v_lshl_add_u32 v28, v20, 2, v28")
    e("v_lshlrev_b32 v29, 8, v28")
    e("v_add_u32 v29, s15, v29")
    e("v_and_b32 v28, 7, v28")
    e("v_lshlrev_b32 v28, 1, v28")
    e("v_and_b32 v31, 3, v21")
    e("v_lshrrev_b32 v52, 1, v31")
    e("v_or_b32 v28, v28, v52")
    e("v_and_b32 v31, 1, v31")
    e("v_lshl_add_u32 v29, v31, 3, v29")
    for D in range(8):
        e("v_xor_b32 v52, %d, v28" % (2 * D))
        e("v_lshl_add_u32 v%d, v52, 4, v29" % (12 + D))
    e("s_waitcnt vmcnt(%d)" % (4 + nd))
    stampS(4)
    for j in range(4):
        e("v_lshlrev_b32 v%d, 16, v%d" % (56 + 2 * j, 32 + j))
        e("v_and_b32 v%d, 0xffff0000, v%d" % (57 + 2 * j, 32 + j))
    e("v_add_f32 v64, v56, v57")
    for j in range(2, 8):
        e("v_add_f32 v64, v64, v%d" % (56 + j))
    allred("v_add_f32", 64, 65, [0, 1, 2, 3, 4, 5])
    e("v_mul_f32 v64, 0x3b000000, v64")
    for j in range(8):
        e("v_sub_f32 v%d, v%d, v64" % (66 + j, 56 + j))
    e("v_mul_f32 v74, v66, v66")
    for j in range(1, 8):
        e("v_fmac_f32 v74, v%d, v%d" % (66 + j, 66 + j))
    allred("v_add_f32", 74, 65, [0, 1, 2, 3, 4, 5])
    e("v_mul_f32 v74, 0x3b000000, v74")
    rnd_bf16_pair(64, 74, 65)
    e("v_add_f32 v74, 0x%x, v74" % EPS)
    rnd_bf16(74, 65)
    e("v_sqrt_f32 v74, v74")
    e("s_nop 0")
    rnd_bf16(74, 65)
    e("v_rcp_f32 v75, v74")
    for j in range(8):
        e("v_sub_f32 v%d, v%d, v64" % (56 + j, 56 + j))
    for j in range(0, 8, 2):
        rnd_bf16_pair(56 + j, 57 + j, 65)
    for j in range(8):
        e("v_mul_f32 v%d, v%d, v75" % (66 + j, 56 + j))
    for j in range(8):
        e("v_fma_f32 v%d, -v%d, v74, v%d" % (76 + j, 66 + j, 56 + j))
    for j in range(8):
        e("v_fma_f32 v%d, v%d, v75, v%d" % (56 + j, 76 + j, 66 + j))
    for j in range(0, 8, 2):
        rnd_bf16_pair(56 + j, 57 + j, 65)
    e("v_lshlrev_b32 v65, 5, v0")
    e("ds_write_b128 v65, v[56:59] offset:%d" % XN)
    e("ds_write_b128 v65, v[60:63] offset:%d" % (XN + 16))
    e("v_add_u32 v65, s18, v24")
    e("v_lshlrev_b32 v65, 2, v65")
    e("v_add_u32 v66, s22, v24")
    e("v_lshlrev_b32 v66, 2, v66")
    e("s_waitcnt lgkmcnt(0)")
    e("ds_read_b32 v68, v65 offset:%d" % XN)
    e("ds_read_b32 v69, v65 offset:%d" % (XN + 32))
    e("ds_read_b32 v70, v66 offset:%d" % XN)
    e("ds_read_b32 v71, v66 offset:%d" % (XN + 32))
    for j in range(16):
        e("v_mov_b32 v%d, 0" % (80 + j))
    e("s_waitcnt vmcnt(%d) lgkmcnt(0)" % nd)
    stampS(5)
    for mat in range(2):
        for row in range(2):
            wbase = 36 + 8 * mat + 4 * row
            xr = 68 + 2 * mat + row
            for j in range(4):
                e("v_lshlrev_b32 v72, 16, v%d" % (wbase + j))
                e("v_and_b32 v73, 0xffff0000, v%d" % (wbase + j))
                e("v_fmac_f32 v%d, v%d, v72" % (80 + 8 * mat + 2 * j, xr))
                e("v_fmac_f32 v%d, v%d, v73" % (81 + 8 * mat + 2 * j, xr))
    e("s_nop 1")
    for j in range(16):
        dpp("v_add_f32", 80 + j, 80 + j, 80 + j, "row_ror:8")
    e("s_lshl_b32 s16, s3, 10")
    e("v_lshl_add_u32 v65, v25, 5, v22")
    e("v_add_u32 v65, s16, v65")
    e("ds_write_b128 v65, v[80:83] offset:%d" % RS)
    e("ds_write_b128 v65, v[84:87] offset:%d" % (RS + 16))
    e("ds_write_b128 v65, v[88:91] offset:%d" % (RS + 8192))
    e("ds_write_b128 v65, v[92:95] offset:%d" % (RS + 8192 + 16))
    e("s_waitcnt lgkmcnt(0)")
    stampS(6)
    e("s_barrier")
    stamp(1)
    stampFlush([4, 5, 6])
    for i in range(INIT, 4 * (4 + NREG)):
        u = i // 4
        e("s_waitcnt vmcnt(%d)" % (PACE - 1))
        if i % 4 == 0 and u >= 4:
            pu = u - 4
            for sx in range(4):
                e("ds_read_b128 v[%d:%d], v%d offset:%d" % (32 + 16 * pu + 4 * sx, 35 + 16 * pu + 4 * sx, 8 + sx, (pu % 4) * 4096))
            e("s_waitcnt lgkmcnt(0)")
        if i % 4 == 0 or i == INIT:
            dma_setup(u)
        dma_one(u, i % 4)
    e("s_barrier")
    stamp(2)
    e("v_and_b32 v28, 3, v21")
    e("v_lshlrev_b32 v28, 8, v28")
    e("v_lshl_add_u32 v28, v20, 4, v28")
    for sx in range(4):
        e("ds_read_b128 v[%d:%d], v28 offset:%d" % (112 + 4 * sx, 115 + 4 * sx, QL + 64 * sx))
    e("v_lshrrev_b32 v29, 2, v21")
    for T in range(4):
        e("v_cmp_eq_u32 s[%d:%d], %d, v29" % (24 + 2 * T, 25 + 2 * T, T))
    e("s_waitcnt lgkmcnt(0)")
    SB = 144
    for u in range(16):
        tg, T = u // 4, u % 4
        for k in range(16):
            e("v_cndmask_b32 v%d, 0, v%d, s[%d:%d]" % (128 + k, 112 + k, 24 + 2 * T, 25 + 2 * T))
        if u < NREG:
            kb = 32 + 16 * u
            e("s_nop 1")
        else:
            kb = 32
            e("s_waitcnt vmcnt(12)")
            for sx in range(4):
                e("ds_read_b128 v[%d:%d], v%d offset:%d" % (32 + 4 * sx, 35 + 4 * sx, 8 + sx, (u % 4) * 4096))
            e("s_waitcnt lgkmcnt(0)")
            dma_unit(u + 4)
        for sx in range(4):
            cc = "0" if (T == 0 and sx == 0) else "v[%d:%d]" % (SB + 4 * tg, SB + 4 * tg + 3)
            e("v_mfma_f32_16x16x32_bf16 v[%d:%d], v[%d:%d], v[%d:%d], %s" %
              (SB + 4 * tg, SB + 4 * tg + 3, kb + 4 * sx, kb + 3 + 4 * sx, 128 + 4 * sx, 131 + 4 * sx, cc))
    e("s_nop 7")
    e("s_nop 1")
    for k in range(0, 16, 2):
        rnd_bf16_pair(SB + k, SB + k + 1, 28)
    for k in range(16):
        e("v_mul_f32 v%d, 0x%x, v%d" % (SB + k, SCALE, SB + k))
    for k in range(0, 16, 2):
        rnd_bf16_pair(SB + k, SB + k + 1, 28)
    e("v_max3_f32 v52, v%d, v%d, v%d" % (SB, SB + 1, SB + 2))
    for k in range(3, 15, 2):
        e("v_max3_f32 v52, v52, v%d, v%d" % (SB + k, SB + k + 1))
    e("v_max_f32 v52, v52, v%d" % (SB + 15))
    allred("v_max_f32", 52, 28, [2, 3, 4, 5])
    e("s_mov_b32 s16, 0x%x" % LOG2E)
    for k in range(16):
        e("v_sub_f32 v%d, v%d, v52" % (SB + k, SB + k))
    for k in range(16):
        e("v_mul_f32 v%d, s16, v%d" % (SB + k, SB + k))
    for k in range(16):
        e("v_exp_f32 v%d, v%d" % (SB + k, SB + k))
    e("s_nop 0")
    e("v_add_f32 v53, v%d, v%d" % (SB, SB + 1))
    for k in range(2, 16):
        e("v_add_f32 v53, v53, v%d" % (SB + k))
    allred("v_add_f32", 53, 28, [2, 3, 4, 5])
    PB = 112
    for tg in range(4):
        e("v_cvt_pk_bf16_f32 v%d, v%d, v%d" % (PB + 2 * tg, SB + 4 * tg, SB + 4 * tg + 1))
        e("v_cvt_pk_bf16_f32 v%d, v%d, v%d" % (PB + 2 * tg + 1, SB + 4 * tg + 2, SB + 4 * tg + 3))
    for uv in range(16):
        u = 16 + uv
        tg, T = uv // 4, uv % 4
        rem = min(u + 3, 31) - u
        e("s_waitcnt vmcnt(%d)" % (4 * rem))
        for D in range(8):
            e("ds_read_b64_tr_b16 v[%d:%d], v%d offset:%d" % (32 + 2 * D, 33 + 2 * D, 12 + D, (u % 4) * 4096))
        pa = 48 + 2 * (uv & 1)
        if T == 0:
            e("v_mov_b32 v%d, v%d" % (pa, PB + 2 * tg))
            e("v_mov_b32 v%d, v%d" % (pa + 1, PB + 2 * tg + 1))
        else:
            e("v_mov_b32_dpp v%d, v%d row_shl:%d row_mask:0xf bank_mask:0xf" % (pa, PB + 2 * tg, 4 * T))
            e("v_mov_b32_dpp v%d, v%d row_shl:%d row_mask:0xf bank_mask:0xf" % (pa + 1, PB + 2 * tg + 1, 4 * T))
        e("s_waitcnt lgkmcnt(0)")
        if u + 4 < 32:
            dma_unit(u + 4)
        else:
            e("s_nop 1")
        for D in range(8):
            cc = "0" if uv == 0 else "v[%d:%d]" % (56 + 4 * D, 59 + 4 * D)
            e("v_mfma_f32_16x16x16_bf16 v[%d:%d], v[%d:%d], v[%d:%d], %s" %
              (56 + 4 * D, 59 + 4 * D, pa, pa + 1, 32 + 2 * D, 33 + 2 * D, cc))
    stamp(3)
    e("s_nop 7")
    e("s_nop 1")
    e("v_lshlrev_b32 v28, 2, v0")
    e("v_add_u32 v28, s15, v28")
    e("s_mov_b64 exec, 0xffff")
    for D in range(8):
        for h in range(4):
            e("ds_write_b32 v28, v%d offset:%d" % (56 + 4 * D + h, h * 512 + D * 64))
    e("s_mov_b64 exec, 0xf")
    e("v_lshlrev_b32 v28, 3, v0")
    e("v_add_u32 v28, s15, v28")
    e("ds_write_b64 v28, v[52:53] offset:2048")
    e("s_mov_b64 exec, -1")
    e("s_waitcnt lgkmcnt(0)")
    e("s_barrier")
    e("s_endpgm")

def poll(label, vaddr, vtmp):
    e("s_mov_b32 s16, 0")
    lab(label)
    e("buffer_load_dwordx2 v[%d:%d], v%d, %s, 0 offen sc1" % (vtmp, vtmp + 1, vaddr, srd(SRD_WS)))
    e("s_waitcnt vmcnt(0)")
    e("v_cmp_ne_u64 vcc, s[94:95], v[%d:%d]" % (vtmp, vtmp + 1))
    e("s_nop 1")
    e("s_cbranch_vccz %s_done" % label)
    e("s_add_u32 s16, s16, 1")
    e("s_cmp_ge_u32 s16, 0x40000")
    e("s_cbranch_scc1 %s_done" % label)
    e("s_sleep %d" % SLEEP)
    e("s_branch %s" % label)
    lab(label + "_done")

def set_flag(ph):
    e("s_waitcnt vmcnt(0)")
    e("v_mov_b32 v2, s94")
    e("v_mov_b32 v3, s95")
    e("s_lshl_b32 s17, s17, 3")
    e("s_add_u32 s17, s17, %d" % (FLG + ph * 2048))
    e("v_mov_b32 v1, s17")
    e("s_mov_b64 exec, 1")
    e("buffer_store_dwordx2 v[2:3], v1, %s, 0 offen sc1" % srd(SRD_WS))
    e("s_mov_b64 exec, -1")

def gemv_rows(nrows, wbase, xbase, acc):
    for j in range(8):
        e("v_mov_b32 v%d, 0" % (acc + j))
    for i in range(nrows):
        for j in range(4):
            e("v_lshlrev_b32 v4, 16, v%d" % (wbase + 4 * i + j))
            e("v_and_b32 v5, 0xffff0000, v%d" % (wbase + 4 * i + j))
            e("v_fmac_f32 v%d, v%d, v4" % (acc + 2 * j, xbase + i))
            e("v_fmac_f32 v%d, v%d, v5" % (acc + 2 * j + 1, xbase + i))
    for j in range(8):
        allred("v_add_f32", acc + j, 4, [3, 4, 5])

def service():
    lab("L_service")
    ROLE[0] = "s"
    c("================= service wave =================")
    stamp(0)
    e("v_lshrrev_b32 v24, 3, v0")
    e("v_and_b32 v25, 7, v0")
    e("v_mov_b32 v1, 0")
    e("s_cmp_lg_u32 s2, 0")
    e("s_cbranch_scc1 L_nonce_wait")
    e("s_memrealtime s[94:95]")
    e("s_waitcnt lgkmcnt(0)")
    e("s_or_b32 s94, s94, 1")
    e("v_mov_b32 v2, s94")
    e("v_mov_b32 v3, s95")
    e("s_mov_b64 exec, 1")
    e("buffer_store_dwordx2 v[2:3], v1, %s, 0 offen sc1" % srd(SRD_DBG))
    e("s_mov_b64 exec, -1")
    lab("L_nonce_wait")
    e("s_barrier")
    stamp(1)
    e("v_lshlrev_b32 v6, 2, v0")
    for mat in range(2):
        for sl in range(32):
            e("ds_read_b32 v%d, v6 offset:%d" % (32 + 32 * mat + sl, RS + mat * 8192 + sl * 256))
        e("s_waitcnt lgkmcnt(0)")
    for mat in range(2):
        b = 32 + 32 * mat
        for st in (16, 8, 4, 2, 1):
            for k in range(st):
                e("v_add_f32 v%d, v%d, v%d" % (b + k, b + k, b + k + st))
    e("s_lshr_b32 s16, s5, 3")
    e("s_lshl_b32 s16, s16, 14")
    e("s_lshl_b32 s17, s4, 11")
    e("s_add_u32 s16, s16, s17")
    e("s_and_b32 s17, s5, 7")
    e("s_lshl_b32 s17, s17, 8")
    e("s_add_u32 s16, s16, s17")
    e("s_add_u32 s16, s16, %d" % QP)
    e("buffer_store_dword v32, v6, %s, s16 offen sc1" % srd(SRD_WS))
    e("s_mul_i32 s16, s9, %d" % (4 * 1792 * 4))
    e("s_mul_i32 s17, s11, %d" % (1792 * 4))
    e("s_add_u32 s16, s16, s17")
    e("s_lshl_b32 s17, s12, 8")
    e("s_add_u32 s16, s16, s17")
    e("s_add_u32 s16, s16, %d" % GU)
    e("buffer_store_dword v64, v6, %s, s16 offen sc1" % srd(SRD_WS))
    e("v_mov_b32 v1, 0")
    e("s_mov_b32 s16, 0")
    lab("L_nonce_loop")
    e("buffer_load_dwordx2 v[2:3], v1, %s, 0 offen sc1" % srd(SRD_DBG))
    e("s_waitcnt vmcnt(0)")
    e("v_readfirstlane_b32 s94, v2")
    e("v_readfirstlane_b32 s95, v3")
    e("s_nop 3")
    e("s_and_b32 s17, s94, 1")
    e("s_cmp_lg_u32 s17, 0")
    e("s_cbranch_scc1 L_nonce_done")
    e("s_add_u32 s16, s16, 1")
    e("s_cmp_ge_u32 s16, 0x40000")
    e("s_cbranch_scc1 L_nonce_done")
    e("s_sleep 4")
    e("s_branch L_nonce_loop")
    lab("L_nonce_done")
    stamp(12)
    e("s_mov_b32 s17, s2")
    set_flag(0)
    stamp(2)
    e("v_and_b32 v8, 31, v0")
    e("s_lshl_b32 s16, s4, 5")
    e("v_add_u32 v8, s16, v8")
    e("v_lshlrev_b32 v8, 3, v8")
    e("v_add_u32 v8, %d, v8" % FLG)
    poll("L_poll_q", 8, 10)
    stamp(3)
    e("v_lshlrev_b32 v6, 5, v0")
    e("s_lshl_b32 s16, s4, 11")
    e("s_add_u32 s16, s16, %d" % QP)
    for kq in range(4):
        e("s_add_u32 s17, s16, %d" % (kq * 16384))
        e("buffer_load_dwordx4 v[%d:%d], v6, %s, s17 offen sc1" % (32 + 8 * kq, 35 + 8 * kq, srd(SRD_WS)))
        e("buffer_load_dwordx4 v[%d:%d], v6, %s, s17 offen offset:16 sc1" % (36 + 8 * kq, 39 + 8 * kq, srd(SRD_WS)))
    e("s_waitcnt vmcnt(0)")
    for kq in range(1, 4):
        for j in range(8):
            e("v_add_f32 v%d, v%d, v%d" % (32 + j, 32 + j, 32 + 8 * kq + j))
    for j in range(4):
        e("v_cvt_pk_bf16_f32 v%d, v%d, v%d" % (40 + j, 32 + 2 * j, 33 + 2 * j))
    e("v_lshlrev_b32 v6, 4, v0")
    e("ds_write_b128 v6, v[40:43] offset:%d" % QL)
    e("s_waitcnt lgkmcnt(0)")
    e("s_barrier")
    stamp(4)
    for k in range(4):
        e("v_lshlrev_b32 v8, 3, v0")
        e("v_add_u32 v8, %d, v8" % (FLG + 512 * k))
        poll("L_poll_b%d" % k, 8, 10)
    e("v_lshlrev_b32 v7, 10, v24")
    e("v_lshl_add_u32 v7, v25, 4, v7")
    e("s_mul_i32 s16, s6, %d" % (56 * 1024))
    e("s_lshl_b32 s17, s7, 7")
    e("s_add_u32 s16, s16, s17")
    for i in range(7):
        e("s_add_u32 s17, s16, %d" % (i * 8192))
        e("buffer_load_dwordx4 v[%d:%d], v7, %s, s17 offen" % (64 + 4 * i, 67 + 4 * i, srd(SRD_W2)))
    e("v_min_u32 v6, 55, v0")
    e("s_mul_i32 s16, s6, 56")
    e("v_add_u32 v6, s16, v6")
    e("v_lshlrev_b32 v6, 2, v6")
    for m in range(2):
        for kq in range(4):
            e("s_mov_b32 s17, %d" % (GU + (m * 4 + kq) * 1792 * 4))
            e("buffer_load_dword v%d, v6, %s, s17 offen sc1" % (32 + 4 * m + kq, srd(SRD_WS)))
    e("s_waitcnt vmcnt(0)")
    for m in range(2):
        for kq in range(1, 4):
            e("v_add_f32 v%d, v%d, v%d" % (32 + 4 * m, 32 + 4 * m, 32 + 4 * m + kq))
    rnd_bf16_pair(32, 36, 4)
    e("v_mul_f32 v33, 0x%x, v32" % (LOG2E | 0x80000000))
    e("v_exp_f32 v33, v33")
    e("s_nop 0")
    e("v_add_f32 v33, 1.0, v33")
    e("v_rcp_f32 v34, v33")
    e("s_nop 0")
    e("v_mul_f32 v35, v32, v34")
    rnd_bf16(35, 4)
    e("v_mul_f32 v35, v35, v36")
    rnd_bf16(35, 4)
    e("v_lshlrev_b32 v6, 2, v0")
    e("ds_write_b32 v6, v35 offset:%d" % HL)
    e("v_lshlrev_b32 v6, 2, v24")
    e("s_waitcnt lgkmcnt(0)")
    for i in range(7):
        e("ds_read_b32 v%d, v6 offset:%d" % (32 + i, HL + 32 * i))
    e("s_waitcnt lgkmcnt(0)")
    gemv_rows(7, 64, 32, 40)
    e("s_lshl_b32 s16, s7, 13")
    e("s_lshl_b32 s17, s6, 8")
    e("s_add_u32 s16, s16, s17")
    e("s_add_u32 s16, s16, %d" % YB)
    e("v_lshlrev_b32 v6, 5, v0")
    e("s_mov_b64 exec, 0xff")
    e("buffer_store_dwordx4 v[40:43], v6, %s, s16 offen sc1" % srd(SRD_WS))
    e("buffer_store_dwordx4 v[44:47], v6, %s, s16 offen offset:16 sc1" % srd(SRD_WS))
    e("s_mov_b64 exec, -1")
    e("s_lshl_b32 s16, s6, 17")
    e("s_lshl_b32 s17, s7, 7")
    e("s_add_u32 s16, s16, s17")
    for i in range(16):
        e("s_add_u32 s17, s16, %d" % (i * 8192))
        e("buffer_load_dwordx4 v[%d:%d], v7, %s, s17 offen" % (64 + 4 * i, 67 + 4 * i, srd(SRD_WO)))
    stamp(5)
    e("s_barrier")
    stamp(6)
    e("v_and_b32 v6, 31, v0")
    e("v_lshrrev_b32 v8, 2, v6")
    e("v_lshlrev_b32 v8, 14, v8")
    e("v_and_b32 v10, 3, v0")
    e("v_lshl_add_u32 v8, v10, 3, v8")
    e("ds_read_b64 v[12:13], v8 offset:%d" % (RINGB + 2048))
    e("s_waitcnt lgkmcnt(0)")
    e("v_mov_b32 v14, v12")
    allred("v_max_f32", 14, 4, [2, 3, 4])
    e("v_sub_f32 v15, v12, v14")
    e("v_mul_f32 v15, 0x%x, v15" % LOG2E)
    e("v_exp_f32 v15, v15")
    e("s_nop 0")
    e("v_mul_f32 v16, v15, v13")
    allred("v_add_f32", 16, 4, [2, 3, 4])
    e("v_lshlrev_b32 v8, 2, v6")
    e("ds_write_b32 v8, v15 offset:%d" % SC)
    e("v_mov_b32 v17, v16")
    e("v_mov_b32 v16, v14")
    e("v_lshrrev_b32 v8, 4, v0")
    e("v_and_b32 v10, 15, v0")
    e("v_lshlrev_b32 v18, 9, v8")
    e("v_lshl_add_u32 v18, v10, 5, v18")
    e("v_add_u32 v18, %d, v18" % RINGB)
    e("v_add_u32 v11, 0x10000, v18")
    e("v_lshlrev_b32 v19, 2, v8")
    e("s_waitcnt lgkmcnt(0)")
    for wv in range(8):
        e("ds_read_b32 v%d, v19 offset:%d" % (20 + wv, SC + 16 * wv))
    for j in range(8):
        e("v_mov_b32 v%d, 0" % (28 + j))
    for batch in ((0, 1, 2), (3, 4, 5), (6, 7)):
        for k, wv in enumerate(batch):
            off = (wv & 3) * 16384
            ar = 18 if wv < 4 else 11
            e("ds_read_b128 v[%d:%d], v%d offset:%d" % (36 + 8 * k, 39 + 8 * k, ar, off))
            e("ds_read_b128 v[%d:%d], v%d offset:%d" % (40 + 8 * k, 43 + 8 * k, ar, off + 16))
        e("s_waitcnt lgkmcnt(0)")
        for k, wv in enumerate(batch):
            for j in range(8):
                e("v_fmac_f32 v%d, v%d, v%d" % (28 + j, 20 + wv, 36 + 8 * k + j))
    e("v_lshlrev_b32 v18, 14, v8")
    e("v_lshl_add_u32 v18, v10, 5, v18")
    e("s_lshl_b32 s16, s4, 16")
    e("s_lshl_b32 s17, s5, 9")
    e("s_add_u32 s16, s16, s17")
    e("s_add_u32 s16, s16, %d" % AP)
    e("buffer_store_dwordx4 v[28:31], v18, %s, s16 offen sc1" % srd(SRD_WS))
    e("buffer_store_dwordx4 v[32:35], v18, %s, s16 offen offset:16 sc1" % srd(SRD_WS))
    e("v_lshlrev_b32 v18, 8, v0")
    e("s_lshl_b32 s16, s4, 10")
    e("s_lshl_b32 s17, s5, 3")
    e("s_add_u32 s16, s16, s17")
    e("s_add_u32 s16, s16, %d" % ML)
    e("s_mov_b64 exec, 0xf")
    e("buffer_store_dwordx2 v[16:17], v18, %s, s16 offen sc1" % srd(SRD_WS))
    e("s_mov_b64 exec, -1")
    e("s_mov_b32 s17, s2")
    set_flag(1)
    stamp(7)
    e("v_and_b32 v8, 31, v0")
    e("s_lshl_b32 s16, s4, 5")
    e("v_add_u32 v8, s16, v8")
    e("v_lshlrev_b32 v8, 3, v8")
    e("v_add_u32 v8, %d, v8" % (FLG + 2048))
    poll("L_poll_a", 8, 10)
    stamp(8)
    e("v_and_b32 v6, 31, v0")
    e("v_lshlrev_b32 v8, 3, v6")
    e("s_lshl_b32 s16, s6, 8")
    e("s_add_u32 s16, s16, %d" % ML)
    e("buffer_load_dwordx2 v[12:13], v8, %s, s16 offen sc1" % srd(SRD_WS))
    def apreg(i):
        return 128 + 4 * i if i < 10 else 40 + 4 * (i - 10)
    e("v_lshrrev_b32 v10, 5, v0")
    e("v_lshlrev_b32 v8, 9, v10")
    e("v_lshl_add_u32 v8, v6, 4, v8")
    e("s_lshl_b32 s16, s6, 14")
    e("s_add_u32 s16, s16, %d" % AP)
    for i in range(16):
        e("s_add_u32 s17, s16, %d" % (i * 1024))
        e("buffer_load_dwordx4 v[%d:%d], v8, %s, s17 offen sc1" % (apreg(i), apreg(i) + 3, srd(SRD_WS)))
    e("s_waitcnt vmcnt(16)")
    e("v_mov_b32 v14, v12")
    allred("v_max_f32", 14, 4, [0, 1, 2, 3, 4])
    e("v_sub_f32 v15, v12, v14")
    e("v_mul_f32 v15, 0x%x, v15" % LOG2E)
    e("v_exp_f32 v15, v15")
    e("s_nop 0")
    e("v_mul_f32 v16, v15, v13")
    allred("v_add_f32", 16, 4, [0, 1, 2, 3, 4])
    e("v_lshlrev_b32 v8, 2, v6")
    e("ds_write_b32 v8, v15 offset:%d" % WL)
    e("v_lshlrev_b32 v8, 2, v10")
    e("s_waitcnt lgkmcnt(0)")
    for i in range(16):
        e("ds_read_b32 v%d, v8 offset:%d" % (20 + i, WL + 8 * i))
    for j in range(4):
        e("v_mov_b32 v%d, 0" % (36 + j))
    e("s_waitcnt vmcnt(0) lgkmcnt(0)")
    for i in range(16):
        for j in range(4):
            e("v_fmac_f32 v%d, v%d, v%d" % (36 + j, 20 + i, apreg(i) + j))
    for j in range(4):
        allred("v_add_f32", 36 + j, 4, [5])
    e("v_rcp_f32 v17, v16")
    e("s_nop 0")
    for j in range(4):
        e("v_mul_f32 v18, v%d, v17" % (36 + j))
        e("v_fma_f32 v19, -v18, v16, v%d" % (36 + j))
        e("v_fma_f32 v%d, v19, v17, v18" % (36 + j))
    rnd_bf16_pair(36, 37, 4)
    rnd_bf16_pair(38, 39, 4)
    e("v_lshlrev_b32 v8, 4, v6")
    e("ds_write_b128 v8, v[36:39] offset:%d" % OL)
    e("v_lshrrev_b32 v8, 3, v0")
    e("v_lshlrev_b32 v8, 2, v8")
    e("s_waitcnt lgkmcnt(0)")
    for i in range(16):
        e("ds_read_b32 v%d, v8 offset:%d" % (20 + i, OL + 32 * i))
    e("s_waitcnt lgkmcnt(0)")
    gemv_rows(16, 64, 20, 48)
    e("s_lshl_b32 s16, s7, 13")
    e("s_lshl_b32 s17, s6, 8")
    e("s_add_u32 s16, s16, s17")
    e("s_add_u32 s16, s16, %d" % YA)
    e("v_lshlrev_b32 v6, 5, v0")
    e("s_mov_b64 exec, 0xff")
    e("buffer_store_dwordx4 v[48:51], v6, %s, s16 offen sc1" % srd(SRD_WS))
    e("buffer_store_dwordx4 v[52:55], v6, %s, s16 offen offset:16 sc1" % srd(SRD_WS))
    e("s_mov_b64 exec, -1")
    e("s_lshl_b32 s17, s7, 5")
    e("s_add_u32 s17, s17, s6")
    set_flag(2)
    stamp(9)
    e("s_cmp_ge_u32 s2, 8")
    e("s_cbranch_scc1 L_end")
    e("v_and_b32 v6, 15, v0")
    e("v_lshlrev_b32 v8, 3, v6")
    e("s_lshl_b32 s16, s7, 7")
    e("buffer_load_dwordx2 v[20:21], v8, %s, s16 offen" % srd(SRD_X))
    e("v_and_b32 v12, 31, v0")
    e("s_lshl_b32 s16, s7, 5")
    e("v_add_u32 v12, s16, v12")
    e("v_lshlrev_b32 v12, 3, v12")
    e("v_add_u32 v12, %d, v12" % (FLG + 4096))
    poll("L_poll_f", 12, 10)
    stamp(10)
    e("v_lshrrev_b32 v10, 4, v0")
    e("v_lshlrev_b32 v8, 8, v10")
    e("v_lshl_add_u32 v8, v6, 4, v8")
    e("s_lshl_b32 s16, s7, 13")
    for i in range(8):
        e("s_add_u32 s17, s16, %d" % (YA + i * 1024))
        e("buffer_load_dwordx4 v[%d:%d], v8, %s, s17 offen sc1" % (32 + 4 * i, 35 + 4 * i, srd(SRD_WS)))
    for i in range(8):
        e("s_add_u32 s17, s16, %d" % (YB + i * 1024))
        e("buffer_load_dwordx4 v[%d:%d], v8, %s, s17 offen sc1" % (64 + 4 * i, 67 + 4 * i, srd(SRD_WS)))
    e("s_waitcnt vmcnt(0)")
    for b in (32, 64):
        for i in range(1, 8):
            for j in range(4):
                e("v_add_f32 v%d, v%d, v%d" % (b + j, b + j, b + 4 * i + j))
        for j in range(4):
            allred("v_add_f32", b + j, 4, [4, 5])
    rnd_bf16_pair(32, 33, 4)
    rnd_bf16_pair(34, 35, 4)
    rnd_bf16_pair(64, 65, 4)
    rnd_bf16_pair(66, 67, 4)
    e("v_lshlrev_b32 v22, 16, v20")
    e("v_and_b32 v23, 0xffff0000, v20")
    e("v_lshlrev_b32 v24, 16, v21")
    e("v_and_b32 v25, 0xffff0000, v21")
    for j in range(4):
        e("v_add_f32 v%d, v%d, v%d" % (32 + j, 22 + j, 32 + j))
    rnd_bf16_pair(32, 33, 4)
    rnd_bf16_pair(34, 35, 4)
    for j in range(4):
        e("v_add_f32 v%d, v%d, v%d" % (32 + j, 32 + j, 64 + j))
    e("v_cvt_pk_bf16_f32 v36, v32, v33")
    e("v_cvt_pk_bf16_f32 v37, v34, v35")
    e("v_lshlrev_b32 v8, 3, v6")
    e("s_lshl_b32 s16, s7, 7")
    e("s_mov_b64 exec, 0xffff")
    e("buffer_store_dwordx2 v[36:37], v8, %s, s16 offen" % srd(SRD_OUT))
    e("s_mov_b64 exec, -1")
    stamp(11)

gen()
txt = "\n".join(header() + L + footer(168)) + "\n"
open(OUT, "w").write(txt)
print("wrote", OUT, len(txt), "bytes")
```

```python
import sys

NAME = "parallel_sum__gqa_block_cached__glu_gated_swiglu__decode"
OUT = "cdna_kernels/%s.s" % NAME

NT = True
PACE = 3
LAYOUT = "B"
INIT = 8
NREG = 5
SLEEP = 2
FLG = 0x180000
STAMP = False

for a in sys.argv[1:]:
    if a.startswith("nt="): NT = bool(int(a[3:]))
    elif a.startswith("pace="): PACE = int(a[5:])
    elif a.startswith("layout="): LAYOUT = a[7:]
    elif a.startswith("init="): INIT = int(a[5:])
    elif a.startswith("nreg="): NREG = int(a[5:])
    elif a.startswith("sleep="): SLEEP = int(a[6:])
    elif a.startswith("out="): OUT = a[4:]
    elif a.startswith("stamp="): STAMP = bool(int(a[6:]))

L = []
def e(s=""):
    L.append("    " + s if s and not s.endswith(":") else s)
def lab(s):
    L.append(s + ":")
def c(s):
    L.append("    ; " + s)

XN = 0
RS = XN + 2048
QL = RS + 16384
HL = QL + 1024
WL = HL + 256
OL = WL + 128
SC = OL + 512
RINGB = 24576
LDS_TOTAL = RINGB + 8 * 16384

QP = 0
GU = 0x10000
AP = 0x20000
ML = 0xA0000
YA = 0xA2000
YB = 0xB2000
TS = 0x100000

SRD_X, SRD_K, SRD_V, SRD_WQ, SRD_WO, SRD_W13, SRD_W2, SRD_OUT, SRD_DBG, SRD_WS = 40, 44, 48, 52, 56, 60, 64, 68, 72, 76
def srd(n): return "s[%d:%d]" % (n, n + 3)

LOG2E = 0x3fb8aa3b
SCALE = 0x3db504f3
EPS = 0x3727c5ac

def header():
    h = []
    h.append("; @launch grid=(256,1,1) block=(576,1,1) lds=%d" % LDS_TOTAL)
    h.append('.amdgcn_target "amdgcn-amd-amdhsa--gfx950"')
    h.append(".text")
    h.append(".globl %s_kernel" % NAME)
    h.append(".p2align 8")
    h.append(".type %s_kernel,@function" % NAME)
    h.append("%s_kernel:" % NAME)
    return h

def footer(nv):
    f = []
    f.append(".section .rodata,\"a\"")
    f.append(".p2align 6")
    f.append(".amdhsa_kernel %s_kernel" % NAME)
    f.append("  .amdhsa_next_free_vgpr %d" % nv)
    f.append("  .amdhsa_next_free_sgpr 102")
    f.append("  .amdhsa_accum_offset %d" % ((nv + 3) // 4 * 4))
    f.append("  .amdhsa_group_segment_fixed_size 0")
    f.append("  .amdhsa_kernarg_size 96")
    f.append("  .amdhsa_user_sgpr_count 2")
    f.append("  .amdhsa_user_sgpr_kernarg_segment_ptr 1")
    f.append("  .amdhsa_system_sgpr_workgroup_id_x 1")
    f.append(".end_amdhsa_kernel")
    return f

def build_srd(d, p, nbytes):
    e("s_mov_b32 s%d, s%d" % (d, p))
    e("s_mov_b32 s%d, s%d" % (d + 1, p + 1))
    e("s_mov_b32 s%d, 0x%x" % (d + 2, nbytes))
    e("s_mov_b32 s%d, 0x00020000" % (d + 3))

def rnd_bf16_pair(a, b, t):
    e("v_cvt_pk_bf16_f32 v%d, v%d, v%d" % (t, a, b))
    e("v_lshlrev_b32 v%d, 16, v%d" % (a, t))
    e("v_and_b32 v%d, 0xffff0000, v%d" % (b, t))
def rnd_bf16(a, t):
    e("v_cvt_pk_bf16_f32 v%d, v%d, v%d" % (t, a, a))
    e("v_lshlrev_b32 v%d, 16, v%d" % (a, t))

def dpp(op, d, a, b, ctrl):
    e("%s_dpp v%d, v%d, v%d %s row_mask:0xf bank_mask:0xf" % (op, d, a, b, ctrl))

def allred(op, v, t, bits):
    for b in bits:
        if b == 0:
            e("s_nop 1"); dpp(op, v, v, v, "quad_perm:[1,0,3,2]")
        elif b == 1:
            e("s_nop 1"); dpp(op, v, v, v, "quad_perm:[2,3,0,1]")
        elif b == 2:
            e("s_nop 1"); dpp(op, v, v, v, "row_ror:4")
        elif b == 3:
            e("s_nop 1"); dpp(op, v, v, v, "row_ror:8")
        elif b == 4:
            e("v_mov_b32 v%d, v%d" % (t, v)); e("s_nop 1")
            e("v_permlane16_swap_b32 v%d, v%d" % (v, t)); e("s_nop 1")
            e("%s v%d, v%d, v%d" % (op, v, v, t))
        elif b == 5:
            e("v_mov_b32 v%d, v%d" % (t, v)); e("s_nop 1")
            e("v_permlane32_swap_b32 v%d, v%d" % (v, t)); e("s_nop 1")
            e("%s v%d, v%d, v%d" % (op, v, v, t))

stamp_idx = [0]
ROLE = ["w"]
def stamp(slot):
    if not STAMP:
        return
    e("s_memrealtime s[90:91]")
    e("s_waitcnt lgkmcnt(0)")
    a, b, ad = (160, 161, 162) if ROLE[0] == "w" else (2, 3, 1)
    e("v_mov_b32 v%d, s90" % a)
    e("v_mov_b32 v%d, s91" % b)
    e("s_lshl_b32 s92, s2, 4")
    e("s_add_u32 s92, s92, s3")
    e("s_lshl_b32 s92, s92, 7")
    e("s_add_u32 s92, s92, %d" % (TS + slot * 8))
    e("v_mov_b32 v%d, s92" % ad)
    e("buffer_store_dwordx2 v[%d:%d], v%d, %s, 0 offen" % (a, b, ad, srd(SRD_WS)))

def stampS(slot):
    if not STAMP: return
    r = 80 + 2 * (slot - 4)
    e("s_memrealtime s[%d:%d]" % (r, r + 1))
    e("s_waitcnt lgkmcnt(0)")
def stampFlush(slots):
    if not STAMP: return
    for slot in slots:
        r = 80 + 2 * (slot - 4)
        e("v_mov_b32 v160, s%d" % r)
        e("v_mov_b32 v161, s%d" % (r + 1))
        e("s_lshl_b32 s92, s2, 4")
        e("s_add_u32 s92, s92, s3")
        e("s_lshl_b32 s92, s92, 7")
        e("s_add_u32 s92, s92, %d" % (TS + slot * 8))
        e("v_mov_b32 v162, s92")
        e("buffer_store_dwordx2 v[160:161], v162, %s, 0 offen" % srd(SRD_WS))
        e("s_nop 4")

def gen():
    e("s_cmp_ge_u32 s2, 256")
    e("s_cbranch_scc1 L_end")
    e("s_load_dwordx16 s[16:31], s[0:1], 0")
    e("s_load_dwordx8 s[32:39], s[0:1], 64")
    e("v_lshrrev_b32 v1, 6, v0")
    e("v_and_b32 v0, 63, v0")
    e("s_nop 0")
    e("v_readfirstlane_b32 s3, v1")
    e("s_lshr_b32 s4, s2, 5")
    e("s_and_b32 s5, s2, 31")
    e("s_lshr_b32 s6, s2, 3")
    e("s_and_b32 s7, s2, 7")
    e("s_sub_u32 s8, s2, 224")
    e("s_cmp_ge_u32 s2, 224")
    e("s_cselect_b32 s8, s8, s2")
    e("s_cmp_ge_u32 s8, 112")
    e("s_cselect_b32 s9, 1, 0")
    e("s_mul_i32 s10, s9, 112")
    e("s_sub_u32 s10, s8, s10")
    e("s_mov_b32 s11, 0")
    for t in (28, 56, 84):
        e("s_cmp_ge_u32 s10, %d" % t)
        e("s_addc_u32 s11, s11, 0")
    e("s_mul_i32 s12, s11, 28")
    e("s_sub_u32 s12, s10, s12")
    e("s_waitcnt lgkmcnt(0)")
    build_srd(SRD_X, 16, 1024)
    build_srd(SRD_K, 18, 134217728)
    build_srd(SRD_V, 20, 134217728)
    build_srd(SRD_WQ, 22, 4194304)
    build_srd(SRD_WO, 24, 4194304)
    e("s_cmp_eq_u32 s9, 0")
    e("s_cselect_b32 s%d, s28, s30" % SRD_W13)
    e("s_cselect_b32 s%d, s29, s31" % (SRD_W13 + 1))
    e("s_mov_b32 s%d, 0x%x" % (SRD_W13 + 2, 1835008))
    e("s_mov_b32 s%d, 0x00020000" % (SRD_W13 + 3))
    build_srd(SRD_W2, 32, 1835008)
    build_srd(SRD_OUT, 34, 1024)
    build_srd(SRD_DBG, 36, 256)
    build_srd(SRD_WS, 38, 536870912)
    e("s_cmp_eq_u32 s3, 8")
    e("s_cbranch_scc1 L_service")
    worker()
    service()
    lab("L_end")
    e("s_endpgm")

USTRIDE = {"A": 4096, "B": 32768, "C": 1 << 20}
if LAYOUT.startswith("I"):
    IL = int(LAYOUT[1:])
    USTRIDE[LAYOUT] = IL * 32768
if LAYOUT == "D":
    USTRIDE["D"] = 0
def dma_setup(u):
    isK = u < 16
    uu = u if isK else u - 16
    if LAYOUT == "D":
        e("s_add_u32 s20, s14, %d" % ((uu // 2) * 65536 + (uu % 2) * 4096))
    else:
        e("s_add_u32 s20, s14, %d" % (uu * USTRIDE[LAYOUT]))
    e("s_add_u32 m0, s15, %d" % ((u % 4) * 4096))
    e("s_nop 0")
def dma_one(u, j):
    isK = u < 16
    vo = (2 + j) if isK else (6 + (j & 1))
    e("buffer_load_dwordx4 v%d, %s, s20 offen offset:%d%s lds" %
      (vo, srd(SRD_K if isK else SRD_V), j * 1024, " nt" if NT else ""))
def dma_unit(u):
    dma_setup(u)
    for j in range(4):
        dma_one(u, j)

def worker():
    c("================= worker waves (s3 = 0..7) =================")
    stamp(0)
    e("v_lshlrev_b32 v30, 4, v0")
    e("buffer_load_dwordx4 v[32:35], v30, %s, 0 offen" % srd(SRD_X))
    e("v_lshrrev_b32 v24, 3, v0")
    e("v_and_b32 v25, 7, v0")
    e("v_lshlrev_b32 v26, 13, v24")
    e("v_lshl_add_u32 v26, v25, 4, v26")
    e("s_lshr_b32 s16, s5, 3")
    e("s_and_b32 s17, s5, 7")
    e("s_lshl_b32 s18, s16, 7")
    e("s_lshl_b32 s19, s3, 4")
    e("s_add_u32 s18, s18, s19")
    e("s_lshl_b32 s19, s18, 13")
    e("s_lshl_b32 s20, s4, 10")
    e("s_add_u32 s19, s19, s20")
    e("s_lshl_b32 s20, s17, 7")
    e("s_add_u32 s19, s19, s20")
    e("s_add_u32 s20, s19, 65536")
    e("buffer_load_dwordx4 v[36:39], v26, %s, s19 offen" % srd(SRD_WQ))
    e("buffer_load_dwordx4 v[40:43], v26, %s, s20 offen" % srd(SRD_WQ))
    e("s_movk_i32 s21, 3584")
    e("v_mul_lo_u32 v27, v24, s21")
    e("v_lshl_add_u32 v27, v25, 4, v27")
    e("s_lshl_b32 s22, s11, 7")
    e("s_lshl_b32 s23, s3, 4")
    e("s_add_u32 s22, s22, s23")
    e("s_mul_i32 s23, s22, 3584")
    e("s_lshl_b32 s24, s12, 7")
    e("s_add_u32 s23, s23, s24")
    e("s_add_u32 s24, s23, %d" % (8 * 3584))
    e("buffer_load_dwordx4 v[44:47], v27, %s, s23 offen" % srd(SRD_W13))
    e("buffer_load_dwordx4 v[48:51], v27, %s, s24 offen" % srd(SRD_W13))
    if LAYOUT == "A":
        e("s_lshl_b32 s14, s2, 19")
        e("s_lshl_b32 s15, s3, 16")
        e("s_add_u32 s14, s14, s15")
    elif LAYOUT == "B":
        e("s_lshl_b32 s14, s2, 19")
        e("s_lshl_b32 s15, s3, 12")
        e("s_add_u32 s14, s14, s15")
    elif LAYOUT == "D":
        e("s_lshl_b32 s14, s2, 19")
        e("s_lshl_b32 s15, s3, 13")
        e("s_add_u32 s14, s14, s15")
    elif LAYOUT.startswith("I"):
        import math
        lg = int(math.log2(IL))
        e("s_lshr_b32 s14, s2, %d" % lg)
        e("s_lshl_b32 s14, s14, %d" % (19 + lg))
        e("s_and_b32 s15, s2, %d" % (IL - 1))
        e("s_lshl_b32 s15, s15, 15")
        e("s_add_u32 s14, s14, s15")
        e("s_lshl_b32 s15, s3, 12")
        e("s_add_u32 s14, s14, s15")
    else:
        e("s_lshl_b32 s14, s4, 24")
        e("s_lshl_b32 s15, s5, 15")
        e("s_add_u32 s14, s14, s15")
        e("s_lshl_b32 s15, s3, 12")
        e("s_add_u32 s14, s14, s15")
    e("s_lshl_b32 s15, s3, 14")
    e("s_add_u32 s15, s15, %d" % RINGB)
    e("v_lshrrev_b32 v20, 4, v0")
    e("v_and_b32 v21, 15, v0")
    e("v_lshlrev_b32 v22, 8, v20")
    e("v_xor_b32 v23, v21, v20")
    for j in range(4):
        e("v_xor_b32 v28, %d, v23" % (4 * j))
        e("v_lshl_add_u32 v%d, v28, 4, v22" % (2 + j))
    e("v_lshlrev_b32 v28, 1, v20")
    e("v_xor_b32 v28, v21, v28")
    e("v_lshl_add_u32 v6, v28, 4, v22")
    e("v_xor_b32 v28, 8, v28")
    e("v_lshl_add_u32 v7, v28, 4, v22")
    for i in range(INIT):
        if i % 4 == 0:
            dma_setup(i // 4)
        dma_one(i // 4, i % 4)
    nd = INIT
    e("v_lshlrev_b32 v29, 8, v21")
    e("v_add_u32 v29, s15, v29")
    for s in range(4):
        e("v_xor_b32 v28, %d, v23" % (4 * s))
        e("v_lshl_add_u32 v%d, v28, 4, v29" % (8 + s))
    e("v_lshrrev_b32 v28, 2, v21")
    e("v_lshl_add_u32 v28, v20, 2, v28")
    e("v_lshlrev_b32 v29, 8, v28")
    e("v_add_u32 v29, s15, v29")
    e("v_and_b32 v28, 7, v28")
    e("v_lshlrev_b32 v28, 1, v28")
    e("v_and_b32 v31, 3, v21")
    e("v_lshrrev_b32 v52, 1, v31")
    e("v_or_b32 v28, v28, v52")
    e("v_and_b32 v31, 1, v31")
    e("v_lshl_add_u32 v29, v31, 3, v29")
    for D in range(8):
        e("v_xor_b32 v52, %d, v28" % (2 * D))
        e("v_lshl_add_u32 v%d, v52, 4, v29" % (12 + D))
    e("s_waitcnt vmcnt(%d)" % (4 + nd))
    stampS(4)
    for j in range(4):
        e("v_lshlrev_b32 v%d, 16, v%d" % (56 + 2 * j, 32 + j))
        e("v_and_b32 v%d, 0xffff0000, v%d" % (57 + 2 * j, 32 + j))
    e("v_add_f32 v64, v56, v57")
    for j in range(2, 8):
        e("v_add_f32 v64, v64, v%d" % (56 + j))
    allred("v_add_f32", 64, 65, [0, 1, 2, 3, 4, 5])
    e("v_mul_f32 v64, 0x3b000000, v64")
    for j in range(8):
        e("v_sub_f32 v%d, v%d, v64" % (66 + j, 56 + j))
    e("v_mul_f32 v74, v66, v66")
    for j in range(1, 8):
        e("v_fmac_f32 v74, v%d, v%d" % (66 + j, 66 + j))
    allred("v_add_f32", 74, 65, [0, 1, 2, 3, 4, 5])
    e("v_mul_f32 v74, 0x3b000000, v74")
    rnd_bf16_pair(64, 74, 65)
    e("v_add_f32 v74, 0x%x, v74" % EPS)
    rnd_bf16(74, 65)
    e("v_sqrt_f32 v74, v74")
    e("s_nop 0")
    rnd_bf16(74, 65)
    e("v_rcp_f32 v75, v74")
    for j in range(8):
        e("v_sub_f32 v%d, v%d, v64" % (56 + j, 56 + j))
    for j in range(0, 8, 2):
        rnd_bf16_pair(56 + j, 57 + j, 65)
    for j in range(8):
        e("v_mul_f32 v%d, v%d, v75" % (66 + j, 56 + j))
    for j in range(8):
        e("v_fma_f32 v%d, -v%d, v74, v%d" % (76 + j, 66 + j, 56 + j))
    for j in range(8):
        e("v_fma_f32 v%d, v%d, v75, v%d" % (56 + j, 76 + j, 66 + j))
    for j in range(0, 8, 2):
        rnd_bf16_pair(56 + j, 57 + j, 65)
    e("v_lshlrev_b32 v65, 5, v0")
    e("ds_write_b128 v65, v[56:59] offset:%d" % XN)
    e("ds_write_b128 v65, v[60:63] offset:%d" % (XN + 16))
    e("v_add_u32 v65, s18, v24")
    e("v_lshlrev_b32 v65, 2, v65")
    e("v_add_u32 v66, s22, v24")
    e("v_lshlrev_b32 v66, 2, v66")
    e("s_waitcnt lgkmcnt(0)")
    e("ds_read_b32 v68, v65 offset:%d" % XN)
    e("ds_read_b32 v69, v65 offset:%d" % (XN + 32))
    e("ds_read_b32 v70, v66 offset:%d" % XN)
    e("ds_read_b32 v71, v66 offset:%d" % (XN + 32))
    for j in range(16):
        e("v_mov_b32 v%d, 0" % (80 + j))
    e("s_waitcnt vmcnt(%d) lgkmcnt(0)" % nd)
    stampS(5)
    for mat in range(2):
        for row in range(2):
            wbase = 36 + 8 * mat + 4 * row
            xr = 68 + 2 * mat + row
            for j in range(4):
                e("v_lshlrev_b32 v72, 16, v%d" % (wbase + j))
                e("v_and_b32 v73, 0xffff0000, v%d" % (wbase + j))
                e("v_fmac_f32 v%d, v%d, v72" % (80 + 8 * mat + 2 * j, xr))
                e("v_fmac_f32 v%d, v%d, v73" % (81 + 8 * mat + 2 * j, xr))
    e("s_nop 1")
    for j in range(16):
        dpp("v_add_f32", 80 + j, 80 + j, 80 + j, "row_ror:8")
    e("s_lshl_b32 s16, s3, 10")
    e("v_lshl_add_u32 v65, v25, 5, v22")
    e("v_add_u32 v65, s16, v65")
    e("ds_write_b128 v65, v[80:83] offset:%d" % RS)
    e("ds_write_b128 v65, v[84:87] offset:%d" % (RS + 16))
    e("ds_write_b128 v65, v[88:91] offset:%d" % (RS + 8192))
    e("ds_write_b128 v65, v[92:95] offset:%d" % (RS + 8192 + 16))
    e("s_waitcnt lgkmcnt(0)")
    stampS(6)
    e("s_barrier")
    stamp(1)
    stampFlush([4, 5, 6])
    for i in range(INIT, 4 * (4 + NREG)):
        u = i // 4
        e("s_waitcnt vmcnt(%d)" % (PACE - 1))
        if i % 4 == 0 and u >= 4:
            pu = u - 4
            for sx in range(4):
                e("ds_read_b128 v[%d:%d], v%d offset:%d" % (32 + 16 * pu + 4 * sx, 35 + 16 * pu + 4 * sx, 8 + sx, (pu % 4) * 4096))
            e("s_waitcnt lgkmcnt(0)")
        if i % 4 == 0 or i == INIT:
            dma_setup(u)
        dma_one(u, i % 4)
    e("s_barrier")
    stamp(2)
    e("v_and_b32 v28, 3, v21")
    e("v_lshlrev_b32 v28, 8, v28")
    e("v_lshl_add_u32 v28, v20, 4, v28")
    for sx in range(4):
        e("ds_read_b128 v[%d:%d], v28 offset:%d" % (112 + 4 * sx, 115 + 4 * sx, QL + 64 * sx))
    e("v_lshrrev_b32 v29, 2, v21")
    for T in range(4):
        e("v_cmp_eq_u32 s[%d:%d], %d, v29" % (24 + 2 * T, 25 + 2 * T, T))
    e("s_waitcnt lgkmcnt(0)")
    SB = 144
    for u in range(16):
        tg, T = u // 4, u % 4
        for k in range(16):
            e("v_cndmask_b32 v%d, 0, v%d, s[%d:%d]" % (128 + k, 112 + k, 24 + 2 * T, 25 + 2 * T))
        if u < NREG:
            kb = 32 + 16 * u
            e("s_nop 1")
        else:
            kb = 32
            e("s_waitcnt vmcnt(12)")
            for sx in range(4):
                e("ds_read_b128 v[%d:%d], v%d offset:%d" % (32 + 4 * sx, 35 + 4 * sx, 8 + sx, (u % 4) * 4096))
            e("s_waitcnt lgkmcnt(0)")
            dma_unit(u + 4)
        for sx in range(4):
            cc = "0" if (T == 0 and sx == 0) else "v[%d:%d]" % (SB + 4 * tg, SB + 4 * tg + 3)
            e("v_mfma_f32_16x16x32_bf16 v[%d:%d], v[%d:%d], v[%d:%d], %s" %
              (SB + 4 * tg, SB + 4 * tg + 3, kb + 4 * sx, kb + 3 + 4 * sx, 128 + 4 * sx, 131 + 4 * sx, cc))
    e("s_nop 7")
    e("s_nop 1")
    for k in range(0, 16, 2):
        rnd_bf16_pair(SB + k, SB + k + 1, 28)
    for k in range(16):
        e("v_mul_f32 v%d, 0x%x, v%d" % (SB + k, SCALE, SB + k))
    for k in range(0, 16, 2):
        rnd_bf16_pair(SB + k, SB + k + 1, 28)
    e("v_max3_f32 v52, v%d, v%d, v%d" % (SB, SB + 1, SB + 2))
    for k in range(3, 15, 2):
        e("v_max3_f32 v52, v52, v%d, v%d" % (SB + k, SB + k + 1))
    e("v_max_f32 v52, v52, v%d" % (SB + 15))
    allred("v_max_f32", 52, 28, [2, 3, 4, 5])
    e("s_mov_b32 s16, 0x%x" % LOG2E)
    for k in range(16):
        e("v_sub_f32 v%d, v%d, v52" % (SB + k, SB + k))
    for k in range(16):
        e("v_mul_f32 v%d, s16, v%d" % (SB + k, SB + k))
    for k in range(16):
        e("v_exp_f32 v%d, v%d" % (SB + k, SB + k))
    e("s_nop 0")
    e("v_add_f32 v53, v%d, v%d" % (SB, SB + 1))
    for k in range(2, 16):
        e("v_add_f32 v53, v53, v%d" % (SB + k))
    allred("v_add_f32", 53, 28, [2, 3, 4, 5])
    PB = 112
    for tg in range(4):
        e("v_cvt_pk_bf16_f32 v%d, v%d, v%d" % (PB + 2 * tg, SB + 4 * tg, SB + 4 * tg + 1))
        e("v_cvt_pk_bf16_f32 v%d, v%d, v%d" % (PB + 2 * tg + 1, SB + 4 * tg + 2, SB + 4 * tg + 3))
    for uv in range(16):
        u = 16 + uv
        tg, T = uv // 4, uv % 4
        rem = min(u + 3, 31) - u
        e("s_waitcnt vmcnt(%d)" % (4 * rem))
        for D in range(8):
            e("ds_read_b64_tr_b16 v[%d:%d], v%d offset:%d" % (32 + 2 * D, 33 + 2 * D, 12 + D, (u % 4) * 4096))
        pa = 48 + 2 * (uv & 1)
        if T == 0:
            e("v_mov_b32 v%d, v%d" % (pa, PB + 2 * tg))
            e("v_mov_b32 v%d, v%d" % (pa + 1, PB + 2 * tg + 1))
        else:
            e("v_mov_b32_dpp v%d, v%d row_shl:%d row_mask:0xf bank_mask:0xf" % (pa, PB + 2 * tg, 4 * T))
            e("v_mov_b32_dpp v%d, v%d row_shl:%d row_mask:0xf bank_mask:0xf" % (pa + 1, PB + 2 * tg + 1, 4 * T))
        e("s_waitcnt lgkmcnt(0)")
        if u + 4 < 32:
            dma_unit(u + 4)
        else:
            e("s_nop 1")
        for D in range(8):
            cc = "0" if uv == 0 else "v[%d:%d]" % (56 + 4 * D, 59 + 4 * D)
            e("v_mfma_f32_16x16x16_bf16 v[%d:%d], v[%d:%d], v[%d:%d], %s" %
              (56 + 4 * D, 59 + 4 * D, pa, pa + 1, 32 + 2 * D, 33 + 2 * D, cc))
    stamp(3)
    e("s_nop 7")
    e("s_nop 1")
    e("v_lshlrev_b32 v28, 2, v0")
    e("v_add_u32 v28, s15, v28")
    e("s_mov_b64 exec, 0xffff")
    for D in range(8):
        for h in range(4):
            e("ds_write_b32 v28, v%d offset:%d" % (56 + 4 * D + h, h * 512 + D * 64))
    e("s_mov_b64 exec, 0xf")
    e("v_lshlrev_b32 v28, 3, v0")
    e("v_add_u32 v28, s15, v28")
    e("ds_write_b64 v28, v[52:53] offset:2048")
    e("s_mov_b64 exec, -1")
    e("s_waitcnt lgkmcnt(0)")
    e("s_barrier")
    e("s_endpgm")

def poll(label, vaddr, vtmp):
    e("s_mov_b32 s16, 0")
    lab(label)
    e("buffer_load_dwordx2 v[%d:%d], v%d, %s, 0 offen sc1" % (vtmp, vtmp + 1, vaddr, srd(SRD_WS)))
    e("s_waitcnt vmcnt(0)")
    e("v_cmp_ne_u64 vcc, s[94:95], v[%d:%d]" % (vtmp, vtmp + 1))
    e("s_nop 1")
    e("s_cbranch_vccz %s_done" % label)
    e("s_add_u32 s16, s16, 1")
    e("s_cmp_ge_u32 s16, 0x40000")
    e("s_cbranch_scc1 %s_done" % label)
    e("s_sleep %d" % SLEEP)
    e("s_branch %s" % label)
    lab(label + "_done")

def set_flag(ph):
    e("s_waitcnt vmcnt(0)")
    e("v_mov_b32 v2, s94")
    e("v_mov_b32 v3, s95")
    e("s_lshl_b32 s17, s17, 3")
    e("s_add_u32 s17, s17, %d" % (FLG + ph * 2048))
    e("v_mov_b32 v1, s17")
    e("s_mov_b64 exec, 1")
    e("buffer_store_dwordx2 v[2:3], v1, %s, 0 offen sc1" % srd(SRD_WS))
    e("s_mov_b64 exec, -1")

def gemv_rows(nrows, wbase, xbase, acc):
    for j in range(8):
        e("v_mov_b32 v%d, 0" % (acc + j))
    for i in range(nrows):
        for j in range(4):
            e("v_lshlrev_b32 v4, 16, v%d" % (wbase + 4 * i + j))
            e("v_and_b32 v5, 0xffff0000, v%d" % (wbase + 4 * i + j))
            e("v_fmac_f32 v%d, v%d, v4" % (acc + 2 * j, xbase + i))
            e("v_fmac_f32 v%d, v%d, v5" % (acc + 2 * j + 1, xbase + i))
    for j in range(8):
        allred("v_add_f32", acc + j, 4, [3, 4, 5])

def service():
    lab("L_service")
    ROLE[0] = "s"
    c("================= service wave =================")
    stamp(0)
    e("v_lshrrev_b32 v24, 3, v0")
    e("v_and_b32 v25, 7, v0")
    e("v_mov_b32 v1, 0")
    e("s_cmp_lg_u32 s2, 0")
    e("s_cbranch_scc1 L_nonce_wait")
    e("s_memrealtime s[94:95]")
    e("s_waitcnt lgkmcnt(0)")
    e("s_or_b32 s94, s94, 1")
    e("v_mov_b32 v2, s94")
    e("v_mov_b32 v3, s95")
    e("s_mov_b64 exec, 1")
    e("buffer_store_dwordx2 v[2:3], v1, %s, 0 offen sc1" % srd(SRD_DBG))
    e("s_mov_b64 exec, -1")
    lab("L_nonce_wait")
    e("s_barrier")
    stamp(1)
    e("v_lshlrev_b32 v6, 2, v0")
    for mat in range(2):
        for sl in range(32):
            e("ds_read_b32 v%d, v6 offset:%d" % (32 + 32 * mat + sl, RS + mat * 8192 + sl * 256))
        e("s_waitcnt lgkmcnt(0)")
    for mat in range(2):
        b = 32 + 32 * mat
        for st in (16, 8, 4, 2, 1):
            for k in range(st):
                e("v_add_f32 v%d, v%d, v%d" % (b + k, b + k, b + k + st))
    e("s_lshr_b32 s16, s5, 3")
    e("s_lshl_b32 s16, s16, 14")
    e("s_lshl_b32 s17, s4, 11")
    e("s_add_u32 s16, s16, s17")
    e("s_and_b32 s17, s5, 7")
    e("s_lshl_b32 s17, s17, 8")
    e("s_add_u32 s16, s16, s17")
    e("s_add_u32 s16, s16, %d" % QP)
    e("buffer_store_dword v32, v6, %s, s16 offen sc1" % srd(SRD_WS))
    e("s_mul_i32 s16, s9, %d" % (4 * 1792 * 4))
    e("s_mul_i32 s17, s11, %d" % (1792 * 4))
    e("s_add_u32 s16, s16, s17")
    e("s_lshl_b32 s17, s12, 8")
    e("s_add_u32 s16, s16, s17")
    e("s_add_u32 s16, s16, %d" % GU)
    e("buffer_store_dword v64, v6, %s, s16 offen sc1" % srd(SRD_WS))
    e("v_mov_b32 v1, 0")
    e("s_mov_b32 s16, 0")
    lab("L_nonce_loop")
    e("buffer_load_dwordx2 v[2:3], v1, %s, 0 offen sc1" % srd(SRD_DBG))
    e("s_waitcnt vmcnt(0)")
    e("v_readfirstlane_b32 s94, v2")
    e("v_readfirstlane_b32 s95, v3")
    e("s_nop 3")
    e("s_and_b32 s17, s94, 1")
    e("s_cmp_lg_u32 s17, 0")
    e("s_cbranch_scc1 L_nonce_done")
    e("s_add_u32 s16, s16, 1")
    e("s_cmp_ge_u32 s16, 0x40000")
    e("s_cbranch_scc1 L_nonce_done")
    e("s_sleep 4")
    e("s_branch L_nonce_loop")
    lab("L_nonce_done")
    stamp(12)
    e("s_mov_b32 s17, s2")
    set_flag(0)
    stamp(2)
    e("v_and_b32 v8, 31, v0")
    e("s_lshl_b32 s16, s4, 5")
    e("v_add_u32 v8, s16, v8")
    e("v_lshlrev_b32 v8, 3, v8")
    e("v_add_u32 v8, %d, v8" % FLG)
    poll("L_poll_q", 8, 10)
    stamp(3)
    e("v_lshlrev_b32 v6, 5, v0")
    e("s_lshl_b32 s16, s4, 11")
    e("s_add_u32 s16, s16, %d" % QP)
    for kq in range(4):
        e("s_add_u32 s17, s16, %d" % (kq * 16384))
        e("buffer_load_dwordx4 v[%d:%d], v6, %s, s17 offen sc1" % (32 + 8 * kq, 35 + 8 * kq, srd(SRD_WS)))
        e("buffer_load_dwordx4 v[%d:%d], v6, %s, s17 offen offset:16 sc1" % (36 + 8 * kq, 39 + 8 * kq, srd(SRD_WS)))
    e("s_waitcnt vmcnt(0)")
    for kq in range(1, 4):
        for j in range(8):
            e("v_add_f32 v%d, v%d, v%d" % (32 + j, 32 + j, 32 + 8 * kq + j))
    for j in range(4):
        e("v_cvt_pk_bf16_f32 v%d, v%d, v%d" % (40 + j, 32 + 2 * j, 33 + 2 * j))
    e("v_lshlrev_b32 v6, 4, v0")
    e("ds_write_b128 v6, v[40:43] offset:%d" % QL)
    e("s_waitcnt lgkmcnt(0)")
    e("s_barrier")
    stamp(4)
    for k in range(4):
        e("v_lshlrev_b32 v8, 3, v0")
        e("v_add_u32 v8, %d, v8" % (FLG + 512 * k))
        poll("L_poll_b%d" % k, 8, 10)
    e("v_lshlrev_b32 v7, 10, v24")
    e("v_lshl_add_u32 v7, v25, 4, v7")
    e("s_mul_i32 s16, s6, %d" % (56 * 1024))
    e("s_lshl_b32 s17, s7, 7")
    e("s_add_u32 s16, s16, s17")
    for i in range(7):
        e("s_add_u32 s17, s16, %d" % (i * 8192))
        e("buffer_load_dwordx4 v[%d:%d], v7, %s, s17 offen" % (64 + 4 * i, 67 + 4 * i, srd(SRD_W2)))
    e("v_min_u32 v6, 55, v0")
    e("s_mul_i32 s16, s6, 56")
    e("v_add_u32 v6, s16, v6")
    e("v_lshlrev_b32 v6, 2, v6")
    for m in range(2):
        for kq in range(4):
            e("s_mov_b32 s17, %d" % (GU + (m * 4 + kq) * 1792 * 4))
            e("buffer_load_dword v%d, v6, %s, s17 offen sc1" % (32 + 4 * m + kq, srd(SRD_WS)))
    e("s_waitcnt vmcnt(0)")
    for m in range(2):
        for kq in range(1, 4):
            e("v_add_f32 v%d, v%d, v%d" % (32 + 4 * m, 32 + 4 * m, 32 + 4 * m + kq))
    rnd_bf16_pair(32, 36, 4)
    e("v_mul_f32 v33, 0x%x, v32" % (LOG2E | 0x80000000))
    e("v_exp_f32 v33, v33")
    e("s_nop 0")
    e("v_add_f32 v33, 1.0, v33")
    e("v_rcp_f32 v34, v33")
    e("s_nop 0")
    e("v_mul_f32 v35, v32, v34")
    rnd_bf16(35, 4)
    e("v_mul_f32 v35, v35, v36")
    rnd_bf16(35, 4)
    e("v_lshlrev_b32 v6, 2, v0")
    e("ds_write_b32 v6, v35 offset:%d" % HL)
    e("v_lshlrev_b32 v6, 2, v24")
    e("s_waitcnt lgkmcnt(0)")
    for i in range(7):
        e("ds_read_b32 v%d, v6 offset:%d" % (32 + i, HL + 32 * i))
    e("s_waitcnt lgkmcnt(0)")
    gemv_rows(7, 64, 32, 40)
    e("s_lshl_b32 s16, s7, 13")
    e("s_lshl_b32 s17, s6, 8")
    e("s_add_u32 s16, s16, s17")
    e("s_add_u32 s16, s16, %d" % YB)
    e("v_lshlrev_b32 v6, 5, v0")
    e("s_mov_b64 exec, 0xff")
    e("buffer_store_dwordx4 v[40:43], v6, %s, s16 offen sc1" % srd(SRD_WS))
    e("buffer_store_dwordx4 v[44:47], v6, %s, s16 offen offset:16 sc1" % srd(SRD_WS))
    e("s_mov_b64 exec, -1")
    e("s_lshl_b32 s16, s6, 17")
    e("s_lshl_b32 s17, s7, 7")
    e("s_add_u32 s16, s16, s17")
    for i in range(16):
        e("s_add_u32 s17, s16, %d" % (i * 8192))
        e("buffer_load_dwordx4 v[%d:%d], v7, %s, s17 offen" % (64 + 4 * i, 67 + 4 * i, srd(SRD_WO)))
    stamp(5)
    e("s_barrier")
    stamp(6)
    e("v_and_b32 v6, 31, v0")
    e("v_lshrrev_b32 v8, 2, v6")
    e("v_lshlrev_b32 v8, 14, v8")
    e("v_and_b32 v10, 3, v0")
    e("v_lshl_add_u32 v8, v10, 3, v8")
    e("ds_read_b64 v[12:13], v8 offset:%d" % (RINGB + 2048))
    e("s_waitcnt lgkmcnt(0)")
    e("v_mov_b32 v14, v12")
    allred("v_max_f32", 14, 4, [2, 3, 4])
    e("v_sub_f32 v15, v12, v14")
    e("v_mul_f32 v15, 0x%x, v15" % LOG2E)
    e("v_exp_f32 v15, v15")
    e("s_nop 0")
    e("v_mul_f32 v16, v15, v13")
    allred("v_add_f32", 16, 4, [2, 3, 4])
    e("v_lshlrev_b32 v8, 2, v6")
    e("ds_write_b32 v8, v15 offset:%d" % SC)
    e("v_mov_b32 v17, v16")
    e("v_mov_b32 v16, v14")
    e("v_lshrrev_b32 v8, 4, v0")
    e("v_and_b32 v10, 15, v0")
    e("v_lshlrev_b32 v18, 9, v8")
    e("v_lshl_add_u32 v18, v10, 5, v18")
    e("v_add_u32 v18, %d, v18" % RINGB)
    e("v_add_u32 v11, 0x10000, v18")
    e("v_lshlrev_b32 v19, 2, v8")
    e("s_waitcnt lgkmcnt(0)")
    for wv in range(8):
        e("ds_read_b32 v%d, v19 offset:%d" % (20 + wv, SC + 16 * wv))
    for j in range(8):
        e("v_mov_b32 v%d, 0" % (28 + j))
    for batch in ((0, 1, 2), (3, 4, 5), (6, 7)):
        for k, wv in enumerate(batch):
            off = (wv & 3) * 16384
            ar = 18 if wv < 4 else 11
            e("ds_read_b128 v[%d:%d], v%d offset:%d" % (36 + 8 * k, 39 + 8 * k, ar, off))
            e("ds_read_b128 v[%d:%d], v%d offset:%d" % (40 + 8 * k, 43 + 8 * k, ar, off + 16))
        e("s_waitcnt lgkmcnt(0)")
        for k, wv in enumerate(batch):
            for j in range(8):
                e("v_fmac_f32 v%d, v%d, v%d" % (28 + j, 20 + wv, 36 + 8 * k + j))
    e("v_lshlrev_b32 v18, 14, v8")
    e("v_lshl_add_u32 v18, v10, 5, v18")
    e("s_lshl_b32 s16, s4, 16")
    e("s_lshl_b32 s17, s5, 9")
    e("s_add_u32 s16, s16, s17")
    e("s_add_u32 s16, s16, %d" % AP)
    e("buffer_store_dwordx4 v[28:31], v18, %s, s16 offen sc1" % srd(SRD_WS))
    e("buffer_store_dwordx4 v[32:35], v18, %s, s16 offen offset:16 sc1" % srd(SRD_WS))
    e("v_lshlrev_b32 v18, 8, v0")
    e("s_lshl_b32 s16, s4, 10")
    e("s_lshl_b32 s17, s5, 3")
    e("s_add_u32 s16, s16, s17")
    e("s_add_u32 s16, s16, %d" % ML)
    e("s_mov_b64 exec, 0xf")
    e("buffer_store_dwordx2 v[16:17], v18, %s, s16 offen sc1" % srd(SRD_WS))
    e("s_mov_b64 exec, -1")
    e("s_mov_b32 s17, s2")
    set_flag(1)
    stamp(7)
    e("v_and_b32 v8, 31, v0")
    e("s_lshl_b32 s16, s4, 5")
    e("v_add_u32 v8, s16, v8")
    e("v_lshlrev_b32 v8, 3, v8")
    e("v_add_u32 v8, %d, v8" % (FLG + 2048))
    poll("L_poll_a", 8, 10)
    stamp(8)
    e("v_and_b32 v6, 31, v0")
    e("v_lshlrev_b32 v8, 3, v6")
    e("s_lshl_b32 s16, s6, 8")
    e("s_add_u32 s16, s16, %d" % ML)
    e("buffer_load_dwordx2 v[12:13], v8, %s, s16 offen sc1" % srd(SRD_WS))
    def apreg(i):
        return 128 + 4 * i if i < 10 else 40 + 4 * (i - 10)
    e("v_lshrrev_b32 v10, 5, v0")
    e("v_lshlrev_b32 v8, 9, v10")
    e("v_lshl_add_u32 v8, v6, 4, v8")
    e("s_lshl_b32 s16, s6, 14")
    e("s_add_u32 s16, s16, %d" % AP)
    for i in range(16):
        e("s_add_u32 s17, s16, %d" % (i * 1024))
        e("buffer_load_dwordx4 v[%d:%d], v8, %s, s17 offen sc1" % (apreg(i), apreg(i) + 3, srd(SRD_WS)))
    e("s_waitcnt vmcnt(16)")
    e("v_mov_b32 v14, v12")
    allred("v_max_f32", 14, 4, [0, 1, 2, 3, 4])
    e("v_sub_f32 v15, v12, v14")
    e("v_mul_f32 v15, 0x%x, v15" % LOG2E)
    e("v_exp_f32 v15, v15")
    e("s_nop 0")
    e("v_mul_f32 v16, v15, v13")
    allred("v_add_f32", 16, 4, [0, 1, 2, 3, 4])
    e("v_lshlrev_b32 v8, 2, v6")
    e("ds_write_b32 v8, v15 offset:%d" % WL)
    e("v_lshlrev_b32 v8, 2, v10")
    e("s_waitcnt lgkmcnt(0)")
    for i in range(16):
        e("ds_read_b32 v%d, v8 offset:%d" % (20 + i, WL + 8 * i))
    for j in range(4):
        e("v_mov_b32 v%d, 0" % (36 + j))
    e("s_waitcnt vmcnt(0) lgkmcnt(0)")
    for i in range(16):
        for j in range(4):
            e("v_fmac_f32 v%d, v%d, v%d" % (36 + j, 20 + i, apreg(i) + j))
    for j in range(4):
        allred("v_add_f32", 36 + j, 4, [5])
    e("v_rcp_f32 v17, v16")
    e("s_nop 0")
    for j in range(4):
        e("v_mul_f32 v18, v%d, v17" % (36 + j))
        e("v_fma_f32 v19, -v18, v16, v%d" % (36 + j))
        e("v_fma_f32 v%d, v19, v17, v18" % (36 + j))
    rnd_bf16_pair(36, 37, 4)
    rnd_bf16_pair(38, 39, 4)
    e("v_lshlrev_b32 v8, 4, v6")
    e("ds_write_b128 v8, v[36:39] offset:%d" % OL)
    e("v_lshrrev_b32 v8, 3, v0")
    e("v_lshlrev_b32 v8, 2, v8")
    e("s_waitcnt lgkmcnt(0)")
    for i in range(16):
        e("ds_read_b32 v%d, v8 offset:%d" % (20 + i, OL + 32 * i))
    e("s_waitcnt lgkmcnt(0)")
    gemv_rows(16, 64, 20, 48)
    e("s_lshl_b32 s16, s7, 13")
    e("s_lshl_b32 s17, s6, 8")
    e("s_add_u32 s16, s16, s17")
    e("s_add_u32 s16, s16, %d" % YA)
    e("v_lshlrev_b32 v6, 5, v0")
    e("s_mov_b64 exec, 0xff")
    e("buffer_store_dwordx4 v[48:51], v6, %s, s16 offen sc1" % srd(SRD_WS))
    e("buffer_store_dwordx4 v[52:55], v6, %s, s16 offen offset:16 sc1" % srd(SRD_WS))
    e("s_mov_b64 exec, -1")
    e("s_lshl_b32 s17, s7, 5")
    e("s_add_u32 s17, s17, s6")
    set_flag(2)
    stamp(9)
    e("s_cmp_ge_u32 s2, 8")
    e("s_cbranch_scc1 L_end")
    e("v_and_b32 v6, 15, v0")
    e("v_lshlrev_b32 v8, 3, v6")
    e("s_lshl_b32 s16, s7, 7")
    e("buffer_load_dwordx2 v[20:21], v8, %s, s16 offen" % srd(SRD_X))
    e("v_and_b32 v12, 31, v0")
    e("s_lshl_b32 s16, s7, 5")
    e("v_add_u32 v12, s16, v12")
    e("v_lshlrev_b32 v12, 3, v12")
    e("v_add_u32 v12, %d, v12" % (FLG + 4096))
    poll("L_poll_f", 12, 10)
    stamp(10)
    e("v_lshrrev_b32 v10, 4, v0")
    e("v_lshlrev_b32 v8, 8, v10")
    e("v_lshl_add_u32 v8, v6, 4, v8")
    e("s_lshl_b32 s16, s7, 13")
    for i in range(8):
        e("s_add_u32 s17, s16, %d" % (YA + i * 1024))
        e("buffer_load_dwordx4 v[%d:%d], v8, %s, s17 offen sc1" % (32 + 4 * i, 35 + 4 * i, srd(SRD_WS)))
    for i in range(8):
        e("s_add_u32 s17, s16, %d" % (YB + i * 1024))
        e("buffer_load_dwordx4 v[%d:%d], v8, %s, s17 offen sc1" % (64 + 4 * i, 67 + 4 * i, srd(SRD_WS)))
    e("s_waitcnt vmcnt(0)")
    for b in (32, 64):
        for i in range(1, 8):
            for j in range(4):
                e("v_add_f32 v%d, v%d, v%d" % (b + j, b + j, b + 4 * i + j))
        for j in range(4):
            allred("v_add_f32", b + j, 4, [4, 5])
    rnd_bf16_pair(32, 33, 4)
    rnd_bf16_pair(34, 35, 4)
    rnd_bf16_pair(64, 65, 4)
    rnd_bf16_pair(66, 67, 4)
    e("v_lshlrev_b32 v22, 16, v20")
    e("v_and_b32 v23, 0xffff0000, v20")
    e("v_lshlrev_b32 v24, 16, v21")
    e("v_and_b32 v25, 0xffff0000, v21")
    for j in range(4):
        e("v_add_f32 v%d, v%d, v%d" % (32 + j, 22 + j, 32 + j))
    rnd_bf16_pair(32, 33, 4)
    rnd_bf16_pair(34, 35, 4)
    for j in range(4):
        e("v_add_f32 v%d, v%d, v%d" % (32 + j, 32 + j, 64 + j))
    e("v_cvt_pk_bf16_f32 v36, v32, v33")
    e("v_cvt_pk_bf16_f32 v37, v34, v35")
    e("v_lshlrev_b32 v8, 3, v6")
    e("s_lshl_b32 s16, s7, 7")
    e("s_mov_b64 exec, 0xffff")
    e("buffer_store_dwordx2 v[36:37], v8, %s, s16 offen" % srd(SRD_OUT))
    e("s_mov_b64 exec, -1")
    stamp(11)

gen()
txt = "\n".join(header() + L + footer(168)) + "\n"
open(OUT, "w").write(txt)
print("wrote", OUT, len(txt), "bytes")
```

```python
import sys

NAME = "parallel_sum__gqa_block_cached__glu_gated_swiglu__decode"
OUT = "cdna_kernels/%s.s" % NAME

NT = True
PACE = 3
LAYOUT = "B"
INIT = 8
NREG = 5
SLEEP = 2
FLG = 0x180000
STAMP = False

for a in sys.argv[1:]:
    if a.startswith("nt="): NT = bool(int(a[3:]))
    elif a.startswith("pace="): PACE = int(a[5:])
    elif a.startswith("layout="): LAYOUT = a[7:]
    elif a.startswith("init="): INIT = int(a[5:])
    elif a.startswith("nreg="): NREG = int(a[5:])
    elif a.startswith("sleep="): SLEEP = int(a[6:])
    elif a.startswith("out="): OUT = a[4:]
    elif a.startswith("stamp="): STAMP = bool(int(a[6:]))

L = []
def e(s=""):
    L.append("    " + s if s and not s.endswith(":") else s)
def lab(s):
    L.append(s + ":")
def c(s):
    L.append("    ; " + s)

XN = 0
RS = XN + 2048
QL = RS + 16384
HL = QL + 1024
WL = HL + 256
OL = WL + 128
SC = OL + 512
RINGB = 24576
LDS_TOTAL = RINGB + 8 * 16384

QP = 0
GU = 0x10000
AP = 0x20000
ML = 0xA0000
YA = 0xA2000
YB = 0xB2000
TS = 0x100000
QPT = 0x200000

SRD_X, SRD_K, SRD_V, SRD_WQ, SRD_WO, SRD_W13, SRD_W2, SRD_OUT, SRD_DBG, SRD_WS = 40, 44, 48, 52, 56, 60, 64, 68, 72, 76
def srd(n): return "s[%d:%d]" % (n, n + 3)

LOG2E = 0x3fb8aa3b
SCALE = 0x3db504f3
EPS = 0x3727c5ac

def header():
    h = []
    h.append("; @launch grid=(256,1,1) block=(576,1,1) lds=%d" % LDS_TOTAL)
    h.append('.amdgcn_target "amdgcn-amd-amdhsa--gfx950"')
    h.append(".text")
    h.append(".globl %s_kernel" % NAME)
    h.append(".p2align 8")
    h.append(".type %s_kernel,@function" % NAME)
    h.append("%s_kernel:" % NAME)
    return h

def footer(nv):
    f = []
    f.append(".section .rodata,\"a\"")
    f.append(".p2align 6")
    f.append(".amdhsa_kernel %s_kernel" % NAME)
    f.append("  .amdhsa_next_free_vgpr %d" % nv)
    f.append("  .amdhsa_next_free_sgpr 102")
    f.append("  .amdhsa_accum_offset %d" % ((nv + 3) // 4 * 4))
    f.append("  .amdhsa_group_segment_fixed_size 0")
    f.append("  .amdhsa_kernarg_size 96")
    f.append("  .amdhsa_user_sgpr_count 2")
    f.append("  .amdhsa_user_sgpr_kernarg_segment_ptr 1")
    f.append("  .amdhsa_system_sgpr_workgroup_id_x 1")
    f.append(".end_amdhsa_kernel")
    return f

def build_srd(d, p, nbytes):
    e("s_mov_b32 s%d, s%d" % (d, p))
    e("s_mov_b32 s%d, s%d" % (d + 1, p + 1))
    e("s_mov_b32 s%d, 0x%x" % (d + 2, nbytes))
    e("s_mov_b32 s%d, 0x00020000" % (d + 3))

def rnd_bf16_pair(a, b, t):
    e("v_cvt_pk_bf16_f32 v%d, v%d, v%d" % (t, a, b))
    e("v_lshlrev_b32 v%d, 16, v%d" % (a, t))
    e("v_and_b32 v%d, 0xffff0000, v%d" % (b, t))
def rnd_bf16(a, t):
    e("v_cvt_pk_bf16_f32 v%d, v%d, v%d" % (t, a, a))
    e("v_lshlrev_b32 v%d, 16, v%d" % (a, t))

def dpp(op, d, a, b, ctrl):
    e("%s_dpp v%d, v%d, v%d %s row_mask:0xf bank_mask:0xf" % (op, d, a, b, ctrl))

def allred(op, v, t, bits):
    for b in bits:
        if b == 0:
            e("s_nop 1"); dpp(op, v, v, v, "quad_perm:[1,0,3,2]")
        elif b == 1:
            e("s_nop 1"); dpp(op, v, v, v, "quad_perm:[2,3,0,1]")
        elif b == 2:
            e("s_nop 1"); dpp(op, v, v, v, "row_ror:4")
        elif b == 3:
            e("s_nop 1"); dpp(op, v, v, v, "row_ror:8")
        elif b == 4:
            e("v_mov_b32 v%d, v%d" % (t, v)); e("s_nop 1")
            e("v_permlane16_swap_b32 v%d, v%d" % (v, t)); e("s_nop 1")
            e("%s v%d, v%d, v%d" % (op, v, v, t))
        elif b == 5:
            e("v_mov_b32 v%d, v%d" % (t, v)); e("s_nop 1")
            e("v_permlane32_swap_b32 v%d, v%d" % (v, t)); e("s_nop 1")
            e("%s v%d, v%d, v%d" % (op, v, v, t))

stamp_idx = [0]
ROLE = ["w"]
def stamp(slot):
    if not STAMP:
        return
    e("s_memrealtime s[90:91]")
    e("s_waitcnt lgkmcnt(0)")
    a, b, ad = (160, 161, 162) if ROLE[0] == "w" else (2, 3, 1)
    e("v_mov_b32 v%d, s90" % a)
    e("v_mov_b32 v%d, s91" % b)
    e("s_lshl_b32 s92, s2, 4")
    e("s_add_u32 s92, s92, s3")
    e("s_lshl_b32 s92, s92, 7")
    e("s_add_u32 s92, s92, %d" % (TS + slot * 8))
    e("v_mov_b32 v%d, s92" % ad)
    e("buffer_store_dwordx2 v[%d:%d], v%d, %s, 0 offen" % (a, b, ad, srd(SRD_WS)))

def stampS(slot):
    if not STAMP: return
    r = 80 + 2 * (slot - 4)
    e("s_memrealtime s[%d:%d]" % (r, r + 1))
    e("s_waitcnt lgkmcnt(0)")
def stampFlush(slots):
    if not STAMP: return
    for slot in slots:
        r = 80 + 2 * (slot - 4)
        e("v_mov_b32 v160, s%d" % r)
        e("v_mov_b32 v161, s%d" % (r + 1))
        e("s_lshl_b32 s92, s2, 4")
        e("s_add_u32 s92, s92, s3")
        e("s_lshl_b32 s92, s92, 7")
        e("s_add_u32 s92, s92, %d" % (TS + slot * 8))
        e("v_mov_b32 v162, s92")
        e("buffer_store_dwordx2 v[160:161], v162, %s, 0 offen" % srd(SRD_WS))
        e("s_nop 4")

def gen():
    e("s_cmp_ge_u32 s2, 256")
    e("s_cbranch_scc1 L_end")
    e("s_load_dwordx16 s[16:31], s[0:1], 0")
    e("s_load_dwordx8 s[32:39], s[0:1], 64")
    e("v_lshrrev_b32 v1, 6, v0")
    e("v_and_b32 v0, 63, v0")
    e("s_nop 0")
    e("v_readfirstlane_b32 s3, v1")
    e("s_lshr_b32 s4, s2, 5")
    e("s_and_b32 s5, s2, 31")
    e("s_lshr_b32 s6, s2, 3")
    e("s_and_b32 s7, s2, 7")
    e("s_sub_u32 s8, s2, 224")
    e("s_cmp_ge_u32 s2, 224")
    e("s_cselect_b32 s8, s8, s2")
    e("s_cmp_ge_u32 s8, 112")
    e("s_cselect_b32 s9, 1, 0")
    e("s_mul_i32 s10, s9, 112")
    e("s_sub_u32 s10, s8, s10")
    e("s_mov_b32 s11, 0")
    for t in (28, 56, 84):
        e("s_cmp_ge_u32 s10, %d" % t)
        e("s_addc_u32 s11, s11, 0")
    e("s_mul_i32 s12, s11, 28")
    e("s_sub_u32 s12, s10, s12")
    e("s_waitcnt lgkmcnt(0)")
    build_srd(SRD_X, 16, 1024)
    build_srd(SRD_K, 18, 134217728)
    build_srd(SRD_V, 20, 134217728)
    build_srd(SRD_WQ, 22, 4194304)
    build_srd(SRD_WO, 24, 4194304)
    e("s_cmp_eq_u32 s9, 0")
    e("s_cselect_b32 s%d, s28, s30" % SRD_W13)
    e("s_cselect_b32 s%d, s29, s31" % (SRD_W13 + 1))
    e("s_mov_b32 s%d, 0x%x" % (SRD_W13 + 2, 1835008))
    e("s_mov_b32 s%d, 0x00020000" % (SRD_W13 + 3))
    build_srd(SRD_W2, 32, 1835008)
    build_srd(SRD_OUT, 34, 1024)
    build_srd(SRD_DBG, 36, 256)
    build_srd(SRD_WS, 38, 536870912)
    e("s_cmp_eq_u32 s3, 8")
    e("s_cbranch_scc1 L_service")
    worker()
    service()
    lab("L_end")
    e("s_endpgm")

USTRIDE = {"A": 4096, "B": 32768, "C": 1 << 20}
if LAYOUT.startswith("I"):
    IL = int(LAYOUT[1:])
    USTRIDE[LAYOUT] = IL * 32768
if LAYOUT == "D":
    USTRIDE["D"] = 0
def dma_setup(u):
    isK = u < 16
    uu = u if isK else u - 16
    if LAYOUT in ("E", "F"):
        pass
    elif LAYOUT in ("G", "H"):
        if LAYOUT == "G":
            e("s_add_u32 s21, s3, %d" % (uu & 7))
            e("s_and_b32 s21, s21, 7")
        else:
            e("s_xor_b32 s21, s3, %d" % (uu & 7))
        e("s_lshl_b32 s21, s21, 12")
        e("s_add_u32 s20, s14, s21")
        e("s_add_u32 s20, s20, %d" % (uu * 32768))
    elif LAYOUT == "D":
        e("s_add_u32 s20, s14, %d" % ((uu // 2) * 65536 + (uu % 2) * 4096))
    else:
        e("s_add_u32 s20, s14, %d" % (uu * USTRIDE[LAYOUT]))
    e("s_add_u32 m0, s15, %d" % ((u % 4) * 4096))
    e("s_nop 0")
def dma_one(u, j):
    isK = u < 16
    uu = u if isK else u - 16
    vo = (2 + j) if isK else (6 + (j & 1))
    if LAYOUT == "E":
        e("s_add_u32 s20, s14, %d" % ((4 * uu + j) * 8192 - j * 1024))
    elif LAYOUT == "F":
        if j % 2 == 0:
            e("s_add_u32 s20, s14, %d" % ((2 * uu + j // 2) * 16384 - (j // 2) * 2048))
    e("buffer_load_dwordx4 v%d, %s, s20 offen offset:%d%s lds" %
      (vo, srd(SRD_K if isK else SRD_V), j * 1024, " nt" if NT else ""))
def dma_unit(u):
    dma_setup(u)
    for j in range(4):
        dma_one(u, j)

def worker():
    c("================= worker waves (s3 = 0..7) =================")
    stamp(0)
    e("v_lshlrev_b32 v30, 4, v0")
    e("buffer_load_dwordx4 v[32:35], v30, %s, 0 offen" % srd(SRD_X))
    e("v_lshrrev_b32 v24, 3, v0")
    e("v_and_b32 v25, 7, v0")
    e("v_lshlrev_b32 v26, 13, v24")
    e("v_lshl_add_u32 v26, v25, 4, v26")
    e("s_lshr_b32 s16, s5, 3")
    e("s_and_b32 s17, s5, 7")
    e("s_lshl_b32 s18, s16, 7")
    e("s_lshl_b32 s19, s3, 4")
    e("s_add_u32 s18, s18, s19")
    e("s_lshl_b32 s19, s18, 13")
    e("s_lshl_b32 s20, s4, 10")
    e("s_add_u32 s19, s19, s20")
    e("s_lshl_b32 s20, s17, 7")
    e("s_add_u32 s19, s19, s20")
    e("s_add_u32 s20, s19, 65536")
    e("buffer_load_dwordx4 v[36:39], v26, %s, s19 offen" % srd(SRD_WQ))
    e("buffer_load_dwordx4 v[40:43], v26, %s, s20 offen" % srd(SRD_WQ))
    e("s_movk_i32 s21, 3584")
    e("v_mul_lo_u32 v27, v24, s21")
    e("v_lshl_add_u32 v27, v25, 4, v27")
    e("s_lshl_b32 s22, s11, 7")
    e("s_lshl_b32 s23, s3, 4")
    e("s_add_u32 s22, s22, s23")
    e("s_mul_i32 s23, s22, 3584")
    e("s_lshl_b32 s24, s12, 7")
    e("s_add_u32 s23, s23, s24")
    e("s_add_u32 s24, s23, %d" % (8 * 3584))
    e("buffer_load_dwordx4 v[44:47], v27, %s, s23 offen" % srd(SRD_W13))
    e("buffer_load_dwordx4 v[48:51], v27, %s, s24 offen" % srd(SRD_W13))
    if LAYOUT == "A":
        e("s_lshl_b32 s14, s2, 19")
        e("s_lshl_b32 s15, s3, 16")
        e("s_add_u32 s14, s14, s15")
    elif LAYOUT == "B":
        e("s_lshl_b32 s14, s2, 19")
        e("s_lshl_b32 s15, s3, 12")
        e("s_add_u32 s14, s14, s15")
    elif LAYOUT == "D":
        e("s_lshl_b32 s14, s2, 19")
        e("s_lshl_b32 s15, s3, 13")
        e("s_add_u32 s14, s14, s15")
    elif LAYOUT in ("G", "H"):
        e("s_lshl_b32 s14, s2, 19")
    elif LAYOUT == "E":
        e("s_lshl_b32 s14, s2, 19")
        e("s_lshl_b32 s15, s3, 10")
        e("s_add_u32 s14, s14, s15")
    elif LAYOUT == "F":
        e("s_lshl_b32 s14, s2, 19")
        e("s_lshl_b32 s15, s3, 11")
        e("s_add_u32 s14, s14, s15")
    elif LAYOUT.startswith("I"):
        import math
        lg = int(math.log2(IL))
        e("s_lshr_b32 s14, s2, %d" % lg)
        e("s_lshl_b32 s14, s14, %d" % (19 + lg))
        e("s_and_b32 s15, s2, %d" % (IL - 1))
        e("s_lshl_b32 s15, s15, 15")
        e("s_add_u32 s14, s14, s15")
        e("s_lshl_b32 s15, s3, 12")
        e("s_add_u32 s14, s14, s15")
    else:
        e("s_lshl_b32 s14, s4, 24")
        e("s_lshl_b32 s15, s5, 15")
        e("s_add_u32 s14, s14, s15")
        e("s_lshl_b32 s15, s3, 12")
        e("s_add_u32 s14, s14, s15")
    e("s_lshl_b32 s15, s3, 14")
    e("s_add_u32 s15, s15, %d" % RINGB)
    e("v_lshrrev_b32 v20, 4, v0")
    e("v_and_b32 v21, 15, v0")
    e("v_lshlrev_b32 v22, 8, v20")
    e("v_xor_b32 v23, v21, v20")
    for j in range(4):
        e("v_xor_b32 v28, %d, v23" % (4 * j))
        e("v_lshl_add_u32 v%d, v28, 4, v22" % (2 + j))
    e("v_lshlrev_b32 v28, 1, v20")
    e("v_xor_b32 v28, v21, v28")
    e("v_lshl_add_u32 v6, v28, 4, v22")
    e("v_xor_b32 v28, 8, v28")
    e("v_lshl_add_u32 v7, v28, 4, v22")
    for i in range(INIT):
        if i % 4 == 0:
            dma_setup(i // 4)
        dma_one(i // 4, i % 4)
    nd = INIT
    e("v_lshlrev_b32 v29, 8, v21")
    e("v_add_u32 v29, s15, v29")
    for s in range(4):
        e("v_xor_b32 v28, %d, v23" % (4 * s))
        e("v_lshl_add_u32 v%d, v28, 4, v29" % (8 + s))
    e("v_lshrrev_b32 v28, 2, v21")
    e("v_lshl_add_u32 v28, v20, 2, v28")
    e("v_lshlrev_b32 v29, 8, v28")
    e("v_add_u32 v29, s15, v29")
    e("v_and_b32 v28, 7, v28")
    e("v_lshlrev_b32 v28, 1, v28")
    e("v_and_b32 v31, 3, v21")
    e("v_lshrrev_b32 v52, 1, v31")
    e("v_or_b32 v28, v28, v52")
    e("v_and_b32 v31, 1, v31")
    e("v_lshl_add_u32 v29, v31, 3, v29")
    for D in range(8):
        e("v_xor_b32 v52, %d, v28" % (2 * D))
        e("v_lshl_add_u32 v%d, v52, 4, v29" % (12 + D))
    e("s_waitcnt vmcnt(%d)" % (4 + nd))
    stampS(4)
    for j in range(4):
        e("v_lshlrev_b32 v%d, 16, v%d" % (56 + 2 * j, 32 + j))
        e("v_and_b32 v%d, 0xffff0000, v%d" % (57 + 2 * j, 32 + j))
    e("v_add_f32 v64, v56, v57")
    for j in range(2, 8):
        e("v_add_f32 v64, v64, v%d" % (56 + j))
    allred("v_add_f32", 64, 65, [0, 1, 2, 3, 4, 5])
    e("v_mul_f32 v64, 0x3b000000, v64")
    for j in range(8):
        e("v_sub_f32 v%d, v%d, v64" % (66 + j, 56 + j))
    e("v_mul_f32 v74, v66, v66")
    for j in range(1, 8):
        e("v_fmac_f32 v74, v%d, v%d" % (66 + j, 66 + j))
    allred("v_add_f32", 74, 65, [0, 1, 2, 3, 4, 5])
    e("v_mul_f32 v74, 0x3b000000, v74")
    rnd_bf16_pair(64, 74, 65)
    e("v_add_f32 v74, 0x%x, v74" % EPS)
    rnd_bf16(74, 65)
    e("v_sqrt_f32 v74, v74")
    e("s_nop 0")
    rnd_bf16(74, 65)
    e("v_rcp_f32 v75, v74")
    for j in range(8):
        e("v_sub_f32 v%d, v%d, v64" % (56 + j, 56 + j))
    for j in range(0, 8, 2):
        rnd_bf16_pair(56 + j, 57 + j, 65)
    for j in range(8):
        e("v_mul_f32 v%d, v%d, v75" % (66 + j, 56 + j))
    for j in range(8):
        e("v_fma_f32 v%d, -v%d, v74, v%d" % (76 + j, 66 + j, 56 + j))
    for j in range(8):
        e("v_fma_f32 v%d, v%d, v75, v%d" % (56 + j, 76 + j, 66 + j))
    for j in range(0, 8, 2):
        rnd_bf16_pair(56 + j, 57 + j, 65)
    e("v_lshlrev_b32 v65, 5, v0")
    e("ds_write_b128 v65, v[56:59] offset:%d" % XN)
    e("ds_write_b128 v65, v[60:63] offset:%d" % (XN + 16))
    e("v_add_u32 v65, s18, v24")
    e("v_lshlrev_b32 v65, 2, v65")
    e("v_add_u32 v66, s22, v24")
    e("v_lshlrev_b32 v66, 2, v66")
    e("s_waitcnt lgkmcnt(0)")
    e("ds_read_b32 v68, v65 offset:%d" % XN)
    e("ds_read_b32 v69, v65 offset:%d" % (XN + 32))
    e("ds_read_b32 v70, v66 offset:%d" % XN)
    e("ds_read_b32 v71, v66 offset:%d" % (XN + 32))
    for j in range(16):
        e("v_mov_b32 v%d, 0" % (80 + j))
    e("s_waitcnt vmcnt(%d) lgkmcnt(0)" % nd)
    stampS(5)
    for mat in range(2):
        for row in range(2):
            wbase = 36 + 8 * mat + 4 * row
            xr = 68 + 2 * mat + row
            for j in range(4):
                e("v_lshlrev_b32 v72, 16, v%d" % (wbase + j))
                e("v_and_b32 v73, 0xffff0000, v%d" % (wbase + j))
                e("v_fmac_f32 v%d, v%d, v72" % (80 + 8 * mat + 2 * j, xr))
                e("v_fmac_f32 v%d, v%d, v73" % (81 + 8 * mat + 2 * j, xr))
    e("s_nop 1")
    for j in range(16):
        dpp("v_add_f32", 80 + j, 80 + j, 80 + j, "row_ror:8")
    e("s_lshl_b32 s16, s3, 10")
    e("v_lshl_add_u32 v65, v25, 5, v22")
    e("v_add_u32 v65, s16, v65")
    e("ds_write_b128 v65, v[80:83] offset:%d" % RS)
    e("ds_write_b128 v65, v[84:87] offset:%d" % (RS + 16))
    e("ds_write_b128 v65, v[88:91] offset:%d" % (RS + 8192))
    e("ds_write_b128 v65, v[92:95] offset:%d" % (RS + 8192 + 16))
    e("s_waitcnt lgkmcnt(0)")
    stampS(6)
    e("s_barrier")
    stamp(1)
    stampFlush([4, 5, 6])
    for i in range(INIT, 4 * (4 + NREG)):
        u = i // 4
        e("s_waitcnt vmcnt(%d)" % (PACE - 1))
        if i % 4 == 0 and u >= 4:
            pu = u - 4
            for sx in range(4):
                e("ds_read_b128 v[%d:%d], v%d offset:%d" % (32 + 16 * pu + 4 * sx, 35 + 16 * pu + 4 * sx, 8 + sx, (pu % 4) * 4096))
            e("s_waitcnt lgkmcnt(0)")
        if i % 4 == 0 or i == INIT:
            dma_setup(u)
        dma_one(u, i % 4)
    e("s_barrier")
    stamp(2)
    e("v_and_b32 v28, 3, v21")
    e("v_lshlrev_b32 v28, 8, v28")
    e("v_lshl_add_u32 v28, v20, 4, v28")
    for sx in range(4):
        e("ds_read_b128 v[%d:%d], v28 offset:%d" % (112 + 4 * sx, 115 + 4 * sx, QL + 64 * sx))
    e("v_lshrrev_b32 v29, 2, v21")
    for T in range(4):
        e("v_cmp_eq_u32 s[%d:%d], %d, v29" % (24 + 2 * T, 25 + 2 * T, T))
    e("s_waitcnt lgkmcnt(0)")
    SB = 144
    for u in range(16):
        tg, T = u // 4, u % 4
        for k in range(16):
            e("v_cndmask_b32 v%d, 0, v%d, s[%d:%d]" % (128 + k, 112 + k, 24 + 2 * T, 25 + 2 * T))
        if u < NREG:
            kb = 32 + 16 * u
            e("s_nop 1")
        else:
            kb = 32
            e("s_waitcnt vmcnt(12)")
            for sx in range(4):
                e("ds_read_b128 v[%d:%d], v%d offset:%d" % (32 + 4 * sx, 35 + 4 * sx, 8 + sx, (u % 4) * 4096))
            e("s_waitcnt lgkmcnt(0)")
            dma_unit(u + 4)
        for sx in range(4):
            cc = "0" if (T == 0 and sx == 0) else "v[%d:%d]" % (SB + 4 * tg, SB + 4 * tg + 3)
            e("v_mfma_f32_16x16x32_bf16 v[%d:%d], v[%d:%d], v[%d:%d], %s" %
              (SB + 4 * tg, SB + 4 * tg + 3, kb + 4 * sx, kb + 3 + 4 * sx, 128 + 4 * sx, 131 + 4 * sx, cc))
    e("s_nop 7")
    e("s_nop 1")
    for k in range(0, 16, 2):
        rnd_bf16_pair(SB + k, SB + k + 1, 28)
    for k in range(16):
        e("v_mul_f32 v%d, 0x%x, v%d" % (SB + k, SCALE, SB + k))
    for k in range(0, 16, 2):
        rnd_bf16_pair(SB + k, SB + k + 1, 28)
    e("v_max3_f32 v52, v%d, v%d, v%d" % (SB, SB + 1, SB + 2))
    for k in range(3, 15, 2):
        e("v_max3_f32 v52, v52, v%d, v%d" % (SB + k, SB + k + 1))
    e("v_max_f32 v52, v52, v%d" % (SB + 15))
    allred("v_max_f32", 52, 28, [2, 3, 4, 5])
    e("s_mov_b32 s16, 0x%x" % LOG2E)
    for k in range(16):
        e("v_sub_f32 v%d, v%d, v52" % (SB + k, SB + k))
    for k in range(16):
        e("v_mul_f32 v%d, s16, v%d" % (SB + k, SB + k))
    for k in range(16):
        e("v_exp_f32 v%d, v%d" % (SB + k, SB + k))
    e("s_nop 0")
    e("v_add_f32 v53, v%d, v%d" % (SB, SB + 1))
    for k in range(2, 16):
        e("v_add_f32 v53, v53, v%d" % (SB + k))
    allred("v_add_f32", 53, 28, [2, 3, 4, 5])
    PB = 112
    for tg in range(4):
        e("v_cvt_pk_bf16_f32 v%d, v%d, v%d" % (PB + 2 * tg, SB + 4 * tg, SB + 4 * tg + 1))
        e("v_cvt_pk_bf16_f32 v%d, v%d, v%d" % (PB + 2 * tg + 1, SB + 4 * tg + 2, SB + 4 * tg + 3))
    for uv in range(16):
        u = 16 + uv
        tg, T = uv // 4, uv % 4
        rem = min(u + 3, 31) - u
        e("s_waitcnt vmcnt(%d)" % (4 * rem))
        for D in range(8):
            e("ds_read_b64_tr_b16 v[%d:%d], v%d offset:%d" % (32 + 2 * D, 33 + 2 * D, 12 + D, (u % 4) * 4096))
        pa = 48 + 2 * (uv & 1)
        if T == 0:
            e("v_mov_b32 v%d, v%d" % (pa, PB + 2 * tg))
            e("v_mov_b32 v%d, v%d" % (pa + 1, PB + 2 * tg + 1))
        else:
            e("v_mov_b32_dpp v%d, v%d row_shl:%d row_mask:0xf bank_mask:0xf" % (pa, PB + 2 * tg, 4 * T))
            e("v_mov_b32_dpp v%d, v%d row_shl:%d row_mask:0xf bank_mask:0xf" % (pa + 1, PB + 2 * tg + 1, 4 * T))
        e("s_waitcnt lgkmcnt(0)")
        if u + 4 < 32:
            dma_unit(u + 4)
        else:
            e("s_nop 1")
        for D in range(8):
            cc = "0" if uv == 0 else "v[%d:%d]" % (56 + 4 * D, 59 + 4 * D)
            e("v_mfma_f32_16x16x16_bf16 v[%d:%d], v[%d:%d], v[%d:%d], %s" %
              (56 + 4 * D, 59 + 4 * D, pa, pa + 1, 32 + 2 * D, 33 + 2 * D, cc))
    stamp(3)
    e("s_nop 7")
    e("s_nop 1")
    e("v_lshlrev_b32 v28, 2, v0")
    e("v_add_u32 v28, s15, v28")
    e("s_mov_b64 exec, 0xffff")
    for D in range(8):
        for h in range(4):
            e("ds_write_b32 v28, v%d offset:%d" % (56 + 4 * D + h, h * 512 + D * 64))
    e("s_mov_b64 exec, 0xf")
    e("v_lshlrev_b32 v28, 3, v0")
    e("v_add_u32 v28, s15, v28")
    e("ds_write_b64 v28, v[52:53] offset:2048")
    e("s_mov_b64 exec, -1")
    e("s_waitcnt lgkmcnt(0)")
    e("s_barrier")
    e("s_endpgm")

def poll(label, vaddr, vtmp):
    e("s_mov_b32 s16, 0")
    lab(label)
    e("buffer_load_dwordx2 v[%d:%d], v%d, %s, 0 offen sc1" % (vtmp, vtmp + 1, vaddr, srd(SRD_WS)))
    e("s_waitcnt vmcnt(0)")
    e("v_cmp_ne_u64 vcc, s[94:95], v[%d:%d]" % (vtmp, vtmp + 1))
    e("s_nop 1")
    e("s_cbranch_vccz %s_done" % label)
    e("s_add_u32 s16, s16, 1")
    e("s_cmp_ge_u32 s16, 0x40000")
    e("s_cbranch_scc1 %s_done" % label)
    e("s_sleep %d" % SLEEP)
    e("s_branch %s" % label)
    lab(label + "_done")

def set_flag(ph):
    e("s_waitcnt vmcnt(0)")
    e("v_mov_b32 v2, s94")
    e("v_mov_b32 v3, s95")
    e("s_lshl_b32 s17, s17, 3")
    e("s_add_u32 s17, s17, %d" % (FLG + ph * 2048))
    e("v_mov_b32 v1, s17")
    e("s_mov_b64 exec, 1")
    e("buffer_store_dwordx2 v[2:3], v1, %s, 0 offen sc1" % srd(SRD_WS))
    e("s_mov_b64 exec, -1")

def gemv_rows(nrows, wbase, xbase, acc):
    for j in range(8):
        e("v_mov_b32 v%d, 0" % (acc + j))
    for i in range(nrows):
        for j in range(4):
            e("v_lshlrev_b32 v4, 16, v%d" % (wbase + 4 * i + j))
            e("v_and_b32 v5, 0xffff0000, v%d" % (wbase + 4 * i + j))
            e("v_fmac_f32 v%d, v%d, v4" % (acc + 2 * j, xbase + i))
            e("v_fmac_f32 v%d, v%d, v5" % (acc + 2 * j + 1, xbase + i))
    for j in range(8):
        allred("v_add_f32", acc + j, 4, [3, 4, 5])

def service():
    lab("L_service")
    ROLE[0] = "s"
    c("================= service wave =================")
    stamp(0)
    e("v_lshrrev_b32 v24, 3, v0")
    e("v_and_b32 v25, 7, v0")
    e("v_mov_b32 v1, 0")
    e("s_cmp_lg_u32 s2, 0")
    e("s_cbranch_scc1 L_nonce_wait")
    e("s_memrealtime s[94:95]")
    e("s_waitcnt lgkmcnt(0)")
    e("s_or_b32 s94, s94, 1")
    e("v_mov_b32 v2, s94")
    e("v_mov_b32 v3, s95")
    e("s_mov_b64 exec, 1")
    e("buffer_store_dwordx2 v[2:3], v1, %s, 0 offen sc1" % srd(SRD_DBG))
    e("s_mov_b64 exec, -1")
    lab("L_nonce_wait")
    e("s_barrier")
    stamp(1)
    e("v_lshlrev_b32 v6, 2, v0")
    for mat in range(2):
        for sl in range(32):
            e("ds_read_b32 v%d, v6 offset:%d" % (32 + 32 * mat + sl, RS + mat * 8192 + sl * 256))
        e("s_waitcnt lgkmcnt(0)")
    for mat in range(2):
        b = 32 + 32 * mat
        for st in (16, 8, 4, 2, 1):
            for k in range(st):
                e("v_add_f32 v%d, v%d, v%d" % (b + k, b + k, b + k + st))
    e("s_mul_i32 s16, s9, %d" % (4 * 1792 * 4))
    e("s_mul_i32 s17, s11, %d" % (1792 * 4))
    e("s_add_u32 s16, s16, s17")
    e("s_lshl_b32 s17, s12, 8")
    e("s_add_u32 s16, s16, s17")
    e("s_add_u32 s16, s16, %d" % GU)
    e("buffer_store_dword v64, v6, %s, s16 offen sc1" % srd(SRD_WS))
    e("v_mov_b32 v1, 0")
    e("s_mov_b32 s16, 0")
    lab("L_nonce_loop")
    e("buffer_load_dwordx2 v[2:3], v1, %s, 0 offen sc1" % srd(SRD_DBG))
    e("s_waitcnt vmcnt(0)")
    e("v_readfirstlane_b32 s94, v2")
    e("v_readfirstlane_b32 s95, v3")
    e("s_nop 3")
    e("s_and_b32 s17, s94, 1")
    e("s_cmp_lg_u32 s17, 0")
    e("s_cbranch_scc1 L_nonce_done")
    e("s_add_u32 s16, s16, 1")
    e("s_cmp_ge_u32 s16, 0x40000")
    e("s_cbranch_scc1 L_nonce_done")
    e("s_sleep 2")
    e("s_branch L_nonce_loop")
    lab("L_nonce_done")
    stamp(12)
    e("s_lshr_b32 s16, s5, 3")
    e("s_lshl_b32 s16, s16, 15")
    e("s_lshl_b32 s17, s4, 12")
    e("s_add_u32 s16, s16, s17")
    e("s_and_b32 s17, s5, 7")
    e("s_lshl_b32 s17, s17, 9")
    e("s_add_u32 s16, s16, s17")
    e("s_add_u32 s16, s16, %d" % QPT)
    e("v_mov_b32 v33, s94")
    e("v_lshlrev_b32 v6, 3, v0")
    e("buffer_store_dwordx2 v[32:33], v6, %s, s16 offen sc1" % srd(SRD_WS))
    stamp(2)
    e("v_lshlrev_b32 v6, 6, v0")
    e("s_lshl_b32 s18, s4, 12")
    e("s_add_u32 s18, s18, %d" % QPT)
    e("s_mov_b32 s16, 0")
    lab("L_q_loop")
    for kq in range(4):
        e("s_add_u32 s17, s18, %d" % (kq * 32768))
        for j in range(4):
            r = 32 + 16 * kq + 4 * j
            e("buffer_load_dwordx4 v[%d:%d], v6, %s, s17 offen offset:%d sc1" % (r, r + 3, srd(SRD_WS), 16 * j))
    e("s_waitcnt vmcnt(0)")
    e("v_xor_b32 v8, s94, v33")
    for k in range(1, 32):
        e("v_xor_b32 v9, s94, v%d" % (33 + 2 * k))
        e("v_or_b32 v8, v8, v9")
    e("v_cmp_ne_u32 vcc, 0, v8")
    e("s_nop 1")
    e("s_cbranch_vccz L_q_done")
    e("s_add_u32 s16, s16, 1")
    e("s_cmp_ge_u32 s16, 0x40000")
    e("s_cbranch_scc1 L_q_done")
    e("s_sleep 1")
    e("s_branch L_q_loop")
    lab("L_q_done")
    stamp(3)
    for j in range(8):
        for kq in range(1, 4):
            e("v_add_f32 v%d, v%d, v%d" % (32 + 2 * j, 32 + 2 * j, 32 + 16 * kq + 2 * j))
    for j in range(4):
        e("v_cvt_pk_bf16_f32 v%d, v%d, v%d" % (48 + j, 32 + 4 * j, 34 + 4 * j))
    e("v_lshlrev_b32 v6, 4, v0")
    e("ds_write_b128 v6, v[48:51] offset:%d" % QL)
    e("s_waitcnt lgkmcnt(0)")
    e("s_barrier")
    stamp(4)
    e("s_mov_b32 s17, s2")
    set_flag(0)
    for k in range(4):
        e("v_lshlrev_b32 v8, 3, v0")
        e("v_add_u32 v8, %d, v8" % (FLG + 512 * k))
        poll("L_poll_b%d" % k, 8, 10)
    e("v_lshlrev_b32 v7, 10, v24")
    e("v_lshl_add_u32 v7, v25, 4, v7")
    e("s_mul_i32 s16, s6, %d" % (56 * 1024))
    e("s_lshl_b32 s17, s7, 7")
    e("s_add_u32 s16, s16, s17")
    for i in range(7):
        e("s_add_u32 s17, s16, %d" % (i * 8192))
        e("buffer_load_dwordx4 v[%d:%d], v7, %s, s17 offen" % (64 + 4 * i, 67 + 4 * i, srd(SRD_W2)))
    e("v_min_u32 v6, 55, v0")
    e("s_mul_i32 s16, s6, 56")
    e("v_add_u32 v6, s16, v6")
    e("v_lshlrev_b32 v6, 2, v6")
    for m in range(2):
        for kq in range(4):
            e("s_mov_b32 s17, %d" % (GU + (m * 4 + kq) * 1792 * 4))
            e("buffer_load_dword v%d, v6, %s, s17 offen sc1" % (32 + 4 * m + kq, srd(SRD_WS)))
    e("s_waitcnt vmcnt(0)")
    for m in range(2):
        for kq in range(1, 4):
            e("v_add_f32 v%d, v%d, v%d" % (32 + 4 * m, 32 + 4 * m, 32 + 4 * m + kq))
    rnd_bf16_pair(32, 36, 4)
    e("v_mul_f32 v33, 0x%x, v32" % (LOG2E | 0x80000000))
    e("v_exp_f32 v33, v33")
    e("s_nop 0")
    e("v_add_f32 v33, 1.0, v33")
    e("v_rcp_f32 v34, v33")
    e("s_nop 0")
    e("v_mul_f32 v35, v32, v34")
    rnd_bf16(35, 4)
    e("v_mul_f32 v35, v35, v36")
    rnd_bf16(35, 4)
    e("v_lshlrev_b32 v6, 2, v0")
    e("ds_write_b32 v6, v35 offset:%d" % HL)
    e("v_lshlrev_b32 v6, 2, v24")
    e("s_waitcnt lgkmcnt(0)")
    for i in range(7):
        e("ds_read_b32 v%d, v6 offset:%d" % (32 + i, HL + 32 * i))
    e("s_waitcnt lgkmcnt(0)")
    gemv_rows(7, 64, 32, 40)
    e("s_lshl_b32 s16, s7, 13")
    e("s_lshl_b32 s17, s6, 8")
    e("s_add_u32 s16, s16, s17")
    e("s_add_u32 s16, s16, %d" % YB)
    e("v_lshlrev_b32 v6, 5, v0")
    e("s_mov_b64 exec, 0xff")
    e("buffer_store_dwordx4 v[40:43], v6, %s, s16 offen sc1" % srd(SRD_WS))
    e("buffer_store_dwordx4 v[44:47], v6, %s, s16 offen offset:16 sc1" % srd(SRD_WS))
    e("s_mov_b64 exec, -1")
    e("s_lshl_b32 s16, s6, 17")
    e("s_lshl_b32 s17, s7, 7")
    e("s_add_u32 s16, s16, s17")
    for i in range(16):
        e("s_add_u32 s17, s16, %d" % (i * 8192))
        e("buffer_load_dwordx4 v[%d:%d], v7, %s, s17 offen" % (64 + 4 * i, 67 + 4 * i, srd(SRD_WO)))
    stamp(5)
    e("s_barrier")
    stamp(6)
    e("v_and_b32 v6, 31, v0")
    e("v_lshrrev_b32 v8, 2, v6")
    e("v_lshlrev_b32 v8, 14, v8")
    e("v_and_b32 v10, 3, v0")
    e("v_lshl_add_u32 v8, v10, 3, v8")
    e("ds_read_b64 v[12:13], v8 offset:%d" % (RINGB + 2048))
    e("s_waitcnt lgkmcnt(0)")
    e("v_mov_b32 v14, v12")
    allred("v_max_f32", 14, 4, [2, 3, 4])
    e("v_sub_f32 v15, v12, v14")
    e("v_mul_f32 v15, 0x%x, v15" % LOG2E)
    e("v_exp_f32 v15, v15")
    e("s_nop 0")
    e("v_mul_f32 v16, v15, v13")
    allred("v_add_f32", 16, 4, [2, 3, 4])
    e("v_lshlrev_b32 v8, 2, v6")
    e("ds_write_b32 v8, v15 offset:%d" % SC)
    e("v_mov_b32 v17, v16")
    e("v_mov_b32 v16, v14")
    e("v_lshrrev_b32 v8, 4, v0")
    e("v_and_b32 v10, 15, v0")
    e("v_lshlrev_b32 v18, 9, v8")
    e("v_lshl_add_u32 v18, v10, 5, v18")
    e("v_add_u32 v18, %d, v18" % RINGB)
    e("v_add_u32 v11, 0x10000, v18")
    e("v_lshlrev_b32 v19, 2, v8")
    e("s_waitcnt lgkmcnt(0)")
    for wv in range(8):
        e("ds_read_b32 v%d, v19 offset:%d" % (20 + wv, SC + 16 * wv))
    for j in range(8):
        e("v_mov_b32 v%d, 0" % (28 + j))
    for batch in ((0, 1, 2), (3, 4, 5), (6, 7)):
        for k, wv in enumerate(batch):
            off = (wv & 3) * 16384
            ar = 18 if wv < 4 else 11
            e("ds_read_b128 v[%d:%d], v%d offset:%d" % (36 + 8 * k, 39 + 8 * k, ar, off))
            e("ds_read_b128 v[%d:%d], v%d offset:%d" % (40 + 8 * k, 43 + 8 * k, ar, off + 16))
        e("s_waitcnt lgkmcnt(0)")
        for k, wv in enumerate(batch):
            for j in range(8):
                e("v_fmac_f32 v%d, v%d, v%d" % (28 + j, 20 + wv, 36 + 8 * k + j))
    e("v_lshlrev_b32 v18, 14, v8")
    e("v_lshl_add_u32 v18, v10, 5, v18")
    e("s_lshl_b32 s16, s4, 16")
    e("s_lshl_b32 s17, s5, 9")
    e("s_add_u32 s16, s16, s17")
    e("s_add_u32 s16, s16, %d" % AP)
    e("buffer_store_dwordx4 v[28:31], v18, %s, s16 offen sc1" % srd(SRD_WS))
    e("buffer_store_dwordx4 v[32:35], v18, %s, s16 offen offset:16 sc1" % srd(SRD_WS))
    e("v_lshlrev_b32 v18, 8, v0")
    e("s_lshl_b32 s16, s4, 10")
    e("s_lshl_b32 s17, s5, 3")
    e("s_add_u32 s16, s16, s17")
    e("s_add_u32 s16, s16, %d" % ML)
    e("s_mov_b64 exec, 0xf")
    e("buffer_store_dwordx2 v[16:17], v18, %s, s16 offen sc1" % srd(SRD_WS))
    e("s_mov_b64 exec, -1")
    e("s_mov_b32 s17, s2")
    set_flag(1)
    stamp(7)
    e("v_and_b32 v8, 31, v0")
    e("s_lshl_b32 s16, s4, 5")
    e("v_add_u32 v8, s16, v8")
    e("v_lshlrev_b32 v8, 3, v8")
    e("v_add_u32 v8, %d, v8" % (FLG + 2048))
    poll("L_poll_a", 8, 10)
    stamp(8)
    e("v_and_b32 v6, 31, v0")
    e("v_lshlrev_b32 v8, 3, v6")
    e("s_lshl_b32 s16, s6, 8")
    e("s_add_u32 s16, s16, %d" % ML)
    e("buffer_load_dwordx2 v[12:13], v8, %s, s16 offen sc1" % srd(SRD_WS))
    def apreg(i):
        return 128 + 4 * i if i < 10 else 40 + 4 * (i - 10)
    e("v_lshrrev_b32 v10, 5, v0")
    e("v_lshlrev_b32 v8, 9, v10")
    e("v_lshl_add_u32 v8, v6, 4, v8")
    e("s_lshl_b32 s16, s6, 14")
    e("s_add_u32 s16, s16, %d" % AP)
    for i in range(16):
        e("s_add_u32 s17, s16, %d" % (i * 1024))
        e("buffer_load_dwordx4 v[%d:%d], v8, %s, s17 offen sc1" % (apreg(i), apreg(i) + 3, srd(SRD_WS)))
    e("s_waitcnt vmcnt(16)")
    e("v_mov_b32 v14, v12")
    allred("v_max_f32", 14, 4, [0, 1, 2, 3, 4])
    e("v_sub_f32 v15, v12, v14")
    e("v_mul_f32 v15, 0x%x, v15" % LOG2E)
    e("v_exp_f32 v15, v15")
    e("s_nop 0")
    e("v_mul_f32 v16, v15, v13")
    allred("v_add_f32", 16, 4, [0, 1, 2, 3, 4])
    e("v_lshlrev_b32 v8, 2, v6")
    e("ds_write_b32 v8, v15 offset:%d" % WL)
    e("v_lshlrev_b32 v8, 2, v10")
    e("s_waitcnt lgkmcnt(0)")
    for i in range(16):
        e("ds_read_b32 v%d, v8 offset:%d" % (20 + i, WL + 8 * i))
    for j in range(4):
        e("v_mov_b32 v%d, 0" % (36 + j))
    e("s_waitcnt vmcnt(0) lgkmcnt(0)")
    for i in range(16):
        for j in range(4):
            e("v_fmac_f32 v%d, v%d, v%d" % (36 + j, 20 + i, apreg(i) + j))
    for j in range(4):
        allred("v_add_f32", 36 + j, 4, [5])
    e("v_rcp_f32 v17, v16")
    e("s_nop 0")
    for j in range(4):
        e("v_mul_f32 v18, v%d, v17" % (36 + j))
        e("v_fma_f32 v19, -v18, v16, v%d" % (36 + j))
        e("v_fma_f32 v%d, v19, v17, v18" % (36 + j))
    rnd_bf16_pair(36, 37, 4)
    rnd_bf16_pair(38, 39, 4)
    e("v_lshlrev_b32 v8, 4, v6")
    e("ds_write_b128 v8, v[36:39] offset:%d" % OL)
    e("v_lshrrev_b32 v8, 3, v0")
    e("v_lshlrev_b32 v8, 2, v8")
    e("s_waitcnt lgkmcnt(0)")
    for i in range(16):
        e("ds_read_b32 v%d, v8 offset:%d" % (20 + i, OL + 32 * i))
    e("s_waitcnt lgkmcnt(0)")
    gemv_rows(16, 64, 20, 48)
    e("s_lshl_b32 s16, s7, 13")
    e("s_lshl_b32 s17, s6, 8")
    e("s_add_u32 s16, s16, s17")
    e("s_add_u32 s16, s16, %d" % YA)
    e("v_lshlrev_b32 v6, 5, v0")
    e("s_mov_b64 exec, 0xff")
    e("buffer_store_dwordx4 v[48:51], v6, %s, s16 offen sc1" % srd(SRD_WS))
    e("buffer_store_dwordx4 v[52:55], v6, %s, s16 offen offset:16 sc1" % srd(SRD_WS))
    e("s_mov_b64 exec, -1")
    e("s_lshl_b32 s17, s7, 5")
    e("s_add_u32 s17, s17, s6")
    set_flag(2)
    stamp(9)
    e("s_cmp_ge_u32 s2, 8")
    e("s_cbranch_scc1 L_end")
    e("v_and_b32 v6, 15, v0")
    e("v_lshlrev_b32 v8, 3, v6")
    e("s_lshl_b32 s16, s7, 7")
    e("buffer_load_dwordx2 v[20:21], v8, %s, s16 offen" % srd(SRD_X))
    e("v_and_b32 v12, 31, v0")
    e("s_lshl_b32 s16, s7, 5")
    e("v_add_u32 v12, s16, v12")
    e("v_lshlrev_b32 v12, 3, v12")
    e("v_add_u32 v12, %d, v12" % (FLG + 4096))
    poll("L_poll_f", 12, 10)
    stamp(10)
    e("v_lshrrev_b32 v10, 4, v0")
    e("v_lshlrev_b32 v8, 8, v10")
    e("v_lshl_add_u32 v8, v6, 4, v8")
    e("s_lshl_b32 s16, s7, 13")
    for i in range(8):
        e("s_add_u32 s17, s16, %d" % (YA + i * 1024))
        e("buffer_load_dwordx4 v[%d:%d], v8, %s, s17 offen sc1" % (32 + 4 * i, 35 + 4 * i, srd(SRD_WS)))
    for i in range(8):
        e("s_add_u32 s17, s16, %d" % (YB + i * 1024))
        e("buffer_load_dwordx4 v[%d:%d], v8, %s, s17 offen sc1" % (64 + 4 * i, 67 + 4 * i, srd(SRD_WS)))
    e("s_waitcnt vmcnt(0)")
    for b in (32, 64):
        for i in range(1, 8):
            for j in range(4):
                e("v_add_f32 v%d, v%d, v%d" % (b + j, b + j, b + 4 * i + j))
        for j in range(4):
            allred("v_add_f32", b + j, 4, [4, 5])
    rnd_bf16_pair(32, 33, 4)
    rnd_bf16_pair(34, 35, 4)
    rnd_bf16_pair(64, 65, 4)
    rnd_bf16_pair(66, 67, 4)
    e("v_lshlrev_b32 v22, 16, v20")
    e("v_and_b32 v23, 0xffff0000, v20")
    e("v_lshlrev_b32 v24, 16, v21")
    e("v_and_b32 v25, 0xffff0000, v21")
    for j in range(4):
        e("v_add_f32 v%d, v%d, v%d" % (32 + j, 22 + j, 32 + j))
    rnd_bf16_pair(32, 33, 4)
    rnd_bf16_pair(34, 35, 4)
    for j in range(4):
        e("v_add_f32 v%d, v%d, v%d" % (32 + j, 32 + j, 64 + j))
    e("v_cvt_pk_bf16_f32 v36, v32, v33")
    e("v_cvt_pk_bf16_f32 v37, v34, v35")
    e("v_lshlrev_b32 v8, 3, v6")
    e("s_lshl_b32 s16, s7, 7")
    e("s_mov_b64 exec, 0xffff")
    e("buffer_store_dwordx2 v[36:37], v8, %s, s16 offen" % srd(SRD_OUT))
    e("s_mov_b64 exec, -1")
    stamp(11)

gen()
txt = "\n".join(header() + L + footer(168)) + "\n"
open(OUT, "w").write(txt)
print("wrote", OUT, len(txt), "bytes")
```

```python
import sys

NAME = "parallel_sum__gqa_block_cached__glu_gated_swiglu__decode"
OUT = "cdna_kernels/%s.s" % NAME

NT = True
PACE = 3
LAYOUT = "B"
INIT = 8
NREG = 5
SLEEP = 2
FLG = 0x180000
STAMP = False

for a in sys.argv[1:]:
    if a.startswith("nt="): NT = bool(int(a[3:]))
    elif a.startswith("pace="): PACE = int(a[5:])
    elif a.startswith("layout="): LAYOUT = a[7:]
    elif a.startswith("init="): INIT = int(a[5:])
    elif a.startswith("nreg="): NREG = int(a[5:])
    elif a.startswith("sleep="): SLEEP = int(a[6:])
    elif a.startswith("out="): OUT = a[4:]
    elif a.startswith("stamp="): STAMP = bool(int(a[6:]))

L = []
def e(s=""):
    L.append("    " + s if s and not s.endswith(":") else s)
def lab(s):
    L.append(s + ":")
def c(s):
    L.append("    ; " + s)

XN = 0
RS = XN + 2048
QL = RS + 16384
HL = QL + 1024
WL = HL + 256
OL = WL + 128
SC = OL + 512
RINGB = 24576
LDS_TOTAL = RINGB + 8 * 16384

QP = 0
GU = 0x10000
AP = 0x20000
ML = 0xA0000
YA = 0xA2000
YB = 0xB2000
TS = 0x100000

SRD_X, SRD_K, SRD_V, SRD_WQ, SRD_WO, SRD_W13, SRD_W2, SRD_OUT, SRD_DBG, SRD_WS = 40, 44, 48, 52, 56, 60, 64, 68, 72, 76
def srd(n): return "s[%d:%d]" % (n, n + 3)

LOG2E = 0x3fb8aa3b
SCALE = 0x3db504f3
EPS = 0x3727c5ac

def header():
    h = []
    h.append("; @launch grid=(256,1,1) block=(576,1,1) lds=%d" % LDS_TOTAL)
    h.append('.amdgcn_target "amdgcn-amd-amdhsa--gfx950"')
    h.append(".text")
    h.append(".globl %s_kernel" % NAME)
    h.append(".p2align 8")
    h.append(".type %s_kernel,@function" % NAME)
    h.append("%s_kernel:" % NAME)
    return h

def footer(nv):
    f = []
    f.append(".section .rodata,\"a\"")
    f.append(".p2align 6")
    f.append(".amdhsa_kernel %s_kernel" % NAME)
    f.append("  .amdhsa_next_free_vgpr %d" % nv)
    f.append("  .amdhsa_next_free_sgpr 102")
    f.append("  .amdhsa_accum_offset %d" % ((nv + 3) // 4 * 4))
    f.append("  .amdhsa_group_segment_fixed_size 0")
    f.append("  .amdhsa_kernarg_size 96")
    f.append("  .amdhsa_user_sgpr_count 2")
    f.append("  .amdhsa_user_sgpr_kernarg_segment_ptr 1")
    f.append("  .amdhsa_system_sgpr_workgroup_id_x 1")
    f.append(".end_amdhsa_kernel")
    return f

def build_srd(d, p, nbytes):
    e("s_mov_b32 s%d, s%d" % (d, p))
    e("s_mov_b32 s%d, s%d" % (d + 1, p + 1))
    e("s_mov_b32 s%d, 0x%x" % (d + 2, nbytes))
    e("s_mov_b32 s%d, 0x00020000" % (d + 3))

def rnd_bf16_pair(a, b, t):
    e("v_cvt_pk_bf16_f32 v%d, v%d, v%d" % (t, a, b))
    e("v_lshlrev_b32 v%d, 16, v%d" % (a, t))
    e("v_and_b32 v%d, 0xffff0000, v%d" % (b, t))
def rnd_bf16(a, t):
    e("v_cvt_pk_bf16_f32 v%d, v%d, v%d" % (t, a, a))
    e("v_lshlrev_b32 v%d, 16, v%d" % (a, t))

def dpp(op, d, a, b, ctrl):
    e("%s_dpp v%d, v%d, v%d %s row_mask:0xf bank_mask:0xf" % (op, d, a, b, ctrl))

def allred(op, v, t, bits):
    for b in bits:
        if b == 0:
            e("s_nop 1"); dpp(op, v, v, v, "quad_perm:[1,0,3,2]")
        elif b == 1:
            e("s_nop 1"); dpp(op, v, v, v, "quad_perm:[2,3,0,1]")
        elif b == 2:
            e("s_nop 1"); dpp(op, v, v, v, "row_ror:4")
        elif b == 3:
            e("s_nop 1"); dpp(op, v, v, v, "row_ror:8")
        elif b == 4:
            e("v_mov_b32 v%d, v%d" % (t, v)); e("s_nop 1")
            e("v_permlane16_swap_b32 v%d, v%d" % (v, t)); e("s_nop 1")
            e("%s v%d, v%d, v%d" % (op, v, v, t))
        elif b == 5:
            e("v_mov_b32 v%d, v%d" % (t, v)); e("s_nop 1")
            e("v_permlane32_swap_b32 v%d, v%d" % (v, t)); e("s_nop 1")
            e("%s v%d, v%d, v%d" % (op, v, v, t))

stamp_idx = [0]
ROLE = ["w"]
def stamp(slot):
    if not STAMP:
        return
    e("s_memrealtime s[90:91]")
    e("s_waitcnt lgkmcnt(0)")
    a, b, ad = (160, 161, 162) if ROLE[0] == "w" else (2, 3, 1)
    e("v_mov_b32 v%d, s90" % a)
    e("v_mov_b32 v%d, s91" % b)
    e("s_lshl_b32 s92, s2, 4")
    e("s_add_u32 s92, s92, s3")
    e("s_lshl_b32 s92, s92, 7")
    e("s_add_u32 s92, s92, %d" % (TS + slot * 8))
    e("v_mov_b32 v%d, s92" % ad)
    e("buffer_store_dwordx2 v[%d:%d], v%d, %s, 0 offen" % (a, b, ad, srd(SRD_WS)))

def stampS(slot):
    if not STAMP: return
    r = 80 + 2 * (slot - 4)
    e("s_memrealtime s[%d:%d]" % (r, r + 1))
    e("s_waitcnt lgkmcnt(0)")
def stampFlush(slots):
    if not STAMP: return
    for slot in slots:
        r = 80 + 2 * (slot - 4)
        e("v_mov_b32 v160, s%d" % r)
        e("v_mov_b32 v161, s%d" % (r + 1))
        e("s_lshl_b32 s92, s2, 4")
        e("s_add_u32 s92, s92, s3")
        e("s_lshl_b32 s92, s92, 7")
        e("s_add_u32 s92, s92, %d" % (TS + slot * 8))
        e("v_mov_b32 v162, s92")
        e("buffer_store_dwordx2 v[160:161], v162, %s, 0 offen" % srd(SRD_WS))
        e("s_nop 4")

def gen():
    e("s_cmp_ge_u32 s2, 256")
    e("s_cbranch_scc1 L_end")
    e("s_load_dwordx16 s[16:31], s[0:1], 0")
    e("s_load_dwordx8 s[32:39], s[0:1], 64")
    e("v_lshrrev_b32 v1, 6, v0")
    e("v_and_b32 v0, 63, v0")
    e("s_nop 0")
    e("v_readfirstlane_b32 s3, v1")
    e("s_lshr_b32 s4, s2, 5")
    e("s_and_b32 s5, s2, 31")
    e("s_lshr_b32 s6, s2, 3")
    e("s_and_b32 s7, s2, 7")
    e("s_sub_u32 s8, s2, 224")
    e("s_cmp_ge_u32 s2, 224")
    e("s_cselect_b32 s8, s8, s2")
    e("s_cmp_ge_u32 s8, 112")
    e("s_cselect_b32 s9, 1, 0")
    e("s_mul_i32 s10, s9, 112")
    e("s_sub_u32 s10, s8, s10")
    e("s_mov_b32 s11, 0")
    for t in (28, 56, 84):
        e("s_cmp_ge_u32 s10, %d" % t)
        e("s_addc_u32 s11, s11, 0")
    e("s_mul_i32 s12, s11, 28")
    e("s_sub_u32 s12, s10, s12")
    e("s_waitcnt lgkmcnt(0)")
    build_srd(SRD_X, 16, 1024)
    build_srd(SRD_K, 18, 134217728)
    build_srd(SRD_V, 20, 134217728)
    build_srd(SRD_WQ, 22, 4194304)
    build_srd(SRD_WO, 24, 4194304)
    e("s_cmp_eq_u32 s9, 0")
    e("s_cselect_b32 s%d, s28, s30" % SRD_W13)
    e("s_cselect_b32 s%d, s29, s31" % (SRD_W13 + 1))
    e("s_mov_b32 s%d, 0x%x" % (SRD_W13 + 2, 1835008))
    e("s_mov_b32 s%d, 0x00020000" % (SRD_W13 + 3))
    build_srd(SRD_W2, 32, 1835008)
    build_srd(SRD_OUT, 34, 1024)
    build_srd(SRD_DBG, 36, 256)
    build_srd(SRD_WS, 38, 536870912)
    e("s_cmp_eq_u32 s3, 8")
    e("s_cbranch_scc1 L_service")
    worker()
    service()
    lab("L_end")
    e("s_endpgm")

USTRIDE = {"A": 4096, "B": 32768, "C": 1 << 20}
if LAYOUT.startswith("I"):
    IL = int(LAYOUT[1:])
    USTRIDE[LAYOUT] = IL * 32768
if LAYOUT == "D":
    USTRIDE["D"] = 0
def dma_setup(u):
    isK = u < 16
    uu = u if isK else u - 16
    if LAYOUT in ("E", "F"):
        pass
    elif LAYOUT in ("G", "H"):
        if LAYOUT == "G":
            e("s_add_u32 s21, s3, %d" % (uu & 7))
            e("s_and_b32 s21, s21, 7")
        else:
            e("s_xor_b32 s21, s3, %d" % (uu & 7))
        e("s_lshl_b32 s21, s21, 12")
        e("s_add_u32 s20, s14, s21")
        e("s_add_u32 s20, s20, %d" % (uu * 32768))
    elif LAYOUT == "D":
        e("s_add_u32 s20, s14, %d" % ((uu // 2) * 65536 + (uu % 2) * 4096))
    else:
        e("s_add_u32 s20, s14, %d" % (uu * USTRIDE[LAYOUT]))
    e("s_add_u32 m0, s15, %d" % ((u % 4) * 4096))
    e("s_nop 0")
def dma_one(u, j):
    isK = u < 16
    uu = u if isK else u - 16
    vo = (2 + j) if isK else (6 + (j & 1))
    if LAYOUT == "E":
        e("s_add_u32 s20, s14, %d" % ((4 * uu + j) * 8192 - j * 1024))
    elif LAYOUT == "F":
        if j % 2 == 0:
            e("s_add_u32 s20, s14, %d" % ((2 * uu + j // 2) * 16384 - (j // 2) * 2048))
    e("buffer_load_dwordx4 v%d, %s, s20 offen offset:%d%s lds" %
      (vo, srd(SRD_K if isK else SRD_V), j * 1024, " nt" if NT else ""))
def dma_unit(u):
    dma_setup(u)
    for j in range(4):
        dma_one(u, j)

def worker():
    c("================= worker waves (s3 = 0..7) =================")
    stamp(0)
    e("v_lshlrev_b32 v30, 4, v0")
    e("buffer_load_dwordx4 v[32:35], v30, %s, 0 offen" % srd(SRD_X))
    e("v_lshrrev_b32 v24, 3, v0")
    e("v_and_b32 v25, 7, v0")
    e("v_lshlrev_b32 v26, 13, v24")
    e("v_lshl_add_u32 v26, v25, 4, v26")
    e("s_lshr_b32 s16, s5, 3")
    e("s_and_b32 s17, s5, 7")
    e("s_lshl_b32 s18, s16, 7")
    e("s_lshl_b32 s19, s3, 4")
    e("s_add_u32 s18, s18, s19")
    e("s_lshl_b32 s19, s18, 13")
    e("s_lshl_b32 s20, s4, 10")
    e("s_add_u32 s19, s19, s20")
    e("s_lshl_b32 s20, s17, 7")
    e("s_add_u32 s19, s19, s20")
    e("s_add_u32 s20, s19, 65536")
    e("buffer_load_dwordx4 v[36:39], v26, %s, s19 offen" % srd(SRD_WQ))
    e("buffer_load_dwordx4 v[40:43], v26, %s, s20 offen" % srd(SRD_WQ))
    e("s_movk_i32 s21, 3584")
    e("v_mul_lo_u32 v27, v24, s21")
    e("v_lshl_add_u32 v27, v25, 4, v27")
    e("s_lshl_b32 s22, s11, 7")
    e("s_lshl_b32 s23, s3, 4")
    e("s_add_u32 s22, s22, s23")
    e("s_mul_i32 s23, s22, 3584")
    e("s_lshl_b32 s24, s12, 7")
    e("s_add_u32 s23, s23, s24")
    e("s_add_u32 s24, s23, %d" % (8 * 3584))
    e("buffer_load_dwordx4 v[44:47], v27, %s, s23 offen" % srd(SRD_W13))
    e("buffer_load_dwordx4 v[48:51], v27, %s, s24 offen" % srd(SRD_W13))
    if LAYOUT == "A":
        e("s_lshl_b32 s14, s2, 19")
        e("s_lshl_b32 s15, s3, 16")
        e("s_add_u32 s14, s14, s15")
    elif LAYOUT == "B":
        e("s_lshl_b32 s14, s2, 19")
        e("s_lshl_b32 s15, s3, 12")
        e("s_add_u32 s14, s14, s15")
    elif LAYOUT == "D":
        e("s_lshl_b32 s14, s2, 19")
        e("s_lshl_b32 s15, s3, 13")
        e("s_add_u32 s14, s14, s15")
    elif LAYOUT in ("G", "H"):
        e("s_lshl_b32 s14, s2, 19")
    elif LAYOUT == "E":
        e("s_lshl_b32 s14, s2, 19")
        e("s_lshl_b32 s15, s3, 10")
        e("s_add_u32 s14, s14, s15")
    elif LAYOUT == "F":
        e("s_lshl_b32 s14, s2, 19")
        e("s_lshl_b32 s15, s3, 11")
        e("s_add_u32 s14, s14, s15")
    elif LAYOUT.startswith("I"):
        import math
        lg = int(math.log2(IL))
        e("s_lshr_b32 s14, s2, %d" % lg)
        e("s_lshl_b32 s14, s14, %d" % (19 + lg))
        e("s_and_b32 s15, s2, %d" % (IL - 1))
        e("s_lshl_b32 s15, s15, 15")
        e("s_add_u32 s14, s14, s15")
        e("s_lshl_b32 s15, s3, 12")
        e("s_add_u32 s14, s14, s15")
    else:
        e("s_lshl_b32 s14, s4, 24")
        e("s_lshl_b32 s15, s5, 15")
        e("s_add_u32 s14, s14, s15")
        e("s_lshl_b32 s15, s3, 12")
        e("s_add_u32 s14, s14, s15")
    e("s_lshl_b32 s15, s3, 14")
    e("s_add_u32 s15, s15, %d" % RINGB)
    e("v_lshrrev_b32 v20, 4, v0")
    e("v_and_b32 v21, 15, v0")
    e("v_lshlrev_b32 v22, 8, v20")
    e("v_xor_b32 v23, v21, v20")
    for j in range(4):
        e("v_xor_b32 v28, %d, v23" % (4 * j))
        e("v_lshl_add_u32 v%d, v28, 4, v22" % (2 + j))
    e("v_lshlrev_b32 v28, 1, v20")
    e("v_xor_b32 v28, v21, v28")
    e("v_lshl_add_u32 v6, v28, 4, v22")
    e("v_xor_b32 v28, 8, v28")
    e("v_lshl_add_u32 v7, v28, 4, v22")
    for i in range(INIT):
        if i % 4 == 0:
            dma_setup(i // 4)
        dma_one(i // 4, i % 4)
    nd = INIT
    e("v_lshlrev_b32 v29, 8, v21")
    e("v_add_u32 v29, s15, v29")
    for s in range(4):
        e("v_xor_b32 v28, %d, v23" % (4 * s))
        e("v_lshl_add_u32 v%d, v28, 4, v29" % (8 + s))
    e("v_lshrrev_b32 v28, 2, v21")
    e("v_lshl_add_u32 v28, v20, 2, v28")
    e("v_lshlrev_b32 v29, 8, v28")
    e("v_add_u32 v29, s15, v29")
    e("v_and_b32 v28, 7, v28")
    e("v_lshlrev_b32 v28, 1, v28")
    e("v_and_b32 v31, 3, v21")
    e("v_lshrrev_b32 v52, 1, v31")
    e("v_or_b32 v28, v28, v52")
    e("v_and_b32 v31, 1, v31")
    e("v_lshl_add_u32 v29, v31, 3, v29")
    for D in range(8):
        e("v_xor_b32 v52, %d, v28" % (2 * D))
        e("v_lshl_add_u32 v%d, v52, 4, v29" % (12 + D))
    e("s_waitcnt vmcnt(%d)" % (4 + nd))
    stampS(4)
    for j in range(4):
        e("v_lshlrev_b32 v%d, 16, v%d" % (56 + 2 * j, 32 + j))
        e("v_and_b32 v%d, 0xffff0000, v%d" % (57 + 2 * j, 32 + j))
    e("v_add_f32 v64, v56, v57")
    for j in range(2, 8):
        e("v_add_f32 v64, v64, v%d" % (56 + j))
    allred("v_add_f32", 64, 65, [0, 1, 2, 3, 4, 5])
    e("v_mul_f32 v64, 0x3b000000, v64")
    for j in range(8):
        e("v_sub_f32 v%d, v%d, v64" % (66 + j, 56 + j))
    e("v_mul_f32 v74, v66, v66")
    for j in range(1, 8):
        e("v_fmac_f32 v74, v%d, v%d" % (66 + j, 66 + j))
    allred("v_add_f32", 74, 65, [0, 1, 2, 3, 4, 5])
    e("v_mul_f32 v74, 0x3b000000, v74")
    rnd_bf16_pair(64, 74, 65)
    e("v_add_f32 v74, 0x%x, v74" % EPS)
    rnd_bf16(74, 65)
    e("v_sqrt_f32 v74, v74")
    e("s_nop 0")
    rnd_bf16(74, 65)
    e("v_rcp_f32 v75, v74")
    for j in range(8):
        e("v_sub_f32 v%d, v%d, v64" % (56 + j, 56 + j))
    for j in range(0, 8, 2):
        rnd_bf16_pair(56 + j, 57 + j, 65)
    for j in range(8):
        e("v_mul_f32 v%d, v%d, v75" % (66 + j, 56 + j))
    for j in range(8):
        e("v_fma_f32 v%d, -v%d, v74, v%d" % (76 + j, 66 + j, 56 + j))
    for j in range(8):
        e("v_fma_f32 v%d, v%d, v75, v%d" % (56 + j, 76 + j, 66 + j))
    for j in range(0, 8, 2):
        rnd_bf16_pair(56 + j, 57 + j, 65)
    e("v_lshlrev_b32 v65, 5, v0")
    e("ds_write_b128 v65, v[56:59] offset:%d" % XN)
    e("ds_write_b128 v65, v[60:63] offset:%d" % (XN + 16))
    e("v_add_u32 v65, s18, v24")
    e("v_lshlrev_b32 v65, 2, v65")
    e("v_add_u32 v66, s22, v24")
    e("v_lshlrev_b32 v66, 2, v66")
    e("s_waitcnt lgkmcnt(0)")
    e("ds_read_b32 v68, v65 offset:%d" % XN)
    e("ds_read_b32 v69, v65 offset:%d" % (XN + 32))
    e("ds_read_b32 v70, v66 offset:%d" % XN)
    e("ds_read_b32 v71, v66 offset:%d" % (XN + 32))
    for j in range(16):
        e("v_mov_b32 v%d, 0" % (80 + j))
    e("s_waitcnt vmcnt(%d) lgkmcnt(0)" % nd)
    stampS(5)
    for mat in range(2):
        for row in range(2):
            wbase = 36 + 8 * mat + 4 * row
            xr = 68 + 2 * mat + row
            for j in range(4):
                e("v_lshlrev_b32 v72, 16, v%d" % (wbase + j))
                e("v_and_b32 v73, 0xffff0000, v%d" % (wbase + j))
                e("v_fmac_f32 v%d, v%d, v72" % (80 + 8 * mat + 2 * j, xr))
                e("v_fmac_f32 v%d, v%d, v73" % (81 + 8 * mat + 2 * j, xr))
    e("s_nop 1")
    for j in range(16):
        dpp("v_add_f32", 80 + j, 80 + j, 80 + j, "row_ror:8")
    e("s_lshl_b32 s16, s3, 10")
    e("v_lshl_add_u32 v65, v25, 5, v22")
    e("v_add_u32 v65, s16, v65")
    e("ds_write_b128 v65, v[80:83] offset:%d" % RS)
    e("ds_write_b128 v65, v[84:87] offset:%d" % (RS + 16))
    e("ds_write_b128 v65, v[88:91] offset:%d" % (RS + 8192))
    e("ds_write_b128 v65, v[92:95] offset:%d" % (RS + 8192 + 16))
    e("s_waitcnt lgkmcnt(0)")
    stampS(6)
    e("s_barrier")
    stamp(1)
    stampFlush([4, 5, 6])
    for i in range(INIT, 4 * (4 + NREG)):
        u = i // 4
        e("s_waitcnt vmcnt(%d)" % (PACE - 1))
        if i % 4 == 0 and u >= 4:
            pu = u - 4
            for sx in range(4):
                e("ds_read_b128 v[%d:%d], v%d offset:%d" % (32 + 16 * pu + 4 * sx, 35 + 16 * pu + 4 * sx, 8 + sx, (pu % 4) * 4096))
            e("s_waitcnt lgkmcnt(0)")
        if i % 4 == 0 or i == INIT:
            dma_setup(u)
        dma_one(u, i % 4)
    e("s_barrier")
    stamp(2)
    e("v_and_b32 v28, 3, v21")
    e("v_lshlrev_b32 v28, 8, v28")
    e("v_lshl_add_u32 v28, v20, 4, v28")
    for sx in range(4):
        e("ds_read_b128 v[%d:%d], v28 offset:%d" % (112 + 4 * sx, 115 + 4 * sx, QL + 64 * sx))
    e("v_lshrrev_b32 v29, 2, v21")
    for T in range(4):
        e("v_cmp_eq_u32 s[%d:%d], %d, v29" % (24 + 2 * T, 25 + 2 * T, T))
    e("s_waitcnt lgkmcnt(0)")
    SB = 144
    for u in range(16):
        tg, T = u // 4, u % 4
        for k in range(16):
            e("v_cndmask_b32 v%d, 0, v%d, s[%d:%d]" % (128 + k, 112 + k, 24 + 2 * T, 25 + 2 * T))
        if u < NREG:
            kb = 32 + 16 * u
            e("s_nop 1")
        else:
            kb = 32
            e("s_waitcnt vmcnt(12)")
            for sx in range(4):
                e("ds_read_b128 v[%d:%d], v%d offset:%d" % (32 + 4 * sx, 35 + 4 * sx, 8 + sx, (u % 4) * 4096))
            e("s_waitcnt lgkmcnt(0)")
            dma_unit(u + 4)
        for sx in range(4):
            cc = "0" if (T == 0 and sx == 0) else "v[%d:%d]" % (SB + 4 * tg, SB + 4 * tg + 3)
            e("v_mfma_f32_16x16x32_bf16 v[%d:%d], v[%d:%d], v[%d:%d], %s" %
              (SB + 4 * tg, SB + 4 * tg + 3, kb + 4 * sx, kb + 3 + 4 * sx, 128 + 4 * sx, 131 + 4 * sx, cc))
    e("s_nop 7")
    e("s_nop 1")
    for k in range(0, 16, 2):
        rnd_bf16_pair(SB + k, SB + k + 1, 28)
    for k in range(16):
        e("v_mul_f32 v%d, 0x%x, v%d" % (SB + k, SCALE, SB + k))
    for k in range(0, 16, 2):
        rnd_bf16_pair(SB + k, SB + k + 1, 28)
    e("v_max3_f32 v52, v%d, v%d, v%d" % (SB, SB + 1, SB + 2))
    for k in range(3, 15, 2):
        e("v_max3_f32 v52, v52, v%d, v%d" % (SB + k, SB + k + 1))
    e("v_max_f32 v52, v52, v%d" % (SB + 15))
    allred("v_max_f32", 52, 28, [2, 3, 4, 5])
    e("s_mov_b32 s16, 0x%x" % LOG2E)
    for k in range(16):
        e("v_sub_f32 v%d, v%d, v52" % (SB + k, SB + k))
    for k in range(16):
        e("v_mul_f32 v%d, s16, v%d" % (SB + k, SB + k))
    for k in range(16):
        e("v_exp_f32 v%d, v%d" % (SB + k, SB + k))
    e("s_nop 0")
    e("v_add_f32 v53, v%d, v%d" % (SB, SB + 1))
    for k in range(2, 16):
        e("v_add_f32 v53, v53, v%d" % (SB + k))
    allred("v_add_f32", 53, 28, [2, 3, 4, 5])
    PB = 112
    for tg in range(4):
        e("v_cvt_pk_bf16_f32 v%d, v%d, v%d" % (PB + 2 * tg, SB + 4 * tg, SB + 4 * tg + 1))
        e("v_cvt_pk_bf16_f32 v%d, v%d, v%d" % (PB + 2 * tg + 1, SB + 4 * tg + 2, SB + 4 * tg + 3))
    for uv in range(16):
        u = 16 + uv
        tg, T = uv // 4, uv % 4
        rem = min(u + 3, 31) - u
        e("s_waitcnt vmcnt(%d)" % (4 * rem))
        for D in range(8):
            e("ds_read_b64_tr_b16 v[%d:%d], v%d offset:%d" % (32 + 2 * D, 33 + 2 * D, 12 + D, (u % 4) * 4096))
        pa = 48 + 2 * (uv & 1)
        if T == 0:
            e("v_mov_b32 v%d, v%d" % (pa, PB + 2 * tg))
            e("v_mov_b32 v%d, v%d" % (pa + 1, PB + 2 * tg + 1))
        else:
            e("v_mov_b32_dpp v%d, v%d row_shl:%d row_mask:0xf bank_mask:0xf" % (pa, PB + 2 * tg, 4 * T))
            e("v_mov_b32_dpp v%d, v%d row_shl:%d row_mask:0xf bank_mask:0xf" % (pa + 1, PB + 2 * tg + 1, 4 * T))
        e("s_waitcnt lgkmcnt(0)")
        if u + 4 < 32:
            dma_unit(u + 4)
        else:
            e("s_nop 1")
        for D in range(8):
            cc = "0" if uv == 0 else "v[%d:%d]" % (56 + 4 * D, 59 + 4 * D)
            e("v_mfma_f32_16x16x16_bf16 v[%d:%d], v[%d:%d], v[%d:%d], %s" %
              (56 + 4 * D, 59 + 4 * D, pa, pa + 1, 32 + 2 * D, 33 + 2 * D, cc))
    stamp(3)
    e("s_nop 7")
    e("s_nop 1")
    e("v_lshlrev_b32 v28, 2, v0")
    e("v_add_u32 v28, s15, v28")
    e("s_mov_b64 exec, 0xffff")
    for D in range(8):
        for h in range(4):
            e("ds_write_b32 v28, v%d offset:%d" % (56 + 4 * D + h, h * 512 + D * 64))
    e("s_mov_b64 exec, 0xf")
    e("v_lshlrev_b32 v28, 3, v0")
    e("v_add_u32 v28, s15, v28")
    e("ds_write_b64 v28, v[52:53] offset:2048")
    e("s_mov_b64 exec, -1")
    e("s_waitcnt lgkmcnt(0)")
    e("s_barrier")
    e("s_endpgm")

def poll(label, vaddr, vtmp):
    e("s_mov_b32 s16, 0")
    lab(label)
    e("buffer_load_dwordx2 v[%d:%d], v%d, %s, 0 offen sc1" % (vtmp, vtmp + 1, vaddr, srd(SRD_WS)))
    e("s_waitcnt vmcnt(0)")
    e("v_cmp_ne_u64 vcc, s[94:95], v[%d:%d]" % (vtmp, vtmp + 1))
    e("s_nop 1")
    e("s_cbranch_vccz %s_done" % label)
    e("s_add_u32 s16, s16, 1")
    e("s_cmp_ge_u32 s16, 0x40000")
    e("s_cbranch_scc1 %s_done" % label)
    e("s_sleep %d" % SLEEP)
    e("s_branch %s" % label)
    lab(label + "_done")

def set_flag(ph):
    e("s_waitcnt vmcnt(0)")
    e("v_mov_b32 v2, s94")
    e("v_mov_b32 v3, s95")
    e("s_lshl_b32 s17, s17, 3")
    e("s_add_u32 s17, s17, %d" % (FLG + ph * 2048))
    e("v_mov_b32 v1, s17")
    e("s_mov_b64 exec, 1")
    e("buffer_store_dwordx2 v[2:3], v1, %s, 0 offen sc1" % srd(SRD_WS))
    e("s_mov_b64 exec, -1")

def gemv_rows(nrows, wbase, xbase, acc):
    for j in range(8):
        e("v_mov_b32 v%d, 0" % (acc + j))
    for i in range(nrows):
        for j in range(4):
            e("v_lshlrev_b32 v4, 16, v%d" % (wbase + 4 * i + j))
            e("v_and_b32 v5, 0xffff0000, v%d" % (wbase + 4 * i + j))
            e("v_fmac_f32 v%d, v%d, v4" % (acc + 2 * j, xbase + i))
            e("v_fmac_f32 v%d, v%d, v5" % (acc + 2 * j + 1, xbase + i))
    for j in range(8):
        allred("v_add_f32", acc + j, 4, [3, 4, 5])

def service():
    lab("L_service")
    ROLE[0] = "s"
    c("================= service wave =================")
    stamp(0)
    e("v_lshrrev_b32 v24, 3, v0")
    e("v_and_b32 v25, 7, v0")
    e("v_mov_b32 v1, 0")
    e("s_cmp_lg_u32 s2, 0")
    e("s_cbranch_scc1 L_nonce_wait")
    e("s_memrealtime s[94:95]")
    e("s_waitcnt lgkmcnt(0)")
    e("s_or_b32 s94, s94, 1")
    e("v_mov_b32 v2, s94")
    e("v_mov_b32 v3, s95")
    e("s_mov_b64 exec, 1")
    e("buffer_store_dwordx2 v[2:3], v1, %s, 0 offen sc1" % srd(SRD_DBG))
    e("s_mov_b64 exec, -1")
    lab("L_nonce_wait")
    e("s_barrier")
    stamp(1)
    e("v_lshlrev_b32 v6, 2, v0")
    for mat in range(2):
        for sl in range(32):
            e("ds_read_b32 v%d, v6 offset:%d" % (32 + 32 * mat + sl, RS + mat * 8192 + sl * 256))
        e("s_waitcnt lgkmcnt(0)")
    for mat in range(2):
        b = 32 + 32 * mat
        for st in (16, 8, 4, 2, 1):
            for k in range(st):
                e("v_add_f32 v%d, v%d, v%d" % (b + k, b + k, b + k + st))
    e("s_lshr_b32 s16, s5, 3")
    e("s_lshl_b32 s16, s16, 14")
    e("s_lshl_b32 s17, s4, 11")
    e("s_add_u32 s16, s16, s17")
    e("s_and_b32 s17, s5, 7")
    e("s_lshl_b32 s17, s17, 8")
    e("s_add_u32 s16, s16, s17")
    e("s_add_u32 s16, s16, %d" % QP)
    e("buffer_store_dword v32, v6, %s, s16 offen sc1" % srd(SRD_WS))
    e("s_mul_i32 s16, s9, %d" % (4 * 1792 * 4))
    e("s_mul_i32 s17, s11, %d" % (1792 * 4))
    e("s_add_u32 s16, s16, s17")
    e("s_lshl_b32 s17, s12, 8")
    e("s_add_u32 s16, s16, s17")
    e("s_add_u32 s16, s16, %d" % GU)
    e("buffer_store_dword v64, v6, %s, s16 offen sc1" % srd(SRD_WS))
    e("v_mov_b32 v1, 0")
    e("s_mov_b32 s16, 0")
    lab("L_nonce_loop")
    e("buffer_load_dwordx2 v[2:3], v1, %s, 0 offen sc1" % srd(SRD_DBG))
    e("s_waitcnt vmcnt(0)")
    e("v_readfirstlane_b32 s94, v2")
    e("v_readfirstlane_b32 s95, v3")
    e("s_nop 3")
    e("s_and_b32 s17, s94, 1")
    e("s_cmp_lg_u32 s17, 0")
    e("s_cbranch_scc1 L_nonce_done")
    e("s_add_u32 s16, s16, 1")
    e("s_cmp_ge_u32 s16, 0x40000")
    e("s_cbranch_scc1 L_nonce_done")
    e("s_sleep 4")
    e("s_branch L_nonce_loop")
    lab("L_nonce_done")
    stamp(12)
    e("s_mov_b32 s17, s2")
    set_flag(0)
    stamp(2)
    e("v_and_b32 v8, 31, v0")
    e("s_lshl_b32 s16, s4, 5")
    e("v_add_u32 v8, s16, v8")
    e("v_lshlrev_b32 v8, 3, v8")
    e("v_add_u32 v8, %d, v8" % FLG)
    poll("L_poll_q", 8, 10)
    stamp(3)
    e("v_lshlrev_b32 v6, 5, v0")
    e("s_lshl_b32 s16, s4, 11")
    e("s_add_u32 s16, s16, %d" % QP)
    for kq in range(4):
        e("s_add_u32 s17, s16, %d" % (kq * 16384))
        e("buffer_load_dwordx4 v[%d:%d], v6, %s, s17 offen sc1" % (32 + 8 * kq, 35 + 8 * kq, srd(SRD_WS)))
        e("buffer_load_dwordx4 v[%d:%d], v6, %s, s17 offen offset:16 sc1" % (36 + 8 * kq, 39 + 8 * kq, srd(SRD_WS)))
    e("s_waitcnt vmcnt(0)")
    for kq in range(1, 4):
        for j in range(8):
            e("v_add_f32 v%d, v%d, v%d" % (32 + j, 32 + j, 32 + 8 * kq + j))
    for j in range(4):
        e("v_cvt_pk_bf16_f32 v%d, v%d, v%d" % (40 + j, 32 + 2 * j, 33 + 2 * j))
    e("v_lshlrev_b32 v6, 4, v0")
    e("ds_write_b128 v6, v[40:43] offset:%d" % QL)
    e("s_waitcnt lgkmcnt(0)")
    e("s_barrier")
    stamp(4)
    for k in range(4):
        e("v_lshlrev_b32 v8, 3, v0")
        e("v_add_u32 v8, %d, v8" % (FLG + 512 * k))
        poll("L_poll_b%d" % k, 8, 10)
    e("v_lshlrev_b32 v7, 10, v24")
    e("v_lshl_add_u32 v7, v25, 4, v7")
    e("s_mul_i32 s16, s6, %d" % (56 * 1024))
    e("s_lshl_b32 s17, s7, 7")
    e("s_add_u32 s16, s16, s17")
    for i in range(7):
        e("s_add_u32 s17, s16, %d" % (i * 8192))
        e("buffer_load_dwordx4 v[%d:%d], v7, %s, s17 offen" % (64 + 4 * i, 67 + 4 * i, srd(SRD_W2)))
    e("v_min_u32 v6, 55, v0")
    e("s_mul_i32 s16, s6, 56")
    e("v_add_u32 v6, s16, v6")
    e("v_lshlrev_b32 v6, 2, v6")
    for m in range(2):
        for kq in range(4):
            e("s_mov_b32 s17, %d" % (GU + (m * 4 + kq) * 1792 * 4))
            e("buffer_load_dword v%d, v6, %s, s17 offen sc1" % (32 + 4 * m + kq, srd(SRD_WS)))
    e("s_waitcnt vmcnt(0)")
    for m in range(2):
        for kq in range(1, 4):
            e("v_add_f32 v%d, v%d, v%d" % (32 + 4 * m, 32 + 4 * m, 32 + 4 * m + kq))
    rnd_bf16_pair(32, 36, 4)
    e("v_mul_f32 v33, 0x%x, v32" % (LOG2E | 0x80000000))
    e("v_exp_f32 v33, v33")
    e("s_nop 0")
    e("v_add_f32 v33, 1.0, v33")
    e("v_rcp_f32 v34, v33")
    e("s_nop 0")
    e("v_mul_f32 v35, v32, v34")
    rnd_bf16(35, 4)
    e("v_mul_f32 v35, v35, v36")
    rnd_bf16(35, 4)
    e("v_lshlrev_b32 v6, 2, v0")
    e("ds_write_b32 v6, v35 offset:%d" % HL)
    e("v_lshlrev_b32 v6, 2, v24")
    e("s_waitcnt lgkmcnt(0)")
    for i in range(7):
        e("ds_read_b32 v%d, v6 offset:%d" % (32 + i, HL + 32 * i))
    e("s_waitcnt lgkmcnt(0)")
    gemv_rows(7, 64, 32, 40)
    e("s_lshl_b32 s16, s7, 13")
    e("s_lshl_b32 s17, s6, 8")
    e("s_add_u32 s16, s16, s17")
    e("s_add_u32 s16, s16, %d" % YB)
    e("v_lshlrev_b32 v6, 5, v0")
    e("s_mov_b64 exec, 0xff")
    e("buffer_store_dwordx4 v[40:43], v6, %s, s16 offen sc1" % srd(SRD_WS))
    e("buffer_store_dwordx4 v[44:47], v6, %s, s16 offen offset:16 sc1" % srd(SRD_WS))
    e("s_mov_b64 exec, -1")
    e("s_lshl_b32 s16, s6, 17")
    e("s_lshl_b32 s17, s7, 7")
    e("s_add_u32 s16, s16, s17")
    for i in range(16):
        e("s_add_u32 s17, s16, %d" % (i * 8192))
        e("buffer_load_dwordx4 v[%d:%d], v7, %s, s17 offen" % (64 + 4 * i, 67 + 4 * i, srd(SRD_WO)))
    stamp(5)
    e("s_barrier")
    stamp(6)
    e("v_and_b32 v6, 31, v0")
    e("v_lshrrev_b32 v8, 2, v6")
    e("v_lshlrev_b32 v8, 14, v8")
    e("v_and_b32 v10, 3, v0")
    e("v_lshl_add_u32 v8, v10, 3, v8")
    e("ds_read_b64 v[12:13], v8 offset:%d" % (RINGB + 2048))
    e("s_waitcnt lgkmcnt(0)")
    e("v_mov_b32 v14, v12")
    allred("v_max_f32", 14, 4, [2, 3, 4])
    e("v_sub_f32 v15, v12, v14")
    e("v_mul_f32 v15, 0x%x, v15" % LOG2E)
    e("v_exp_f32 v15, v15")
    e("s_nop 0")
    e("v_mul_f32 v16, v15, v13")
    allred("v_add_f32", 16, 4, [2, 3, 4])
    e("v_lshlrev_b32 v8, 2, v6")
    e("ds_write_b32 v8, v15 offset:%d" % SC)
    e("v_mov_b32 v17, v16")
    e("v_mov_b32 v16, v14")
    e("v_lshrrev_b32 v8, 4, v0")
    e("v_and_b32 v10, 15, v0")
    e("v_lshlrev_b32 v18, 9, v8")
    e("v_lshl_add_u32 v18, v10, 5, v18")
    e("v_add_u32 v18, %d, v18" % RINGB)
    e("v_add_u32 v11, 0x10000, v18")
    e("v_lshlrev_b32 v19, 2, v8")
    e("s_waitcnt lgkmcnt(0)")
    for wv in range(8):
        e("ds_read_b32 v%d, v19 offset:%d" % (20 + wv, SC + 16 * wv))
    for j in range(8):
        e("v_mov_b32 v%d, 0" % (28 + j))
    for batch in ((0, 1, 2), (3, 4, 5), (6, 7)):
        for k, wv in enumerate(batch):
            off = (wv & 3) * 16384
            ar = 18 if wv < 4 else 11
            e("ds_read_b128 v[%d:%d], v%d offset:%d" % (36 + 8 * k, 39 + 8 * k, ar, off))
            e("ds_read_b128 v[%d:%d], v%d offset:%d" % (40 + 8 * k, 43 + 8 * k, ar, off + 16))
        e("s_waitcnt lgkmcnt(0)")
        for k, wv in enumerate(batch):
            for j in range(8):
                e("v_fmac_f32 v%d, v%d, v%d" % (28 + j, 20 + wv, 36 + 8 * k + j))
    e("v_lshlrev_b32 v18, 14, v8")
    e("v_lshl_add_u32 v18, v10, 5, v18")
    e("s_lshl_b32 s16, s4, 16")
    e("s_lshl_b32 s17, s5, 9")
    e("s_add_u32 s16, s16, s17")
    e("s_add_u32 s16, s16, %d" % AP)
    e("buffer_store_dwordx4 v[28:31], v18, %s, s16 offen sc1" % srd(SRD_WS))
    e("buffer_store_dwordx4 v[32:35], v18, %s, s16 offen offset:16 sc1" % srd(SRD_WS))
    e("v_lshlrev_b32 v18, 8, v0")
    e("s_lshl_b32 s16, s4, 10")
    e("s_lshl_b32 s17, s5, 3")
    e("s_add_u32 s16, s16, s17")
    e("s_add_u32 s16, s16, %d" % ML)
    e("s_mov_b64 exec, 0xf")
    e("buffer_store_dwordx2 v[16:17], v18, %s, s16 offen sc1" % srd(SRD_WS))
    e("s_mov_b64 exec, -1")
    e("s_mov_b32 s17, s2")
    set_flag(1)
    stamp(7)
    e("v_and_b32 v8, 31, v0")
    e("s_lshl_b32 s16, s4, 5")
    e("v_add_u32 v8, s16, v8")
    e("v_lshlrev_b32 v8, 3, v8")
    e("v_add_u32 v8, %d, v8" % (FLG + 2048))
    poll("L_poll_a", 8, 10)
    stamp(8)
    e("v_and_b32 v6, 31, v0")
    e("v_lshlrev_b32 v8, 3, v6")
    e("s_lshl_b32 s16, s6, 8")
    e("s_add_u32 s16, s16, %d" % ML)
    e("buffer_load_dwordx2 v[12:13], v8, %s, s16 offen sc1" % srd(SRD_WS))
    def apreg(i):
        return 128 + 4 * i if i < 10 else 40 + 4 * (i - 10)
    e("v_lshrrev_b32 v10, 5, v0")
    e("v_lshlrev_b32 v8, 9, v10")
    e("v_lshl_add_u32 v8, v6, 4, v8")
    e("s_lshl_b32 s16, s6, 14")
    e("s_add_u32 s16, s16, %d" % AP)
    for i in range(16):
        e("s_add_u32 s17, s16, %d" % (i * 1024))
        e("buffer_load_dwordx4 v[%d:%d], v8, %s, s17 offen sc1" % (apreg(i), apreg(i) + 3, srd(SRD_WS)))
    e("s_waitcnt vmcnt(16)")
    e("v_mov_b32 v14, v12")
    allred("v_max_f32", 14, 4, [0, 1, 2, 3, 4])
    e("v_sub_f32 v15, v12, v14")
    e("v_mul_f32 v15, 0x%x, v15" % LOG2E)
    e("v_exp_f32 v15, v15")
    e("s_nop 0")
    e("v_mul_f32 v16, v15, v13")
    allred("v_add_f32", 16, 4, [0, 1, 2, 3, 4])
    e("v_lshlrev_b32 v8, 2, v6")
    e("ds_write_b32 v8, v15 offset:%d" % WL)
    e("v_lshlrev_b32 v8, 2, v10")
    e("s_waitcnt lgkmcnt(0)")
    for i in range(16):
        e("ds_read_b32 v%d, v8 offset:%d" % (20 + i, WL + 8 * i))
    for j in range(4):
        e("v_mov_b32 v%d, 0" % (36 + j))
    e("s_waitcnt vmcnt(0) lgkmcnt(0)")
    for i in range(16):
        for j in range(4):
            e("v_fmac_f32 v%d, v%d, v%d" % (36 + j, 20 + i, apreg(i) + j))
    for j in range(4):
        allred("v_add_f32", 36 + j, 4, [5])
    e("v_rcp_f32 v17, v16")
    e("s_nop 0")
    for j in range(4):
        e("v_mul_f32 v18, v%d, v17" % (36 + j))
        e("v_fma_f32 v19, -v18, v16, v%d" % (36 + j))
        e("v_fma_f32 v%d, v19, v17, v18" % (36 + j))
    rnd_bf16_pair(36, 37, 4)
    rnd_bf16_pair(38, 39, 4)
    e("v_lshlrev_b32 v8, 4, v6")
    e("ds_write_b128 v8, v[36:39] offset:%d" % OL)
    e("v_lshrrev_b32 v8, 3, v0")
    e("v_lshlrev_b32 v8, 2, v8")
    e("s_waitcnt lgkmcnt(0)")
    for i in range(16):
        e("ds_read_b32 v%d, v8 offset:%d" % (20 + i, OL + 32 * i))
    e("s_waitcnt lgkmcnt(0)")
    gemv_rows(16, 64, 20, 48)
    e("s_lshl_b32 s16, s7, 13")
    e("s_lshl_b32 s17, s6, 8")
    e("s_add_u32 s16, s16, s17")
    e("s_add_u32 s16, s16, %d" % YA)
    e("v_lshlrev_b32 v6, 5, v0")
    e("s_mov_b64 exec, 0xff")
    e("buffer_store_dwordx4 v[48:51], v6, %s, s16 offen sc1" % srd(SRD_WS))
    e("buffer_store_dwordx4 v[52:55], v6, %s, s16 offen offset:16 sc1" % srd(SRD_WS))
    e("s_mov_b64 exec, -1")
    e("s_lshl_b32 s17, s7, 5")
    e("s_add_u32 s17, s17, s6")
    set_flag(2)
    stamp(9)
    e("s_cmp_ge_u32 s2, 8")
    e("s_cbranch_scc1 L_end")
    e("v_and_b32 v6, 15, v0")
    e("v_lshlrev_b32 v8, 3, v6")
    e("s_lshl_b32 s16, s7, 7")
    e("buffer_load_dwordx2 v[20:21], v8, %s, s16 offen" % srd(SRD_X))
    e("v_and_b32 v12, 31, v0")
    e("s_lshl_b32 s16, s7, 5")
    e("v_add_u32 v12, s16, v12")
    e("v_lshlrev_b32 v12, 3, v12")
    e("v_add_u32 v12, %d, v12" % (FLG + 4096))
    poll("L_poll_f", 12, 10)
    stamp(10)
    e("v_lshrrev_b32 v10, 4, v0")
    e("v_lshlrev_b32 v8, 8, v10")
    e("v_lshl_add_u32 v8, v6, 4, v8")
    e("s_lshl_b32 s16, s7, 13")
    for i in range(8):
        e("s_add_u32 s17, s16, %d" % (YA + i * 1024))
        e("buffer_load_dwordx4 v[%d:%d], v8, %s, s17 offen sc1" % (32 + 4 * i, 35 + 4 * i, srd(SRD_WS)))
    for i in range(8):
        e("s_add_u32 s17, s16, %d" % (YB + i * 1024))
        e("buffer_load_dwordx4 v[%d:%d], v8, %s, s17 offen sc1" % (64 + 4 * i, 67 + 4 * i, srd(SRD_WS)))
    e("s_waitcnt vmcnt(0)")
    for b in (32, 64):
        for i in range(1, 8):
            for j in range(4):
                e("v_add_f32 v%d, v%d, v%d" % (b + j, b + j, b + 4 * i + j))
        for j in range(4):
            allred("v_add_f32", b + j, 4, [4, 5])
    rnd_bf16_pair(32, 33, 4)
    rnd_bf16_pair(34, 35, 4)
    rnd_bf16_pair(64, 65, 4)
    rnd_bf16_pair(66, 67, 4)
    e("v_lshlrev_b32 v22, 16, v20")
    e("v_and_b32 v23, 0xffff0000, v20")
    e("v_lshlrev_b32 v24, 16, v21")
    e("v_and_b32 v25, 0xffff0000, v21")
    for j in range(4):
        e("v_add_f32 v%d, v%d, v%d" % (32 + j, 22 + j, 32 + j))
    rnd_bf16_pair(32, 33, 4)
    rnd_bf16_pair(34, 35, 4)
    for j in range(4):
        e("v_add_f32 v%d, v%d, v%d" % (32 + j, 32 + j, 64 + j))
    e("v_cvt_pk_bf16_f32 v36, v32, v33")
    e("v_cvt_pk_bf16_f32 v37, v34, v35")
    e("v_lshlrev_b32 v8, 3, v6")
    e("s_lshl_b32 s16, s7, 7")
    e("s_mov_b64 exec, 0xffff")
    e("buffer_store_dwordx2 v[36:37], v8, %s, s16 offen" % srd(SRD_OUT))
    e("s_mov_b64 exec, -1")
    stamp(11)

gen()
txt = "\n".join(header() + L + footer(168)) + "\n"
open(OUT, "w").write(txt)
print("wrote", OUT, len(txt), "bytes")
```

```python
import sys

NAME = "parallel_sum__gqa_block_cached__glu_gated_swiglu__decode"
OUT = "cdna_kernels/%s.s" % NAME

NT = True
PACE = 3
LAYOUT = "B"
INIT = 8
NREG = 5
SLEEP = 2
FLG = 0x180000
STAMP = False
DBGTS = False

for a in sys.argv[1:]:
    if a.startswith("nt="): NT = bool(int(a[3:]))
    elif a.startswith("pace="): PACE = int(a[5:])
    elif a.startswith("layout="): LAYOUT = a[7:]
    elif a.startswith("init="): INIT = int(a[5:])
    elif a.startswith("nreg="): NREG = int(a[5:])
    elif a.startswith("sleep="): SLEEP = int(a[6:])
    elif a.startswith("out="): OUT = a[4:]
    elif a.startswith("stamp="): STAMP = bool(int(a[6:]))
    elif a.startswith("dbgts="): DBGTS = bool(int(a[6:]))

L = []
def e(s=""):
    L.append("    " + s if s and not s.endswith(":") else s)
def lab(s):
    L.append(s + ":")
def c(s):
    L.append("    ; " + s)

XN = 0
RS = XN + 2048
QL = RS + 16384
HL = QL + 1024
WL = HL + 256
OL = WL + 128
SC = OL + 512
RINGB = 24576
LDS_TOTAL = RINGB + 8 * 16384

QP = 0
GU = 0x10000
AP = 0x20000
ML = 0xA0000
YA = 0xA2000
YB = 0xB2000
TS = 0x100000

SRD_X, SRD_K, SRD_V, SRD_WQ, SRD_WO, SRD_W13, SRD_W2, SRD_OUT, SRD_DBG, SRD_WS = 40, 44, 48, 52, 56, 60, 64, 68, 72, 76
def srd(n): return "s[%d:%d]" % (n, n + 3)

LOG2E = 0x3fb8aa3b
SCALE = 0x3db504f3
EPS = 0x3727c5ac

def header():
    h = []
    h.append("; @launch grid=(256,1,1) block=(576,1,1) lds=%d" % LDS_TOTAL)
    h.append('.amdgcn_target "amdgcn-amd-amdhsa--gfx950"')
    h.append(".text")
    h.append(".globl %s_kernel" % NAME)
    h.append(".p2align 8")
    h.append(".type %s_kernel,@function" % NAME)
    h.append("%s_kernel:" % NAME)
    return h

def footer(nv):
    f = []
    f.append(".section .rodata,\"a\"")
    f.append(".p2align 6")
    f.append(".amdhsa_kernel %s_kernel" % NAME)
    f.append("  .amdhsa_next_free_vgpr %d" % nv)
    f.append("  .amdhsa_next_free_sgpr 102")
    f.append("  .amdhsa_accum_offset %d" % ((nv + 3) // 4 * 4))
    f.append("  .amdhsa_group_segment_fixed_size 0")
    f.append("  .amdhsa_kernarg_size 96")
    f.append("  .amdhsa_user_sgpr_count 2")
    f.append("  .amdhsa_user_sgpr_kernarg_segment_ptr 1")
    f.append("  .amdhsa_system_sgpr_workgroup_id_x 1")
    f.append(".end_amdhsa_kernel")
    return f

def build_srd(d, p, nbytes):
    e("s_mov_b32 s%d, s%d" % (d, p))
    e("s_mov_b32 s%d, s%d" % (d + 1, p + 1))
    e("s_mov_b32 s%d, 0x%x" % (d + 2, nbytes))
    e("s_mov_b32 s%d, 0x00020000" % (d + 3))

def rnd_bf16_pair(a, b, t):
    e("v_cvt_pk_bf16_f32 v%d, v%d, v%d" % (t, a, b))
    e("v_lshlrev_b32 v%d, 16, v%d" % (a, t))
    e("v_and_b32 v%d, 0xffff0000, v%d" % (b, t))
def rnd_bf16(a, t):
    e("v_cvt_pk_bf16_f32 v%d, v%d, v%d" % (t, a, a))
    e("v_lshlrev_b32 v%d, 16, v%d" % (a, t))

def dpp(op, d, a, b, ctrl):
    e("%s_dpp v%d, v%d, v%d %s row_mask:0xf bank_mask:0xf" % (op, d, a, b, ctrl))

def allred(op, v, t, bits):
    for b in bits:
        if b == 0:
            e("s_nop 1"); dpp(op, v, v, v, "quad_perm:[1,0,3,2]")
        elif b == 1:
            e("s_nop 1"); dpp(op, v, v, v, "quad_perm:[2,3,0,1]")
        elif b == 2:
            e("s_nop 1"); dpp(op, v, v, v, "row_ror:4")
        elif b == 3:
            e("s_nop 1"); dpp(op, v, v, v, "row_ror:8")
        elif b == 4:
            e("v_mov_b32 v%d, v%d" % (t, v)); e("s_nop 1")
            e("v_permlane16_swap_b32 v%d, v%d" % (v, t)); e("s_nop 1")
            e("%s v%d, v%d, v%d" % (op, v, v, t))
        elif b == 5:
            e("v_mov_b32 v%d, v%d" % (t, v)); e("s_nop 1")
            e("v_permlane32_swap_b32 v%d, v%d" % (v, t)); e("s_nop 1")
            e("%s v%d, v%d, v%d" % (op, v, v, t))

stamp_idx = [0]
ROLE = ["w"]
def stamp(slot):
    if DBGTS and ROLE[0] == "s":
        e("s_cmp_lg_u32 s2, 0")
        e("s_cbranch_scc1 L_dts%d" % slot)
        e("s_memrealtime s[90:91]")
        e("s_waitcnt lgkmcnt(0)")
        e("v_mov_b32 v2, s90")
        e("v_mov_b32 v1, %d" % (8 + 4 * slot))
        e("s_mov_b64 exec, 1")
        e("buffer_store_dword v2, v1, %s, 0 offen" % srd(SRD_DBG))
        e("s_mov_b64 exec, -1")
        lab("L_dts%d" % slot)
        return
    if not STAMP:
        return
    e("s_memrealtime s[90:91]")
    e("s_waitcnt lgkmcnt(0)")
    a, b, ad = (160, 161, 162) if ROLE[0] == "w" else (2, 3, 1)
    e("v_mov_b32 v%d, s90" % a)
    e("v_mov_b32 v%d, s91" % b)
    e("s_lshl_b32 s92, s2, 4")
    e("s_add_u32 s92, s92, s3")
    e("s_lshl_b32 s92, s92, 7")
    e("s_add_u32 s92, s92, %d" % (TS + slot * 8))
    e("v_mov_b32 v%d, s92" % ad)
    e("buffer_store_dwordx2 v[%d:%d], v%d, %s, 0 offen" % (a, b, ad, srd(SRD_WS)))

def stampS(slot):
    if not STAMP: return
    r = 80 + 2 * (slot - 4)
    e("s_memrealtime s[%d:%d]" % (r, r + 1))
    e("s_waitcnt lgkmcnt(0)")
def stampFlush(slots):
    if not STAMP: return
    for slot in slots:
        r = 80 + 2 * (slot - 4)
        e("v_mov_b32 v160, s%d" % r)
        e("v_mov_b32 v161, s%d" % (r + 1))
        e("s_lshl_b32 s92, s2, 4")
        e("s_add_u32 s92, s92, s3")
        e("s_lshl_b32 s92, s92, 7")
        e("s_add_u32 s92, s92, %d" % (TS + slot * 8))
        e("v_mov_b32 v162, s92")
        e("buffer_store_dwordx2 v[160:161], v162, %s, 0 offen" % srd(SRD_WS))
        e("s_nop 4")

def gen():
    e("s_cmp_ge_u32 s2, 256")
    e("s_cbranch_scc1 L_end")
    e("s_load_dwordx16 s[16:31], s[0:1], 0")
    e("s_load_dwordx8 s[32:39], s[0:1], 64")
    e("v_lshrrev_b32 v1, 6, v0")
    e("v_and_b32 v0, 63, v0")
    e("s_nop 0")
    e("v_readfirstlane_b32 s3, v1")
    e("s_lshr_b32 s4, s2, 5")
    e("s_and_b32 s5, s2, 31")
    e("s_lshr_b32 s6, s2, 3")
    e("s_and_b32 s7, s2, 7")
    e("s_sub_u32 s8, s2, 224")
    e("s_cmp_ge_u32 s2, 224")
    e("s_cselect_b32 s8, s8, s2")
    e("s_cmp_ge_u32 s8, 112")
    e("s_cselect_b32 s9, 1, 0")
    e("s_mul_i32 s10, s9, 112")
    e("s_sub_u32 s10, s8, s10")
    e("s_mov_b32 s11, 0")
    for t in (28, 56, 84):
        e("s_cmp_ge_u32 s10, %d" % t)
        e("s_addc_u32 s11, s11, 0")
    e("s_mul_i32 s12, s11, 28")
    e("s_sub_u32 s12, s10, s12")
    e("s_waitcnt lgkmcnt(0)")
    build_srd(SRD_X, 16, 1024)
    build_srd(SRD_K, 18, 134217728)
    build_srd(SRD_V, 20, 134217728)
    build_srd(SRD_WQ, 22, 4194304)
    build_srd(SRD_WO, 24, 4194304)
    e("s_cmp_eq_u32 s9, 0")
    e("s_cselect_b32 s%d, s28, s30" % SRD_W13)
    e("s_cselect_b32 s%d, s29, s31" % (SRD_W13 + 1))
    e("s_mov_b32 s%d, 0x%x" % (SRD_W13 + 2, 1835008))
    e("s_mov_b32 s%d, 0x00020000" % (SRD_W13 + 3))
    build_srd(SRD_W2, 32, 1835008)
    build_srd(SRD_OUT, 34, 1024)
    build_srd(SRD_DBG, 36, 256)
    build_srd(SRD_WS, 38, 536870912)
    e("s_cmp_eq_u32 s3, 8")
    e("s_cbranch_scc1 L_service")
    worker()
    service()
    lab("L_end")
    e("s_endpgm")

USTRIDE = {"A": 4096, "B": 32768, "C": 1 << 20}
if LAYOUT.startswith("I"):
    IL = int(LAYOUT[1:])
    USTRIDE[LAYOUT] = IL * 32768
if LAYOUT == "D":
    USTRIDE["D"] = 0
def dma_setup(u):
    isK = u < 16
    uu = u if isK else u - 16
    if LAYOUT in ("E", "F"):
        pass
    elif LAYOUT in ("G", "H"):
        if LAYOUT == "G":
            e("s_add_u32 s21, s3, %d" % (uu & 7))
            e("s_and_b32 s21, s21, 7")
        else:
            e("s_xor_b32 s21, s3, %d" % (uu & 7))
        e("s_lshl_b32 s21, s21, 12")
        e("s_add_u32 s20, s14, s21")
        e("s_add_u32 s20, s20, %d" % (uu * 32768))
    elif LAYOUT == "D":
        e("s_add_u32 s20, s14, %d" % ((uu // 2) * 65536 + (uu % 2) * 4096))
    else:
        e("s_add_u32 s20, s14, %d" % (uu * USTRIDE[LAYOUT]))
    e("s_add_u32 m0, s15, %d" % ((u % 4) * 4096))
    e("s_nop 0")
def dma_one(u, j):
    isK = u < 16
    uu = u if isK else u - 16
    vo = (2 + j) if isK else (6 + (j & 1))
    if LAYOUT == "E":
        e("s_add_u32 s20, s14, %d" % ((4 * uu + j) * 8192 - j * 1024))
    elif LAYOUT == "F":
        if j % 2 == 0:
            e("s_add_u32 s20, s14, %d" % ((2 * uu + j // 2) * 16384 - (j // 2) * 2048))
    e("buffer_load_dwordx4 v%d, %s, s20 offen offset:%d%s lds" %
      (vo, srd(SRD_K if isK else SRD_V), j * 1024, " nt" if NT else ""))
def dma_unit(u):
    dma_setup(u)
    for j in range(4):
        dma_one(u, j)

def worker():
    c("================= worker waves (s3 = 0..7) =================")
    stamp(0)
    e("v_lshlrev_b32 v30, 4, v0")
    e("buffer_load_dwordx4 v[32:35], v30, %s, 0 offen" % srd(SRD_X))
    e("v_lshrrev_b32 v24, 3, v0")
    e("v_and_b32 v25, 7, v0")
    e("v_lshlrev_b32 v26, 13, v24")
    e("v_lshl_add_u32 v26, v25, 4, v26")
    e("s_lshr_b32 s16, s5, 3")
    e("s_and_b32 s17, s5, 7")
    e("s_lshl_b32 s18, s16, 7")
    e("s_lshl_b32 s19, s3, 4")
    e("s_add_u32 s18, s18, s19")
    e("s_lshl_b32 s19, s18, 13")
    e("s_lshl_b32 s20, s4, 10")
    e("s_add_u32 s19, s19, s20")
    e("s_lshl_b32 s20, s17, 7")
    e("s_add_u32 s19, s19, s20")
    e("s_add_u32 s20, s19, 65536")
    e("buffer_load_dwordx4 v[36:39], v26, %s, s19 offen" % srd(SRD_WQ))
    e("buffer_load_dwordx4 v[40:43], v26, %s, s20 offen" % srd(SRD_WQ))
    e("s_movk_i32 s21, 3584")
    e("v_mul_lo_u32 v27, v24, s21")
    e("v_lshl_add_u32 v27, v25, 4, v27")
    e("s_lshl_b32 s22, s11, 7")
    e("s_lshl_b32 s23, s3, 4")
    e("s_add_u32 s22, s22, s23")
    e("s_mul_i32 s23, s22, 3584")
    e("s_lshl_b32 s24, s12, 7")
    e("s_add_u32 s23, s23, s24")
    e("s_add_u32 s24, s23, %d" % (8 * 3584))
    e("buffer_load_dwordx4 v[44:47], v27, %s, s23 offen" % srd(SRD_W13))
    e("buffer_load_dwordx4 v[48:51], v27, %s, s24 offen" % srd(SRD_W13))
    if LAYOUT == "A":
        e("s_lshl_b32 s14, s2, 19")
        e("s_lshl_b32 s15, s3, 16")
        e("s_add_u32 s14, s14, s15")
    elif LAYOUT == "B":
        e("s_lshl_b32 s14, s2, 19")
        e("s_lshl_b32 s15, s3, 12")
        e("s_add_u32 s14, s14, s15")
    elif LAYOUT == "D":
        e("s_lshl_b32 s14, s2, 19")
        e("s_lshl_b32 s15, s3, 13")
        e("s_add_u32 s14, s14, s15")
    elif LAYOUT in ("G", "H"):
        e("s_lshl_b32 s14, s2, 19")
    elif LAYOUT == "E":
        e("s_lshl_b32 s14, s2, 19")
        e("s_lshl_b32 s15, s3, 10")
        e("s_add_u32 s14, s14, s15")
    elif LAYOUT == "F":
        e("s_lshl_b32 s14, s2, 19")
        e("s_lshl_b32 s15, s3, 11")
        e("s_add_u32 s14, s14, s15")
    elif LAYOUT.startswith("I"):
        import math
        lg = int(math.log2(IL))
        e("s_lshr_b32 s14, s2, %d" % lg)
        e("s_lshl_b32 s14, s14, %d" % (19 + lg))
        e("s_and_b32 s15, s2, %d" % (IL - 1))
        e("s_lshl_b32 s15, s15, 15")
        e("s_add_u32 s14, s14, s15")
        e("s_lshl_b32 s15, s3, 12")
        e("s_add_u32 s14, s14, s15")
    else:
        e("s_lshl_b32 s14, s4, 24")
        e("s_lshl_b32 s15, s5, 15")
        e("s_add_u32 s14, s14, s15")
        e("s_lshl_b32 s15, s3, 12")
        e("s_add_u32 s14, s14, s15")
    e("s_lshl_b32 s15, s3, 14")
    e("s_add_u32 s15, s15, %d" % RINGB)
    e("v_lshrrev_b32 v20, 4, v0")
    e("v_and_b32 v21, 15, v0")
    e("v_lshlrev_b32 v22, 8, v20")
    e("v_xor_b32 v23, v21, v20")
    for j in range(4):
        e("v_xor_b32 v28, %d, v23" % (4 * j))
        e("v_lshl_add_u32 v%d, v28, 4, v22" % (2 + j))
    e("v_lshlrev_b32 v28, 1, v20")
    e("v_xor_b32 v28, v21, v28")
    e("v_lshl_add_u32 v6, v28, 4, v22")
    e("v_xor_b32 v28, 8, v28")
    e("v_lshl_add_u32 v7, v28, 4, v22")
    for i in range(INIT):
        if i % 4 == 0:
            dma_setup(i // 4)
        dma_one(i // 4, i % 4)
    nd = INIT
    e("v_lshlrev_b32 v29, 8, v21")
    e("v_add_u32 v29, s15, v29")
    for s in range(4):
        e("v_xor_b32 v28, %d, v23" % (4 * s))
        e("v_lshl_add_u32 v%d, v28, 4, v29" % (8 + s))
    e("v_lshrrev_b32 v28, 2, v21")
    e("v_lshl_add_u32 v28, v20, 2, v28")
    e("v_lshlrev_b32 v29, 8, v28")
    e("v_add_u32 v29, s15, v29")
    e("v_and_b32 v28, 7, v28")
    e("v_lshlrev_b32 v28, 1, v28")
    e("v_and_b32 v31, 3, v21")
    e("v_lshrrev_b32 v52, 1, v31")
    e("v_or_b32 v28, v28, v52")
    e("v_and_b32 v31, 1, v31")
    e("v_lshl_add_u32 v29, v31, 3, v29")
    for D in range(8):
        e("v_xor_b32 v52, %d, v28" % (2 * D))
        e("v_lshl_add_u32 v%d, v52, 4, v29" % (12 + D))
    e("s_waitcnt vmcnt(%d)" % (4 + nd))
    stampS(4)
    for j in range(4):
        e("v_lshlrev_b32 v%d, 16, v%d" % (56 + 2 * j, 32 + j))
        e("v_and_b32 v%d, 0xffff0000, v%d" % (57 + 2 * j, 32 + j))
    e("v_add_f32 v64, v56, v57")
    for j in range(2, 8):
        e("v_add_f32 v64, v64, v%d" % (56 + j))
    allred("v_add_f32", 64, 65, [0, 1, 2, 3, 4, 5])
    e("v_mul_f32 v64, 0x3b000000, v64")
    for j in range(8):
        e("v_sub_f32 v%d, v%d, v64" % (66 + j, 56 + j))
    e("v_mul_f32 v74, v66, v66")
    for j in range(1, 8):
        e("v_fmac_f32 v74, v%d, v%d" % (66 + j, 66 + j))
    allred("v_add_f32", 74, 65, [0, 1, 2, 3, 4, 5])
    e("v_mul_f32 v74, 0x3b000000, v74")
    rnd_bf16_pair(64, 74, 65)
    e("v_add_f32 v74, 0x%x, v74" % EPS)
    rnd_bf16(74, 65)
    e("v_sqrt_f32 v74, v74")
    e("s_nop 0")
    rnd_bf16(74, 65)
    e("v_rcp_f32 v75, v74")
    for j in range(8):
        e("v_sub_f32 v%d, v%d, v64" % (56 + j, 56 + j))
    for j in range(0, 8, 2):
        rnd_bf16_pair(56 + j, 57 + j, 65)
    for j in range(8):
        e("v_mul_f32 v%d, v%d, v75" % (66 + j, 56 + j))
    for j in range(8):
        e("v_fma_f32 v%d, -v%d, v74, v%d" % (76 + j, 66 + j, 56 + j))
    for j in range(8):
        e("v_fma_f32 v%d, v%d, v75, v%d" % (56 + j, 76 + j, 66 + j))
    for j in range(0, 8, 2):
        rnd_bf16_pair(56 + j, 57 + j, 65)
    e("v_lshlrev_b32 v65, 5, v0")
    e("ds_write_b128 v65, v[56:59] offset:%d" % XN)
    e("ds_write_b128 v65, v[60:63] offset:%d" % (XN + 16))
    e("v_add_u32 v65, s18, v24")
    e("v_lshlrev_b32 v65, 2, v65")
    e("v_add_u32 v66, s22, v24")
    e("v_lshlrev_b32 v66, 2, v66")
    e("s_waitcnt lgkmcnt(0)")
    e("ds_read_b32 v68, v65 offset:%d" % XN)
    e("ds_read_b32 v69, v65 offset:%d" % (XN + 32))
    e("ds_read_b32 v70, v66 offset:%d" % XN)
    e("ds_read_b32 v71, v66 offset:%d" % (XN + 32))
    for j in range(16):
        e("v_mov_b32 v%d, 0" % (80 + j))
    e("s_waitcnt vmcnt(%d) lgkmcnt(0)" % nd)
    stampS(5)
    for mat in range(2):
        for row in range(2):
            wbase = 36 + 8 * mat + 4 * row
            xr = 68 + 2 * mat + row
            for j in range(4):
                e("v_lshlrev_b32 v72, 16, v%d" % (wbase + j))
                e("v_and_b32 v73, 0xffff0000, v%d" % (wbase + j))
                e("v_fmac_f32 v%d, v%d, v72" % (80 + 8 * mat + 2 * j, xr))
                e("v_fmac_f32 v%d, v%d, v73" % (81 + 8 * mat + 2 * j, xr))
    e("s_nop 1")
    for j in range(16):
        dpp("v_add_f32", 80 + j, 80 + j, 80 + j, "row_ror:8")
    e("s_lshl_b32 s16, s3, 10")
    e("v_lshl_add_u32 v65, v25, 5, v22")
    e("v_add_u32 v65, s16, v65")
    e("ds_write_b128 v65, v[80:83] offset:%d" % RS)
    e("ds_write_b128 v65, v[84:87] offset:%d" % (RS + 16))
    e("ds_write_b128 v65, v[88:91] offset:%d" % (RS + 8192))
    e("ds_write_b128 v65, v[92:95] offset:%d" % (RS + 8192 + 16))
    e("s_waitcnt lgkmcnt(0)")
    stampS(6)
    e("s_barrier")
    stamp(1)
    stampFlush([4, 5, 6])
    for i in range(INIT, 4 * (4 + NREG)):
        u = i // 4
        e("s_waitcnt vmcnt(%d)" % (PACE - 1))
        if i % 4 == 0 and u >= 4:
            pu = u - 4
            for sx in range(4):
                e("ds_read_b128 v[%d:%d], v%d offset:%d" % (32 + 16 * pu + 4 * sx, 35 + 16 * pu + 4 * sx, 8 + sx, (pu % 4) * 4096))
            e("s_waitcnt lgkmcnt(0)")
        if i % 4 == 0 or i == INIT:
            dma_setup(u)
        dma_one(u, i % 4)
    e("s_barrier")
    stamp(2)
    e("v_and_b32 v28, 3, v21")
    e("v_lshlrev_b32 v28, 8, v28")
    e("v_lshl_add_u32 v28, v20, 4, v28")
    for sx in range(4):
        e("ds_read_b128 v[%d:%d], v28 offset:%d" % (112 + 4 * sx, 115 + 4 * sx, QL + 64 * sx))
    e("v_lshrrev_b32 v29, 2, v21")
    for T in range(4):
        e("v_cmp_eq_u32 s[%d:%d], %d, v29" % (24 + 2 * T, 25 + 2 * T, T))
    e("s_waitcnt lgkmcnt(0)")
    SB = 144
    for u in range(16):
        tg, T = u // 4, u % 4
        for k in range(16):
            e("v_cndmask_b32 v%d, 0, v%d, s[%d:%d]" % (128 + k, 112 + k, 24 + 2 * T, 25 + 2 * T))
        if u < NREG:
            kb = 32 + 16 * u
            e("s_nop 1")
        else:
            kb = 32
            e("s_waitcnt vmcnt(12)")
            for sx in range(4):
                e("ds_read_b128 v[%d:%d], v%d offset:%d" % (32 + 4 * sx, 35 + 4 * sx, 8 + sx, (u % 4) * 4096))
            e("s_waitcnt lgkmcnt(0)")
            dma_unit(u + 4)
        for sx in range(4):
            cc = "0" if (T == 0 and sx == 0) else "v[%d:%d]" % (SB + 4 * tg, SB + 4 * tg + 3)
            e("v_mfma_f32_16x16x32_bf16 v[%d:%d], v[%d:%d], v[%d:%d], %s" %
              (SB + 4 * tg, SB + 4 * tg + 3, kb + 4 * sx, kb + 3 + 4 * sx, 128 + 4 * sx, 131 + 4 * sx, cc))
    e("s_nop 7")
    e("s_nop 1")
    for k in range(0, 16, 2):
        rnd_bf16_pair(SB + k, SB + k + 1, 28)
    for k in range(16):
        e("v_mul_f32 v%d, 0x%x, v%d" % (SB + k, SCALE, SB + k))
    for k in range(0, 16, 2):
        rnd_bf16_pair(SB + k, SB + k + 1, 28)
    e("v_max3_f32 v52, v%d, v%d, v%d" % (SB, SB + 1, SB + 2))
    for k in range(3, 15, 2):
        e("v_max3_f32 v52, v52, v%d, v%d" % (SB + k, SB + k + 1))
    e("v_max_f32 v52, v52, v%d" % (SB + 15))
    allred("v_max_f32", 52, 28, [2, 3, 4, 5])
    e("s_mov_b32 s16, 0x%x" % LOG2E)
    for k in range(16):
        e("v_sub_f32 v%d, v%d, v52" % (SB + k, SB + k))
    for k in range(16):
        e("v_mul_f32 v%d, s16, v%d" % (SB + k, SB + k))
    for k in range(16):
        e("v_exp_f32 v%d, v%d" % (SB + k, SB + k))
    e("s_nop 0")
    e("v_add_f32 v53, v%d, v%d" % (SB, SB + 1))
    for k in range(2, 16):
        e("v_add_f32 v53, v53, v%d" % (SB + k))
    allred("v_add_f32", 53, 28, [2, 3, 4, 5])
    PB = 112
    for tg in range(4):
        e("v_cvt_pk_bf16_f32 v%d, v%d, v%d" % (PB + 2 * tg, SB + 4 * tg, SB + 4 * tg + 1))
        e("v_cvt_pk_bf16_f32 v%d, v%d, v%d" % (PB + 2 * tg + 1, SB + 4 * tg + 2, SB + 4 * tg + 3))
    for uv in range(16):
        u = 16 + uv
        tg, T = uv // 4, uv % 4
        rem = min(u + 3, 31) - u
        e("s_waitcnt vmcnt(%d)" % (4 * rem))
        for D in range(8):
            e("ds_read_b64_tr_b16 v[%d:%d], v%d offset:%d" % (32 + 2 * D, 33 + 2 * D, 12 + D, (u % 4) * 4096))
        pa = 48 + 2 * (uv & 1)
        if T == 0:
            e("v_mov_b32 v%d, v%d" % (pa, PB + 2 * tg))
            e("v_mov_b32 v%d, v%d" % (pa + 1, PB + 2 * tg + 1))
        else:
            e("v_mov_b32_dpp v%d, v%d row_shl:%d row_mask:0xf bank_mask:0xf" % (pa, PB + 2 * tg, 4 * T))
            e("v_mov_b32_dpp v%d, v%d row_shl:%d row_mask:0xf bank_mask:0xf" % (pa + 1, PB + 2 * tg + 1, 4 * T))
        e("s_waitcnt lgkmcnt(0)")
        if u + 4 < 32:
            dma_unit(u + 4)
        else:
            e("s_nop 1")
        for D in range(8):
            cc = "0" if uv == 0 else "v[%d:%d]" % (56 + 4 * D, 59 + 4 * D)
            e("v_mfma_f32_16x16x16_bf16 v[%d:%d], v[%d:%d], v[%d:%d], %s" %
              (56 + 4 * D, 59 + 4 * D, pa, pa + 1, 32 + 2 * D, 33 + 2 * D, cc))
    stamp(3)
    e("s_nop 7")
    e("s_nop 1")
    e("v_lshlrev_b32 v28, 2, v0")
    e("v_add_u32 v28, s15, v28")
    e("s_mov_b64 exec, 0xffff")
    for D in range(8):
        for h in range(4):
            e("ds_write_b32 v28, v%d offset:%d" % (56 + 4 * D + h, h * 512 + D * 64))
    e("s_mov_b64 exec, 0xf")
    e("v_lshlrev_b32 v28, 3, v0")
    e("v_add_u32 v28, s15, v28")
    e("ds_write_b64 v28, v[52:53] offset:2048")
    e("s_mov_b64 exec, -1")
    e("s_waitcnt lgkmcnt(0)")
    e("s_barrier")
    e("s_endpgm")

def poll(label, vaddr, vtmp):
    e("s_mov_b32 s16, 0")
    lab(label)
    e("buffer_load_dwordx2 v[%d:%d], v%d, %s, 0 offen sc1" % (vtmp, vtmp + 1, vaddr, srd(SRD_WS)))
    e("s_waitcnt vmcnt(0)")
    e("v_cmp_ne_u64 vcc, s[94:95], v[%d:%d]" % (vtmp, vtmp + 1))
    e("s_nop 1")
    e("s_cbranch_vccz %s_done" % label)
    e("s_add_u32 s16, s16, 1")
    e("s_cmp_ge_u32 s16, 0x40000")
    e("s_cbranch_scc1 %s_done" % label)
    e("s_sleep %d" % SLEEP)
    e("s_branch %s" % label)
    lab(label + "_done")

def set_flag(ph):
    e("s_waitcnt vmcnt(0)")
    e("v_mov_b32 v2, s94")
    e("v_mov_b32 v3, s95")
    e("s_lshl_b32 s17, s17, 3")
    e("s_add_u32 s17, s17, %d" % (FLG + ph * 2048))
    e("v_mov_b32 v1, s17")
    e("s_mov_b64 exec, 1")
    e("buffer_store_dwordx2 v[2:3], v1, %s, 0 offen sc1" % srd(SRD_WS))
    e("s_mov_b64 exec, -1")

def gemv_rows(nrows, wbase, xbase, acc):
    for j in range(8):
        e("v_mov_b32 v%d, 0" % (acc + j))
    for i in range(nrows):
        for j in range(4):
            e("v_lshlrev_b32 v4, 16, v%d" % (wbase + 4 * i + j))
            e("v_and_b32 v5, 0xffff0000, v%d" % (wbase + 4 * i + j))
            e("v_fmac_f32 v%d, v%d, v4" % (acc + 2 * j, xbase + i))
            e("v_fmac_f32 v%d, v%d, v5" % (acc + 2 * j + 1, xbase + i))
    for j in range(8):
        allred("v_add_f32", acc + j, 4, [3, 4, 5])

def service():
    lab("L_service")
    ROLE[0] = "s"
    c("================= service wave =================")
    stamp(0)
    e("v_lshrrev_b32 v24, 3, v0")
    e("v_and_b32 v25, 7, v0")
    e("v_mov_b32 v1, 0")
    e("s_cmp_lg_u32 s2, 0")
    e("s_cbranch_scc1 L_nonce_wait")
    e("s_memrealtime s[94:95]")
    e("s_waitcnt lgkmcnt(0)")
    e("s_or_b32 s94, s94, 1")
    e("v_mov_b32 v2, s94")
    e("v_mov_b32 v3, s95")
    e("s_mov_b64 exec, 1")
    e("buffer_store_dwordx2 v[2:3], v1, %s, 0 offen sc1" % srd(SRD_DBG))
    e("s_mov_b64 exec, -1")
    lab("L_nonce_wait")
    e("s_barrier")
    stamp(1)
    e("v_lshlrev_b32 v6, 2, v0")
    for mat in range(2):
        for sl in range(32):
            e("ds_read_b32 v%d, v6 offset:%d" % (32 + 32 * mat + sl, RS + mat * 8192 + sl * 256))
        e("s_waitcnt lgkmcnt(0)")
    for mat in range(2):
        b = 32 + 32 * mat
        for st in (16, 8, 4, 2, 1):
            for k in range(st):
                e("v_add_f32 v%d, v%d, v%d" % (b + k, b + k, b + k + st))
    e("s_lshr_b32 s16, s5, 3")
    e("s_lshl_b32 s16, s16, 14")
    e("s_lshl_b32 s17, s4, 11")
    e("s_add_u32 s16, s16, s17")
    e("s_and_b32 s17, s5, 7")
    e("s_lshl_b32 s17, s17, 8")
    e("s_add_u32 s16, s16, s17")
    e("s_add_u32 s16, s16, %d" % QP)
    e("buffer_store_dword v32, v6, %s, s16 offen sc1" % srd(SRD_WS))
    e("s_mul_i32 s16, s9, %d" % (4 * 1792 * 4))
    e("s_mul_i32 s17, s11, %d" % (1792 * 4))
    e("s_add_u32 s16, s16, s17")
    e("s_lshl_b32 s17, s12, 8")
    e("s_add_u32 s16, s16, s17")
    e("s_add_u32 s16, s16, %d" % GU)
    e("buffer_store_dword v64, v6, %s, s16 offen sc1" % srd(SRD_WS))
    e("v_mov_b32 v1, 0")
    e("s_mov_b32 s16, 0")
    lab("L_nonce_loop")
    e("buffer_load_dwordx2 v[2:3], v1, %s, 0 offen sc1" % srd(SRD_DBG))
    e("s_waitcnt vmcnt(0)")
    e("v_readfirstlane_b32 s94, v2")
    e("v_readfirstlane_b32 s95, v3")
    e("s_nop 3")
    e("s_and_b32 s17, s94, 1")
    e("s_cmp_lg_u32 s17, 0")
    e("s_cbranch_scc1 L_nonce_done")
    e("s_add_u32 s16, s16, 1")
    e("s_cmp_ge_u32 s16, 0x40000")
    e("s_cbranch_scc1 L_nonce_done")
    e("s_sleep 4")
    e("s_branch L_nonce_loop")
    lab("L_nonce_done")
    stamp(12)
    e("s_mov_b32 s17, s2")
    set_flag(0)
    stamp(2)
    e("v_and_b32 v8, 31, v0")
    e("s_lshl_b32 s16, s4, 5")
    e("v_add_u32 v8, s16, v8")
    e("v_lshlrev_b32 v8, 3, v8")
    e("v_add_u32 v8, %d, v8" % FLG)
    poll("L_poll_q", 8, 10)
    stamp(3)
    e("v_lshlrev_b32 v6, 5, v0")
    e("s_lshl_b32 s16, s4, 11")
    e("s_add_u32 s16, s16, %d" % QP)
    for kq in range(4):
        e("s_add_u32 s17, s16, %d" % (kq * 16384))
        e("buffer_load_dwordx4 v[%d:%d], v6, %s, s17 offen sc1" % (32 + 8 * kq, 35 + 8 * kq, srd(SRD_WS)))
        e("buffer_load_dwordx4 v[%d:%d], v6, %s, s17 offen offset:16 sc1" % (36 + 8 * kq, 39 + 8 * kq, srd(SRD_WS)))
    e("s_waitcnt vmcnt(0)")
    for kq in range(1, 4):
        for j in range(8):
            e("v_add_f32 v%d, v%d, v%d" % (32 + j, 32 + j, 32 + 8 * kq + j))
    for j in range(4):
        e("v_cvt_pk_bf16_f32 v%d, v%d, v%d" % (40 + j, 32 + 2 * j, 33 + 2 * j))
    e("v_lshlrev_b32 v6, 4, v0")
    e("ds_write_b128 v6, v[40:43] offset:%d" % QL)
    e("s_waitcnt lgkmcnt(0)")
    e("s_barrier")
    stamp(4)
    for k in range(4):
        e("v_lshlrev_b32 v8, 3, v0")
        e("v_add_u32 v8, %d, v8" % (FLG + 512 * k))
        poll("L_poll_b%d" % k, 8, 10)
    e("v_lshlrev_b32 v7, 10, v24")
    e("v_lshl_add_u32 v7, v25, 4, v7")
    e("s_mul_i32 s16, s6, %d" % (56 * 1024))
    e("s_lshl_b32 s17, s7, 7")
    e("s_add_u32 s16, s16, s17")
    for i in range(7):
        e("s_add_u32 s17, s16, %d" % (i * 8192))
        e("buffer_load_dwordx4 v[%d:%d], v7, %s, s17 offen" % (64 + 4 * i, 67 + 4 * i, srd(SRD_W2)))
    e("v_min_u32 v6, 55, v0")
    e("s_mul_i32 s16, s6, 56")
    e("v_add_u32 v6, s16, v6")
    e("v_lshlrev_b32 v6, 2, v6")
    for m in range(2):
        for kq in range(4):
            e("s_mov_b32 s17, %d" % (GU + (m * 4 + kq) * 1792 * 4))
            e("buffer_load_dword v%d, v6, %s, s17 offen sc1" % (32 + 4 * m + kq, srd(SRD_WS)))
    e("s_waitcnt vmcnt(0)")
    for m in range(2):
        for kq in range(1, 4):
            e("v_add_f32 v%d, v%d, v%d" % (32 + 4 * m, 32 + 4 * m, 32 + 4 * m + kq))
    rnd_bf16_pair(32, 36, 4)
    e("v_mul_f32 v33, 0x%x, v32" % (LOG2E | 0x80000000))
    e("v_exp_f32 v33, v33")
    e("s_nop 0")
    e("v_add_f32 v33, 1.0, v33")
    e("v_rcp_f32 v34, v33")
    e("s_nop 0")
    e("v_mul_f32 v35, v32, v34")
    rnd_bf16(35, 4)
    e("v_mul_f32 v35, v35, v36")
    rnd_bf16(35, 4)
    e("v_lshlrev_b32 v6, 2, v0")
    e("ds_write_b32 v6, v35 offset:%d" % HL)
    e("v_lshlrev_b32 v6, 2, v24")
    e("s_waitcnt lgkmcnt(0)")
    for i in range(7):
        e("ds_read_b32 v%d, v6 offset:%d" % (32 + i, HL + 32 * i))
    e("s_waitcnt lgkmcnt(0)")
    gemv_rows(7, 64, 32, 40)
    e("s_lshl_b32 s16, s7, 13")
    e("s_lshl_b32 s17, s6, 8")
    e("s_add_u32 s16, s16, s17")
    e("s_add_u32 s16, s16, %d" % YB)
    e("v_lshlrev_b32 v6, 5, v0")
    e("s_mov_b64 exec, 0xff")
    e("buffer_store_dwordx4 v[40:43], v6, %s, s16 offen sc1" % srd(SRD_WS))
    e("buffer_store_dwordx4 v[44:47], v6, %s, s16 offen offset:16 sc1" % srd(SRD_WS))
    e("s_mov_b64 exec, -1")
    e("s_lshl_b32 s16, s6, 17")
    e("s_lshl_b32 s17, s7, 7")
    e("s_add_u32 s16, s16, s17")
    for i in range(16):
        e("s_add_u32 s17, s16, %d" % (i * 8192))
        e("buffer_load_dwordx4 v[%d:%d], v7, %s, s17 offen" % (64 + 4 * i, 67 + 4 * i, srd(SRD_WO)))
    stamp(5)
    e("s_barrier")
    stamp(6)
    e("v_and_b32 v6, 31, v0")
    e("v_lshrrev_b32 v8, 2, v6")
    e("v_lshlrev_b32 v8, 14, v8")
    e("v_and_b32 v10, 3, v0")
    e("v_lshl_add_u32 v8, v10, 3, v8")
    e("ds_read_b64 v[12:13], v8 offset:%d" % (RINGB + 2048))
    e("s_waitcnt lgkmcnt(0)")
    e("v_mov_b32 v14, v12")
    allred("v_max_f32", 14, 4, [2, 3, 4])
    e("v_sub_f32 v15, v12, v14")
    e("v_mul_f32 v15, 0x%x, v15" % LOG2E)
    e("v_exp_f32 v15, v15")
    e("s_nop 0")
    e("v_mul_f32 v16, v15, v13")
    allred("v_add_f32", 16, 4, [2, 3, 4])
    e("v_lshlrev_b32 v8, 2, v6")
    e("ds_write_b32 v8, v15 offset:%d" % SC)
    e("v_mov_b32 v17, v16")
    e("v_mov_b32 v16, v14")
    e("v_lshrrev_b32 v8, 4, v0")
    e("v_and_b32 v10, 15, v0")
    e("v_lshlrev_b32 v18, 9, v8")
    e("v_lshl_add_u32 v18, v10, 5, v18")
    e("v_add_u32 v18, %d, v18" % RINGB)
    e("v_add_u32 v11, 0x10000, v18")
    e("v_lshlrev_b32 v19, 2, v8")
    e("s_waitcnt lgkmcnt(0)")
    for wv in range(8):
        e("ds_read_b32 v%d, v19 offset:%d" % (20 + wv, SC + 16 * wv))
    for j in range(8):
        e("v_mov_b32 v%d, 0" % (28 + j))
    for batch in ((0, 1, 2), (3, 4, 5), (6, 7)):
        for k, wv in enumerate(batch):
            off = (wv & 3) * 16384
            ar = 18 if wv < 4 else 11
            e("ds_read_b128 v[%d:%d], v%d offset:%d" % (36 + 8 * k, 39 + 8 * k, ar, off))
            e("ds_read_b128 v[%d:%d], v%d offset:%d" % (40 + 8 * k, 43 + 8 * k, ar, off + 16))
        e("s_waitcnt lgkmcnt(0)")
        for k, wv in enumerate(batch):
            for j in range(8):
                e("v_fmac_f32 v%d, v%d, v%d" % (28 + j, 20 + wv, 36 + 8 * k + j))
    e("v_lshlrev_b32 v18, 14, v8")
    e("v_lshl_add_u32 v18, v10, 5, v18")
    e("s_lshl_b32 s16, s4, 16")
    e("s_lshl_b32 s17, s5, 9")
    e("s_add_u32 s16, s16, s17")
    e("s_add_u32 s16, s16, %d" % AP)
    e("buffer_store_dwordx4 v[28:31], v18, %s, s16 offen sc1" % srd(SRD_WS))
    e("buffer_store_dwordx4 v[32:35], v18, %s, s16 offen offset:16 sc1" % srd(SRD_WS))
    e("v_lshlrev_b32 v18, 8, v0")
    e("s_lshl_b32 s16, s4, 10")
    e("s_lshl_b32 s17, s5, 3")
    e("s_add_u32 s16, s16, s17")
    e("s_add_u32 s16, s16, %d" % ML)
    e("s_mov_b64 exec, 0xf")
    e("buffer_store_dwordx2 v[16:17], v18, %s, s16 offen sc1" % srd(SRD_WS))
    e("s_mov_b64 exec, -1")
    e("s_mov_b32 s17, s2")
    set_flag(1)
    stamp(7)
    e("v_and_b32 v8, 31, v0")
    e("s_lshl_b32 s16, s4, 5")
    e("v_add_u32 v8, s16, v8")
    e("v_lshlrev_b32 v8, 3, v8")
    e("v_add_u32 v8, %d, v8" % (FLG + 2048))
    poll("L_poll_a", 8, 10)
    stamp(8)
    e("v_and_b32 v6, 31, v0")
    e("v_lshlrev_b32 v8, 3, v6")
    e("s_lshl_b32 s16, s6, 8")
    e("s_add_u32 s16, s16, %d" % ML)
    e("buffer_load_dwordx2 v[12:13], v8, %s, s16 offen sc1" % srd(SRD_WS))
    def apreg(i):
        return 128 + 4 * i if i < 10 else 40 + 4 * (i - 10)
    e("v_lshrrev_b32 v10, 5, v0")
    e("v_lshlrev_b32 v8, 9, v10")
    e("v_lshl_add_u32 v8, v6, 4, v8")
    e("s_lshl_b32 s16, s6, 14")
    e("s_add_u32 s16, s16, %d" % AP)
    for i in range(16):
        e("s_add_u32 s17, s16, %d" % (i * 1024))
        e("buffer_load_dwordx4 v[%d:%d], v8, %s, s17 offen sc1" % (apreg(i), apreg(i) + 3, srd(SRD_WS)))
    e("s_waitcnt vmcnt(16)")
    e("v_mov_b32 v14, v12")
    allred("v_max_f32", 14, 4, [0, 1, 2, 3, 4])
    e("v_sub_f32 v15, v12, v14")
    e("v_mul_f32 v15, 0x%x, v15" % LOG2E)
    e("v_exp_f32 v15, v15")
    e("s_nop 0")
    e("v_mul_f32 v16, v15, v13")
    allred("v_add_f32", 16, 4, [0, 1, 2, 3, 4])
    e("v_lshlrev_b32 v8, 2, v6")
    e("ds_write_b32 v8, v15 offset:%d" % WL)
    e("v_lshlrev_b32 v8, 2, v10")
    e("s_waitcnt lgkmcnt(0)")
    for i in range(16):
        e("ds_read_b32 v%d, v8 offset:%d" % (20 + i, WL + 8 * i))
    for j in range(4):
        e("v_mov_b32 v%d, 0" % (36 + j))
    e("s_waitcnt vmcnt(0) lgkmcnt(0)")
    for i in range(16):
        for j in range(4):
            e("v_fmac_f32 v%d, v%d, v%d" % (36 + j, 20 + i, apreg(i) + j))
    for j in range(4):
        allred("v_add_f32", 36 + j, 4, [5])
    e("v_rcp_f32 v17, v16")
    e("s_nop 0")
    for j in range(4):
        e("v_mul_f32 v18, v%d, v17" % (36 + j))
        e("v_fma_f32 v19, -v18, v16, v%d" % (36 + j))
        e("v_fma_f32 v%d, v19, v17, v18" % (36 + j))
    rnd_bf16_pair(36, 37, 4)
    rnd_bf16_pair(38, 39, 4)
    e("v_lshlrev_b32 v8, 4, v6")
    e("ds_write_b128 v8, v[36:39] offset:%d" % OL)
    e("v_lshrrev_b32 v8, 3, v0")
    e("v_lshlrev_b32 v8, 2, v8")
    e("s_waitcnt lgkmcnt(0)")
    for i in range(16):
        e("ds_read_b32 v%d, v8 offset:%d" % (20 + i, OL + 32 * i))
    e("s_waitcnt lgkmcnt(0)")
    gemv_rows(16, 64, 20, 48)
    e("s_lshl_b32 s16, s7, 13")
    e("s_lshl_b32 s17, s6, 8")
    e("s_add_u32 s16, s16, s17")
    e("s_add_u32 s16, s16, %d" % YA)
    e("v_lshlrev_b32 v6, 5, v0")
    e("s_mov_b64 exec, 0xff")
    e("buffer_store_dwordx4 v[48:51], v6, %s, s16 offen sc1" % srd(SRD_WS))
    e("buffer_store_dwordx4 v[52:55], v6, %s, s16 offen offset:16 sc1" % srd(SRD_WS))
    e("s_mov_b64 exec, -1")
    e("s_lshl_b32 s17, s7, 5")
    e("s_add_u32 s17, s17, s6")
    set_flag(2)
    stamp(9)
    e("s_cmp_ge_u32 s2, 8")
    e("s_cbranch_scc1 L_end")
    e("v_and_b32 v6, 15, v0")
    e("v_lshlrev_b32 v8, 3, v6")
    e("s_lshl_b32 s16, s7, 7")
    e("buffer_load_dwordx2 v[20:21], v8, %s, s16 offen" % srd(SRD_X))
    e("v_and_b32 v12, 31, v0")
    e("s_lshl_b32 s16, s7, 5")
    e("v_add_u32 v12, s16, v12")
    e("v_lshlrev_b32 v12, 3, v12")
    e("v_add_u32 v12, %d, v12" % (FLG + 4096))
    poll("L_poll_f", 12, 10)
    stamp(10)
    e("v_lshrrev_b32 v10, 4, v0")
    e("v_lshlrev_b32 v8, 8, v10")
    e("v_lshl_add_u32 v8, v6, 4, v8")
    e("s_lshl_b32 s16, s7, 13")
    for i in range(8):
        e("s_add_u32 s17, s16, %d" % (YA + i * 1024))
        e("buffer_load_dwordx4 v[%d:%d], v8, %s, s17 offen sc1" % (32 + 4 * i, 35 + 4 * i, srd(SRD_WS)))
    for i in range(8):
        e("s_add_u32 s17, s16, %d" % (YB + i * 1024))
        e("buffer_load_dwordx4 v[%d:%d], v8, %s, s17 offen sc1" % (64 + 4 * i, 67 + 4 * i, srd(SRD_WS)))
    e("s_waitcnt vmcnt(0)")
    for b in (32, 64):
        for i in range(1, 8):
            for j in range(4):
                e("v_add_f32 v%d, v%d, v%d" % (b + j, b + j, b + 4 * i + j))
        for j in range(4):
            allred("v_add_f32", b + j, 4, [4, 5])
    rnd_bf16_pair(32, 33, 4)
    rnd_bf16_pair(34, 35, 4)
    rnd_bf16_pair(64, 65, 4)
    rnd_bf16_pair(66, 67, 4)
    e("v_lshlrev_b32 v22, 16, v20")
    e("v_and_b32 v23, 0xffff0000, v20")
    e("v_lshlrev_b32 v24, 16, v21")
    e("v_and_b32 v25, 0xffff0000, v21")
    for j in range(4):
        e("v_add_f32 v%d, v%d, v%d" % (32 + j, 22 + j, 32 + j))
    rnd_bf16_pair(32, 33, 4)
    rnd_bf16_pair(34, 35, 4)
    for j in range(4):
        e("v_add_f32 v%d, v%d, v%d" % (32 + j, 32 + j, 64 + j))
    e("v_cvt_pk_bf16_f32 v36, v32, v33")
    e("v_cvt_pk_bf16_f32 v37, v34, v35")
    e("v_lshlrev_b32 v8, 3, v6")
    e("s_lshl_b32 s16, s7, 7")
    e("s_mov_b64 exec, 0xffff")
    e("buffer_store_dwordx2 v[36:37], v8, %s, s16 offen" % srd(SRD_OUT))
    e("s_mov_b64 exec, -1")
    stamp(11)

gen()
txt = "\n".join(header() + L + footer(168)) + "\n"
open(OUT, "w").write(txt)
print("wrote", OUT, len(txt), "bytes")
```

```python
import sys

NAME = "parallel_sum__gqa_block_cached__glu_gated_swiglu__decode"
OUT = "cdna_kernels/%s.s" % NAME

NT = True
PACE = 3
LAYOUT = "B"
INIT = 8
NREG = 5
SLEEP = 2
NS = 96
AHEAD = 12
FLG = 0x180000
STAMP = False
DBGTS = False

for a in sys.argv[1:]:
    if a.startswith("nt="): NT = bool(int(a[3:]))
    elif a.startswith("pace="): PACE = int(a[5:])
    elif a.startswith("layout="): LAYOUT = a[7:]
    elif a.startswith("init="): INIT = int(a[5:])
    elif a.startswith("nreg="): NREG = int(a[5:])
    elif a.startswith("sleep="): SLEEP = int(a[6:])
    elif a.startswith("ns="): NS = int(a[3:])
    elif a.startswith("ahead="): AHEAD = int(a[6:])
    elif a.startswith("out="): OUT = a[4:]
    elif a.startswith("stamp="): STAMP = bool(int(a[6:]))
    elif a.startswith("dbgts="): DBGTS = bool(int(a[6:]))

L = []
def e(s=""):
    L.append("    " + s if s and not s.endswith(":") else s)
def lab(s):
    L.append(s + ":")
def c(s):
    L.append("    ; " + s)

XN = 0
RS = XN + 2048
QL = RS + 16384
HL = QL + 1024
WL = HL + 256
OL = WL + 128
SC = OL + 512
LCNT = SC + 128
TK = LCNT + 128
RINGB = 24576
LDS_TOTAL = RINGB + 8 * 16384

QP = 0
GU = 0x10000
AP = 0x20000
ML = 0xA0000
YA = 0xA2000
YB = 0xB2000
TS = 0x100000

SRD_X, SRD_K, SRD_V, SRD_WQ, SRD_WO, SRD_W13, SRD_W2, SRD_OUT, SRD_DBG, SRD_WS = 40, 44, 48, 52, 56, 60, 64, 68, 72, 76
def srd(n): return "s[%d:%d]" % (n, n + 3)

LOG2E = 0x3fb8aa3b
SCALE = 0x3db504f3
EPS = 0x3727c5ac

def header():
    h = []
    h.append("; @launch grid=(256,1,1) block=(576,1,1) lds=%d" % LDS_TOTAL)
    h.append('.amdgcn_target "amdgcn-amd-amdhsa--gfx950"')
    h.append(".text")
    h.append(".globl %s_kernel" % NAME)
    h.append(".p2align 8")
    h.append(".type %s_kernel,@function" % NAME)
    h.append("%s_kernel:" % NAME)
    return h

def footer(nv):
    f = []
    f.append(".section .rodata,\"a\"")
    f.append(".p2align 6")
    f.append(".amdhsa_kernel %s_kernel" % NAME)
    f.append("  .amdhsa_next_free_vgpr %d" % nv)
    f.append("  .amdhsa_next_free_sgpr 102")
    f.append("  .amdhsa_accum_offset %d" % ((nv + 3) // 4 * 4))
    f.append("  .amdhsa_group_segment_fixed_size 0")
    f.append("  .amdhsa_kernarg_size 96")
    f.append("  .amdhsa_user_sgpr_count 2")
    f.append("  .amdhsa_user_sgpr_kernarg_segment_ptr 1")
    f.append("  .amdhsa_system_sgpr_workgroup_id_x 1")
    f.append(".end_amdhsa_kernel")
    return f

def build_srd(d, p, nbytes):
    e("s_mov_b32 s%d, s%d" % (d, p))
    e("s_mov_b32 s%d, s%d" % (d + 1, p + 1))
    e("s_mov_b32 s%d, 0x%x" % (d + 2, nbytes))
    e("s_mov_b32 s%d, 0x00020000" % (d + 3))

def rnd_bf16_pair(a, b, t):
    e("v_cvt_pk_bf16_f32 v%d, v%d, v%d" % (t, a, b))
    e("v_lshlrev_b32 v%d, 16, v%d" % (a, t))
    e("v_and_b32 v%d, 0xffff0000, v%d" % (b, t))
def rnd_bf16(a, t):
    e("v_cvt_pk_bf16_f32 v%d, v%d, v%d" % (t, a, a))
    e("v_lshlrev_b32 v%d, 16, v%d" % (a, t))

def dpp(op, d, a, b, ctrl):
    e("%s_dpp v%d, v%d, v%d %s row_mask:0xf bank_mask:0xf" % (op, d, a, b, ctrl))

def allred(op, v, t, bits):
    for b in bits:
        if b == 0:
            e("s_nop 1"); dpp(op, v, v, v, "quad_perm:[1,0,3,2]")
        elif b == 1:
            e("s_nop 1"); dpp(op, v, v, v, "quad_perm:[2,3,0,1]")
        elif b == 2:
            e("s_nop 1"); dpp(op, v, v, v, "row_ror:4")
        elif b == 3:
            e("s_nop 1"); dpp(op, v, v, v, "row_ror:8")
        elif b == 4:
            e("v_mov_b32 v%d, v%d" % (t, v)); e("s_nop 1")
            e("v_permlane16_swap_b32 v%d, v%d" % (v, t)); e("s_nop 1")
            e("%s v%d, v%d, v%d" % (op, v, v, t))
        elif b == 5:
            e("v_mov_b32 v%d, v%d" % (t, v)); e("s_nop 1")
            e("v_permlane32_swap_b32 v%d, v%d" % (v, t)); e("s_nop 1")
            e("%s v%d, v%d, v%d" % (op, v, v, t))

stamp_idx = [0]
ROLE = ["w"]
def stamp(slot):
    if DBGTS and ROLE[0] == "s":
        e("s_cmp_lg_u32 s2, 0")
        e("s_cbranch_scc1 L_dts%d" % slot)
        e("s_memrealtime s[90:91]")
        e("s_waitcnt lgkmcnt(0)")
        e("v_mov_b32 v2, s90")
        e("v_mov_b32 v1, %d" % (8 + 4 * slot))
        e("s_mov_b64 exec, 1")
        e("buffer_store_dword v2, v1, %s, 0 offen" % srd(SRD_DBG))
        e("s_mov_b64 exec, -1")
        lab("L_dts%d" % slot)
        return
    if not STAMP:
        return
    e("s_memrealtime s[90:91]")
    e("s_waitcnt lgkmcnt(0)")
    a, b, ad = (30, 31, 29) if ROLE[0] == "w" else (2, 3, 1)
    e("v_mov_b32 v%d, s90" % a)
    e("v_mov_b32 v%d, s91" % b)
    e("s_lshl_b32 s92, s2, 4")
    e("s_add_u32 s92, s92, s3")
    e("s_lshl_b32 s92, s92, 7")
    e("s_add_u32 s92, s92, %d" % (TS + slot * 8))
    e("v_mov_b32 v%d, s92" % ad)
    e("buffer_store_dwordx2 v[%d:%d], v%d, %s, 0 offen" % (a, b, ad, srd(SRD_WS)))

def stampS(slot):
    if not STAMP: return
    r = 80 + 2 * (slot - 4)
    e("s_memrealtime s[%d:%d]" % (r, r + 1))
    e("s_waitcnt lgkmcnt(0)")
def stampFlush(slots):
    if not STAMP: return
    for slot in slots:
        r = 80 + 2 * (slot - 4)
        e("v_mov_b32 v30, s%d" % r)
        e("v_mov_b32 v31, s%d" % (r + 1))
        e("s_lshl_b32 s92, s2, 4")
        e("s_add_u32 s92, s92, s3")
        e("s_lshl_b32 s92, s92, 7")
        e("s_add_u32 s92, s92, %d" % (TS + slot * 8))
        e("v_mov_b32 v29, s92")
        e("buffer_store_dwordx2 v[30:31], v29, %s, 0 offen" % srd(SRD_WS))
        e("s_nop 4")

def gen():
    e("s_cmp_ge_u32 s2, 256")
    e("s_cbranch_scc1 L_end")
    e("s_load_dwordx16 s[16:31], s[0:1], 0")
    e("s_load_dwordx8 s[32:39], s[0:1], 64")
    e("v_lshrrev_b32 v1, 6, v0")
    e("v_and_b32 v0, 63, v0")
    e("s_nop 0")
    e("v_readfirstlane_b32 s3, v1")
    e("s_lshr_b32 s4, s2, 5")
    e("s_and_b32 s5, s2, 31")
    e("s_lshr_b32 s6, s2, 3")
    e("s_and_b32 s7, s2, 7")
    e("s_sub_u32 s8, s2, 224")
    e("s_cmp_ge_u32 s2, 224")
    e("s_cselect_b32 s8, s8, s2")
    e("s_cmp_ge_u32 s8, 112")
    e("s_cselect_b32 s9, 1, 0")
    e("s_mul_i32 s10, s9, 112")
    e("s_sub_u32 s10, s8, s10")
    e("s_mov_b32 s11, 0")
    for t in (28, 56, 84):
        e("s_cmp_ge_u32 s10, %d" % t)
        e("s_addc_u32 s11, s11, 0")
    e("s_mul_i32 s12, s11, 28")
    e("s_sub_u32 s12, s10, s12")
    e("s_waitcnt lgkmcnt(0)")
    build_srd(SRD_X, 16, 1024)
    build_srd(SRD_K, 18, 134217728)
    build_srd(SRD_V, 20, 134217728)
    build_srd(SRD_WQ, 22, 4194304)
    build_srd(SRD_WO, 24, 4194304)
    e("s_cmp_eq_u32 s9, 0")
    e("s_cselect_b32 s%d, s28, s30" % SRD_W13)
    e("s_cselect_b32 s%d, s29, s31" % (SRD_W13 + 1))
    e("s_mov_b32 s%d, 0x%x" % (SRD_W13 + 2, 1835008))
    e("s_mov_b32 s%d, 0x00020000" % (SRD_W13 + 3))
    build_srd(SRD_W2, 32, 1835008)
    build_srd(SRD_OUT, 34, 1024)
    build_srd(SRD_DBG, 36, 256)
    build_srd(SRD_WS, 38, 536870912)
    e("s_cmp_eq_u32 s3, 8")
    e("s_cbranch_scc1 L_service")
    worker()
    service()
    lab("L_end")
    e("s_endpgm")

def dma_unit(isK, slot, saddr):
    e("s_add_u32 m0, s15, %d" % (slot * 4096))
    e("s_nop 0")
    for j in range(4):
        dma_piece(isK, j, saddr)
def dma_piece(isK, j, saddr):
    vo = (2 + j) if isK else (6 + (j & 1))
    e("buffer_load_dwordx4 v%d, %s, s%d offen offset:%d%s lds" %
      (vo, srd(SRD_K if isK else SRD_V), saddr, j * 1024, " nt" if NT else ""))

POOLCH = (128 - NS) * 32 // 4
OB = 128
VM, VL = 160, 161
SB = 162
PA = 166

def read_k(bank, slot):
    for sx in range(4):
        e("ds_read_b128 v[%d:%d], v%d offset:%d" % (bank + 4 * sx, bank + 3 + 4 * sx, 8 + sx, slot * 4096))
def read_v(bank, slot):
    for D in range(8):
        e("ds_read_b64_tr_b16 v[%d:%d], v%d offset:%d" % (bank + 2 * D, bank + 1 + 2 * D, 12 + D, slot * 4096))

def qk_softmax(kb):
    for sx in range(4):
        cc = "0" if sx == 0 else "v[%d:%d]" % (SB, SB + 3)
        e("v_mfma_f32_16x16x32_bf16 v[%d:%d], v[%d:%d], v[%d:%d], %s" %
          (SB, SB + 3, kb + 4 * sx, kb + 3 + 4 * sx, 112 + 4 * sx, 115 + 4 * sx, cc))
    e("s_nop 7")
    e("s_nop 1")
    rnd_bf16_pair(SB, SB + 1, 22)
    rnd_bf16_pair(SB + 2, SB + 3, 22)
    for k in range(4):
        e("v_mul_f32 v%d, 0x%x, v%d" % (SB + k, SCALE, SB + k))
    rnd_bf16_pair(SB, SB + 1, 22)
    rnd_bf16_pair(SB + 2, SB + 3, 22)
    e("v_max3_f32 v23, v%d, v%d, v%d" % (SB, SB + 1, SB + 2))
    e("v_max_f32 v23, v23, v%d" % (SB + 3))
    allred("v_max_f32", 23, 22, [4, 5])
    e("v_max_f32 v23, v23, v%d" % VM)
    e("v_sub_f32 v24, v%d, v23" % VM)
    e("v_mov_b32 v%d, v23" % VM)
    e("v_mul_f32 v24, s33, v24")
    for k in range(4):
        e("v_sub_f32 v%d, v%d, v23" % (SB + k, SB + k))
    e("v_exp_f32 v24, v24")
    for k in range(4):
        e("v_mul_f32 v%d, s33, v%d" % (SB + k, SB + k))
    for k in range(4):
        e("v_exp_f32 v%d, v%d" % (SB + k, SB + k))
    e("v_mul_f32 v%d, v%d, v24" % (VL, VL))
    for h in range(4):
        e("v_mov_b32_dpp v%d, v24 quad_perm:[%d,%d,%d,%d] row_mask:0xf bank_mask:0xf" % (26 + h, h, h, h, h))
    for k in range(4):
        e("v_add_f32 v%d, v%d, v%d" % (VL, VL, SB + k))
    e("v_cvt_pk_bf16_f32 v%d, v%d, v%d" % (PA, SB, SB + 1))
    e("v_cvt_pk_bf16_f32 v%d, v%d, v%d" % (PA + 1, SB + 2, SB + 3))
    for D in range(8):
        for h in range(4):
            e("v_mul_f32 v%d, v%d, v%d" % (OB + 4 * D + h, OB + 4 * D + h, 26 + h))
def pv(vb):
    e("s_nop 1")
    for D in range(8):
        e("v_mfma_f32_16x16x16_bf16 v[%d:%d], v[%d:%d], v[%d:%d], v[%d:%d]" %
          (OB + 4 * D, OB + 3 + 4 * D, PA, PA + 1, vb + 2 * D, vb + 1 + 2 * D, OB + 4 * D, OB + 3 + 4 * D))

def get_next(tag):
    e("s_mov_b64 exec, 1")
    e("v_mov_b32 v22, %d" % LCNT)
    e("v_mov_b32 v23, 1")
    e("ds_add_rtn_u32 v23, v22, v23")
    e("s_mov_b64 exec, -1")
    e("s_waitcnt lgkmcnt(0)")
    e("v_readfirstlane_b32 s16, v23")
    e("s_nop 3")
    e("s_cmp_ge_u32 s16, %d" % NS)
    e("s_cbranch_scc1 L_dyn%s" % tag)
    e("s_lshl_b32 s36, s16, 12")
    e("s_add_u32 s36, s36, s14")
    e("s_branch L_got%s" % tag)
    lab("L_dyn%s" % tag)
    e("s_sub_u32 s16, s16, %d" % NS)
    e("s_lshr_b32 s17, s16, 2")
    e("s_min_u32 s17, s17, 270")
    e("s_lshl_b32 s17, s17, 2")
    e("s_add_u32 s17, s17, %d" % TK)
    e("v_mov_b32 v22, s17")
    e("s_mov_b32 s19, 0")
    lab("L_tkw%s" % tag)
    e("ds_read_b32 v23, v22")
    e("s_waitcnt lgkmcnt(0)")
    e("v_readfirstlane_b32 s18, v23")
    e("s_nop 3")
    e("s_cmp_lg_u32 s18, -1")
    e("s_cbranch_scc1 L_tkg%s" % tag)
    e("s_add_u32 s19, s19, 1")
    e("s_cmp_ge_u32 s19, 0x100000")
    e("s_cbranch_scc1 L_tkend%s" % tag)
    e("s_sleep 1")
    e("s_branch L_tkw%s" % tag)
    lab("L_tkg%s" % tag)
    e("s_cmp_ge_u32 s18, %d" % POOLCH)
    e("s_cbranch_scc1 L_tkend%s" % tag)
    e("s_lshl_b32 s18, s18, 2")
    e("s_and_b32 s16, s16, 3")
    e("s_add_u32 s18, s18, s16")
    e("s_lshl_b32 s36, s18, 12")
    e("s_add_u32 s36, s36, s35")
    e("s_branch L_got%s" % tag)
    lab("L_tkend%s" % tag)
    e("s_mov_b32 s37, 1")
    lab("L_got%s" % tag)

def wait12(tag):
    e("s_cmp_eq_u32 s37, 0")
    e("s_cbranch_scc1 L_w%s" % tag)
    e("s_waitcnt vmcnt(0)")
    lab("L_w%s" % tag)
    e("s_waitcnt vmcnt(12)")

def loop_tile(par, tag):
    ks, vs = 2 * par, 2 * par + 1
    e("s_mov_b32 s38, s37")
    e("s_cmp_lg_u32 s37, 0")
    e("s_cbranch_scc1 L_nn%s" % tag)
    get_next(tag)
    lab("L_nn%s" % tag)
    wait12(tag + "a")
    read_k(32, ks)
    e("s_waitcnt lgkmcnt(0)")
    e("s_cmp_lg_u32 s37, 0")
    e("s_cbranch_scc1 L_sk%s" % tag)
    dma_unit(True, ks, 36)
    lab("L_sk%s" % tag)
    qk_softmax(32)
    wait12(tag + "b")
    read_v(48, vs)
    e("s_waitcnt lgkmcnt(0)")
    e("s_cmp_lg_u32 s37, 0")
    e("s_cbranch_scc1 L_sv%s" % tag)
    dma_unit(False, vs, 36)
    lab("L_sv%s" % tag)
    pv(48)
    e("s_cmp_lg_u32 s38, 0")
    e("s_cbranch_scc1 L_wdone")

def worker():
    c("================= worker waves (s3 = 0..7) =================")
    stamp(0)
    e("v_lshlrev_b32 v30, 4, v0")
    e("buffer_load_dwordx4 v[32:35], v30, %s, 0 offen" % srd(SRD_X))
    e("v_lshrrev_b32 v24, 3, v0")
    e("v_and_b32 v25, 7, v0")
    e("v_lshlrev_b32 v26, 13, v24")
    e("v_lshl_add_u32 v26, v25, 4, v26")
    e("s_lshr_b32 s16, s5, 3")
    e("s_and_b32 s17, s5, 7")
    e("s_lshl_b32 s18, s16, 7")
    e("s_lshl_b32 s19, s3, 4")
    e("s_add_u32 s18, s18, s19")
    e("s_lshl_b32 s19, s18, 13")
    e("s_lshl_b32 s20, s4, 10")
    e("s_add_u32 s19, s19, s20")
    e("s_lshl_b32 s20, s17, 7")
    e("s_add_u32 s19, s19, s20")
    e("s_add_u32 s20, s19, 65536")
    e("buffer_load_dwordx4 v[36:39], v26, %s, s19 offen" % srd(SRD_WQ))
    e("buffer_load_dwordx4 v[40:43], v26, %s, s20 offen" % srd(SRD_WQ))
    e("s_movk_i32 s21, 3584")
    e("v_mul_lo_u32 v27, v24, s21")
    e("v_lshl_add_u32 v27, v25, 4, v27")
    e("s_lshl_b32 s22, s11, 7")
    e("s_lshl_b32 s23, s3, 4")
    e("s_add_u32 s22, s22, s23")
    e("s_mul_i32 s23, s22, 3584")
    e("s_lshl_b32 s24, s12, 7")
    e("s_add_u32 s23, s23, s24")
    e("s_add_u32 s24, s23, %d" % (8 * 3584))
    e("buffer_load_dwordx4 v[44:47], v27, %s, s23 offen" % srd(SRD_W13))
    e("buffer_load_dwordx4 v[48:51], v27, %s, s24 offen" % srd(SRD_W13))
    e("s_lshl_b32 s14, s4, 24")
    e("s_add_u32 s35, s14, %d" % (32 * NS * 4096))
    e("s_mul_i32 s15, s5, %d" % (NS * 4096))
    e("s_add_u32 s14, s14, s15")
    e("s_lshl_b32 s15, s3, 12")
    e("s_add_u32 s34, s14, s15")
    e("s_mov_b32 s33, 0x%x" % LOG2E)
    e("s_mov_b32 s37, 0")
    e("s_lshl_b32 s15, s3, 14")
    e("s_add_u32 s15, s15, %d" % RINGB)
    e("v_lshrrev_b32 v20, 4, v0")
    e("v_and_b32 v21, 15, v0")
    e("v_lshlrev_b32 v22, 8, v20")
    e("v_xor_b32 v23, v21, v20")
    for j in range(4):
        e("v_xor_b32 v28, %d, v23" % (4 * j))
        e("v_lshl_add_u32 v%d, v28, 4, v22" % (2 + j))
    e("v_lshlrev_b32 v28, 1, v20")
    e("v_xor_b32 v28, v21, v28")
    e("v_lshl_add_u32 v6, v28, 4, v22")
    e("v_xor_b32 v28, 8, v28")
    e("v_lshl_add_u32 v7, v28, 4, v22")
    def pre_setup(u):
        e("s_add_u32 s20, s34, %d" % ((u // 2) * 32768))
        e("s_add_u32 m0, s15, %d" % ((u % 4) * 4096))
        e("s_nop 0")
    for i in range(INIT):
        if i % 4 == 0:
            pre_setup(i // 4)
        dma_piece((i // 4) % 2 == 0, i % 4, 20)
    nd = INIT
    e("v_lshlrev_b32 v29, 8, v21")
    e("v_add_u32 v29, s15, v29")
    for s in range(4):
        e("v_xor_b32 v28, %d, v23" % (4 * s))
        e("v_lshl_add_u32 v%d, v28, 4, v29" % (8 + s))
    e("v_lshrrev_b32 v28, 2, v21")
    e("v_lshl_add_u32 v28, v20, 2, v28")
    e("v_lshlrev_b32 v29, 8, v28")
    e("v_add_u32 v29, s15, v29")
    e("v_and_b32 v28, 7, v28")
    e("v_lshlrev_b32 v28, 1, v28")
    e("v_and_b32 v31, 3, v21")
    e("v_lshrrev_b32 v52, 1, v31")
    e("v_or_b32 v28, v28, v52")
    e("v_and_b32 v31, 1, v31")
    e("v_lshl_add_u32 v29, v31, 3, v29")
    for D in range(8):
        e("v_xor_b32 v52, %d, v28" % (2 * D))
        e("v_lshl_add_u32 v%d, v52, 4, v29" % (12 + D))
    e("s_waitcnt vmcnt(%d)" % (4 + nd))
    stampS(4)
    for j in range(4):
        e("v_lshlrev_b32 v%d, 16, v%d" % (56 + 2 * j, 32 + j))
        e("v_and_b32 v%d, 0xffff0000, v%d" % (57 + 2 * j, 32 + j))
    e("v_add_f32 v64, v56, v57")
    for j in range(2, 8):
        e("v_add_f32 v64, v64, v%d" % (56 + j))
    allred("v_add_f32", 64, 65, [0, 1, 2, 3, 4, 5])
    e("v_mul_f32 v64, 0x3b000000, v64")
    for j in range(8):
        e("v_sub_f32 v%d, v%d, v64" % (66 + j, 56 + j))
    e("v_mul_f32 v74, v66, v66")
    for j in range(1, 8):
        e("v_fmac_f32 v74, v%d, v%d" % (66 + j, 66 + j))
    allred("v_add_f32", 74, 65, [0, 1, 2, 3, 4, 5])
    e("v_mul_f32 v74, 0x3b000000, v74")
    rnd_bf16_pair(64, 74, 65)
    e("v_add_f32 v74, 0x%x, v74" % EPS)
    rnd_bf16(74, 65)
    e("v_sqrt_f32 v74, v74")
    e("s_nop 0")
    rnd_bf16(74, 65)
    e("v_rcp_f32 v75, v74")
    for j in range(8):
        e("v_sub_f32 v%d, v%d, v64" % (56 + j, 56 + j))
    for j in range(0, 8, 2):
        rnd_bf16_pair(56 + j, 57 + j, 65)
    for j in range(8):
        e("v_mul_f32 v%d, v%d, v75" % (66 + j, 56 + j))
    for j in range(8):
        e("v_fma_f32 v%d, -v%d, v74, v%d" % (76 + j, 66 + j, 56 + j))
    for j in range(8):
        e("v_fma_f32 v%d, v%d, v75, v%d" % (56 + j, 76 + j, 66 + j))
    for j in range(0, 8, 2):
        rnd_bf16_pair(56 + j, 57 + j, 65)
    e("v_lshlrev_b32 v65, 5, v0")
    e("ds_write_b128 v65, v[56:59] offset:%d" % XN)
    e("ds_write_b128 v65, v[60:63] offset:%d" % (XN + 16))
    e("v_add_u32 v65, s18, v24")
    e("v_lshlrev_b32 v65, 2, v65")
    e("v_add_u32 v66, s22, v24")
    e("v_lshlrev_b32 v66, 2, v66")
    e("s_waitcnt lgkmcnt(0)")
    e("ds_read_b32 v68, v65 offset:%d" % XN)
    e("ds_read_b32 v69, v65 offset:%d" % (XN + 32))
    e("ds_read_b32 v70, v66 offset:%d" % XN)
    e("ds_read_b32 v71, v66 offset:%d" % (XN + 32))
    for j in range(16):
        e("v_mov_b32 v%d, 0" % (80 + j))
    e("s_waitcnt vmcnt(%d) lgkmcnt(0)" % nd)
    stampS(5)
    for mat in range(2):
        for row in range(2):
            wbase = 36 + 8 * mat + 4 * row
            xr = 68 + 2 * mat + row
            for j in range(4):
                e("v_lshlrev_b32 v72, 16, v%d" % (wbase + j))
                e("v_and_b32 v73, 0xffff0000, v%d" % (wbase + j))
                e("v_fmac_f32 v%d, v%d, v72" % (80 + 8 * mat + 2 * j, xr))
                e("v_fmac_f32 v%d, v%d, v73" % (81 + 8 * mat + 2 * j, xr))
    e("s_nop 1")
    for j in range(16):
        dpp("v_add_f32", 80 + j, 80 + j, 80 + j, "row_ror:8")
    e("s_lshl_b32 s16, s3, 10")
    e("v_lshl_add_u32 v65, v25, 5, v22")
    e("v_add_u32 v65, s16, v65")
    e("ds_write_b128 v65, v[80:83] offset:%d" % RS)
    e("ds_write_b128 v65, v[84:87] offset:%d" % (RS + 16))
    e("ds_write_b128 v65, v[88:91] offset:%d" % (RS + 8192))
    e("ds_write_b128 v65, v[92:95] offset:%d" % (RS + 8192 + 16))
    e("s_cmp_lg_u32 s3, 0")
    e("s_cbranch_scc1 L_noinit")
    e("v_mov_b32 v66, -1")
    e("v_mov_b32 v67, -1")
    e("v_mov_b32 v68, -1")
    e("v_mov_b32 v69, -1")
    e("v_lshlrev_b32 v65, 4, v0")
    e("ds_write_b128 v65, v[66:69] offset:%d" % TK)
    e("v_lshlrev_b32 v65, 2, v0")
    e("ds_write_b32 v65, v66 offset:%d" % (TK + 1024))
    e("v_mov_b32 v65, 0")
    e("v_mov_b32 v66, 40")
    e("ds_write_b32 v65, v66 offset:%d" % LCNT)
    lab("L_noinit")
    e("s_waitcnt lgkmcnt(0)")
    stampS(6)
    e("s_barrier")
    stamp(1)
    stampFlush([4, 5, 6])
    for i in range(INIT, 36):
        u = i // 4
        e("s_waitcnt vmcnt(%d)" % (PACE - 1))
        if i % 4 == 0 and u >= 4:
            pu = u - 4
            if pu % 2 == 0:
                read_k(32 + 16 * pu, pu % 4)
            else:
                read_v(32 + 16 * pu, pu % 4)
            e("s_waitcnt lgkmcnt(0)")
        if i % 4 == 0 or i == INIT:
            pre_setup(u)
        dma_piece(u % 2 == 0, i % 4, 20)
    for k in range(32):
        e("v_mov_b32 v%d, 0" % (OB + k))
    e("v_mov_b32 v%d, 0xf149f2ca" % VM)
    e("v_mov_b32 v%d, 0" % VL)
    e("s_barrier")
    stamp(2)
    e("v_and_b32 v28, 3, v21")
    e("v_lshlrev_b32 v28, 8, v28")
    e("v_lshl_add_u32 v28, v20, 4, v28")
    for sx in range(4):
        e("ds_read_b128 v[%d:%d], v28 offset:%d" % (112 + 4 * sx, 115 + 4 * sx, QL + 64 * sx))
    e("s_waitcnt lgkmcnt(0)")
    qk_softmax(32); pv(48)
    qk_softmax(64); pv(80)
    qk_softmax(96)
    e("s_waitcnt vmcnt(12)")
    read_v(48, 1)
    e("s_waitcnt lgkmcnt(0)")
    e("s_add_u32 s20, s34, %d" % (4 * 32768))
    dma_unit(False, 1, 20)
    pv(48)
    lab("L_loop")
    loop_tile(1, "o")
    loop_tile(0, "e")
    e("s_branch L_loop")
    lab("L_wdone")
    allred("v_add_f32", VL, 22, [4, 5])
    stamp(3)
    e("s_nop 7")
    e("s_nop 1")
    e("v_lshlrev_b32 v28, 2, v0")
    e("v_add_u32 v28, s15, v28")
    e("s_mov_b64 exec, 0xffff")
    for D in range(8):
        for h in range(4):
            e("ds_write_b32 v28, v%d offset:%d" % (OB + 4 * D + h, h * 512 + D * 64))
    e("s_mov_b64 exec, 0xf")
    e("v_lshlrev_b32 v28, 3, v0")
    e("v_add_u32 v28, s15, v28")
    e("ds_write_b64 v28, v[%d:%d] offset:2048" % (VM, VL))
    e("s_mov_b64 exec, -1")
    e("s_waitcnt lgkmcnt(0)")
    e("s_barrier")
    e("s_endpgm")

def poll(label, vaddr, vtmp):
    e("s_mov_b32 s16, 0")
    lab(label)
    e("buffer_load_dwordx2 v[%d:%d], v%d, %s, 0 offen sc1" % (vtmp, vtmp + 1, vaddr, srd(SRD_WS)))
    e("s_waitcnt vmcnt(0)")
    e("v_cmp_ne_u64 vcc, s[94:95], v[%d:%d]" % (vtmp, vtmp + 1))
    e("s_nop 1")
    e("s_cbranch_vccz %s_done" % label)
    e("s_add_u32 s16, s16, 1")
    e("s_cmp_ge_u32 s16, 0x40000")
    e("s_cbranch_scc1 %s_done" % label)
    e("s_sleep %d" % SLEEP)
    e("s_branch %s" % label)
    lab(label + "_done")

def set_flag(ph):
    e("s_waitcnt vmcnt(0)")
    e("v_mov_b32 v2, s94")
    e("v_mov_b32 v3, s95")
    e("s_lshl_b32 s17, s17, 3")
    e("s_add_u32 s17, s17, %d" % (FLG + ph * 2048))
    e("v_mov_b32 v1, s17")
    e("s_mov_b64 exec, 1")
    e("buffer_store_dwordx2 v[2:3], v1, %s, 0 offen sc1" % srd(SRD_WS))
    e("s_mov_b64 exec, -1")

def gemv_rows(nrows, wbase, xbase, acc):
    for j in range(8):
        e("v_mov_b32 v%d, 0" % (acc + j))
    for i in range(nrows):
        for j in range(4):
            e("v_lshlrev_b32 v4, 16, v%d" % (wbase + 4 * i + j))
            e("v_and_b32 v5, 0xffff0000, v%d" % (wbase + 4 * i + j))
            e("v_fmac_f32 v%d, v%d, v4" % (acc + 2 * j, xbase + i))
            e("v_fmac_f32 v%d, v%d, v5" % (acc + 2 * j + 1, xbase + i))
    for j in range(8):
        allred("v_add_f32", acc + j, 4, [3, 4, 5])

def service():
    lab("L_service")
    ROLE[0] = "s"
    c("================= service wave =================")
    stamp(0)
    e("v_lshrrev_b32 v24, 3, v0")
    e("v_and_b32 v25, 7, v0")
    e("v_mov_b32 v1, 0")
    e("s_cmp_lg_u32 s2, 0")
    e("s_cbranch_scc1 L_nonce_wait")
    e("s_memrealtime s[94:95]")
    e("s_waitcnt lgkmcnt(0)")
    e("s_or_b32 s94, s94, 1")
    e("v_mov_b32 v2, s94")
    e("v_mov_b32 v3, s95")
    e("s_mov_b64 exec, 1")
    e("buffer_store_dwordx2 v[2:3], v1, %s, 0 offen sc1" % srd(SRD_DBG))
    e("s_mov_b64 exec, -1")
    lab("L_nonce_wait")
    e("s_barrier")
    stamp(1)
    e("v_lshlrev_b32 v6, 2, v0")
    for mat in range(2):
        for sl in range(32):
            e("ds_read_b32 v%d, v6 offset:%d" % (32 + 32 * mat + sl, RS + mat * 8192 + sl * 256))
        e("s_waitcnt lgkmcnt(0)")
    for mat in range(2):
        b = 32 + 32 * mat
        for st in (16, 8, 4, 2, 1):
            for k in range(st):
                e("v_add_f32 v%d, v%d, v%d" % (b + k, b + k, b + k + st))
    e("s_lshr_b32 s16, s5, 3")
    e("s_lshl_b32 s16, s16, 14")
    e("s_lshl_b32 s17, s4, 11")
    e("s_add_u32 s16, s16, s17")
    e("s_and_b32 s17, s5, 7")
    e("s_lshl_b32 s17, s17, 8")
    e("s_add_u32 s16, s16, s17")
    e("s_add_u32 s16, s16, %d" % QP)
    e("buffer_store_dword v32, v6, %s, s16 offen sc1" % srd(SRD_WS))
    e("s_mul_i32 s16, s9, %d" % (4 * 1792 * 4))
    e("s_mul_i32 s17, s11, %d" % (1792 * 4))
    e("s_add_u32 s16, s16, s17")
    e("s_lshl_b32 s17, s12, 8")
    e("s_add_u32 s16, s16, s17")
    e("s_add_u32 s16, s16, %d" % GU)
    e("buffer_store_dword v64, v6, %s, s16 offen sc1" % srd(SRD_WS))
    e("v_mov_b32 v1, 0")
    e("s_mov_b32 s16, 0")
    lab("L_nonce_loop")
    e("buffer_load_dwordx2 v[2:3], v1, %s, 0 offen sc1" % srd(SRD_DBG))
    e("s_waitcnt vmcnt(0)")
    e("v_readfirstlane_b32 s94, v2")
    e("v_readfirstlane_b32 s95, v3")
    e("s_nop 3")
    e("s_and_b32 s17, s94, 1")
    e("s_cmp_lg_u32 s17, 0")
    e("s_cbranch_scc1 L_nonce_done")
    e("s_add_u32 s16, s16, 1")
    e("s_cmp_ge_u32 s16, 0x40000")
    e("s_cbranch_scc1 L_nonce_done")
    e("s_sleep 4")
    e("s_branch L_nonce_loop")
    lab("L_nonce_done")
    stamp(12)
    e("s_mov_b32 s17, s2")
    set_flag(0)
    stamp(2)
    e("v_and_b32 v8, 31, v0")
    e("s_lshl_b32 s16, s4, 5")
    e("v_add_u32 v8, s16, v8")
    e("v_lshlrev_b32 v8, 3, v8")
    e("v_add_u32 v8, %d, v8" % FLG)
    poll("L_poll_q", 8, 10)
    stamp(3)
    e("v_lshlrev_b32 v6, 5, v0")
    e("s_lshl_b32 s16, s4, 11")
    e("s_add_u32 s16, s16, %d" % QP)
    for kq in range(4):
        e("s_add_u32 s17, s16, %d" % (kq * 16384))
        e("buffer_load_dwordx4 v[%d:%d], v6, %s, s17 offen sc1" % (32 + 8 * kq, 35 + 8 * kq, srd(SRD_WS)))
        e("buffer_load_dwordx4 v[%d:%d], v6, %s, s17 offen offset:16 sc1" % (36 + 8 * kq, 39 + 8 * kq, srd(SRD_WS)))
    e("s_waitcnt vmcnt(0)")
    for kq in range(1, 4):
        for j in range(8):
            e("v_add_f32 v%d, v%d, v%d" % (32 + j, 32 + j, 32 + 8 * kq + j))
    for j in range(4):
        e("v_cvt_pk_bf16_f32 v%d, v%d, v%d" % (40 + j, 32 + 2 * j, 33 + 2 * j))
    e("v_lshlrev_b32 v6, 4, v0")
    e("ds_write_b128 v6, v[40:43] offset:%d" % QL)
    e("s_waitcnt lgkmcnt(0)")
    e("s_barrier")
    stamp(4)
    for k in range(4):
        e("v_lshlrev_b32 v8, 3, v0")
        e("v_add_u32 v8, %d, v8" % (FLG + 512 * k))
        poll("L_poll_b%d" % k, 8, 10)
    e("v_lshlrev_b32 v7, 10, v24")
    e("v_lshl_add_u32 v7, v25, 4, v7")
    e("s_mul_i32 s16, s6, %d" % (56 * 1024))
    e("s_lshl_b32 s17, s7, 7")
    e("s_add_u32 s16, s16, s17")
    for i in range(7):
        e("s_add_u32 s17, s16, %d" % (i * 8192))
        e("buffer_load_dwordx4 v[%d:%d], v7, %s, s17 offen" % (64 + 4 * i, 67 + 4 * i, srd(SRD_W2)))
    e("v_min_u32 v6, 55, v0")
    e("s_mul_i32 s16, s6, 56")
    e("v_add_u32 v6, s16, v6")
    e("v_lshlrev_b32 v6, 2, v6")
    for m in range(2):
        for kq in range(4):
            e("s_mov_b32 s17, %d" % (GU + (m * 4 + kq) * 1792 * 4))
            e("buffer_load_dword v%d, v6, %s, s17 offen sc1" % (32 + 4 * m + kq, srd(SRD_WS)))
    e("s_waitcnt vmcnt(0)")
    for m in range(2):
        for kq in range(1, 4):
            e("v_add_f32 v%d, v%d, v%d" % (32 + 4 * m, 32 + 4 * m, 32 + 4 * m + kq))
    rnd_bf16_pair(32, 36, 4)
    e("v_mul_f32 v33, 0x%x, v32" % (LOG2E | 0x80000000))
    e("v_exp_f32 v33, v33")
    e("s_nop 0")
    e("v_add_f32 v33, 1.0, v33")
    e("v_rcp_f32 v34, v33")
    e("s_nop 0")
    e("v_mul_f32 v35, v32, v34")
    rnd_bf16(35, 4)
    e("v_mul_f32 v35, v35, v36")
    rnd_bf16(35, 4)
    e("v_lshlrev_b32 v6, 2, v0")
    e("ds_write_b32 v6, v35 offset:%d" % HL)
    e("v_lshlrev_b32 v6, 2, v24")
    e("s_waitcnt lgkmcnt(0)")
    for i in range(7):
        e("ds_read_b32 v%d, v6 offset:%d" % (32 + i, HL + 32 * i))
    e("s_waitcnt lgkmcnt(0)")
    gemv_rows(7, 64, 32, 40)
    e("s_lshl_b32 s16, s7, 13")
    e("s_lshl_b32 s17, s6, 8")
    e("s_add_u32 s16, s16, s17")
    e("s_add_u32 s16, s16, %d" % YB)
    e("v_lshlrev_b32 v6, 5, v0")
    e("s_mov_b64 exec, 0xff")
    e("buffer_store_dwordx4 v[40:43], v6, %s, s16 offen sc1" % srd(SRD_WS))
    e("buffer_store_dwordx4 v[44:47], v6, %s, s16 offen offset:16 sc1" % srd(SRD_WS))
    e("s_mov_b64 exec, -1")
    e("s_lshl_b32 s16, s6, 17")
    e("s_lshl_b32 s17, s7, 7")
    e("s_add_u32 s16, s16, s17")
    for i in range(16):
        e("s_add_u32 s17, s16, %d" % (i * 8192))
        e("buffer_load_dwordx4 v[%d:%d], v7, %s, s17 offen" % (64 + 4 * i, 67 + 4 * i, srd(SRD_WO)))
    stamp(5)
    e("s_mov_b32 s18, 0")
    e("s_mov_b32 s19, 0")
    e("v_mov_b32 v8, %d" % LCNT)
    e("s_lshl_b32 s16, s4, 2")
    e("s_add_u32 s16, s16, 64")
    e("v_mov_b32 v9, s16")
    lab("L_tk_loop")
    e("ds_read_b32 v10, v8")
    e("s_waitcnt lgkmcnt(0)")
    e("v_readfirstlane_b32 s16, v10")
    e("s_nop 3")
    e("s_add_u32 s16, s16, %d" % AHEAD)
    e("s_lshl_b32 s17, s18, 2")
    e("s_add_u32 s17, s17, %d" % NS)
    e("s_cmp_gt_u32 s16, s17")
    e("s_cbranch_scc1 L_tk_fetch")
    e("s_add_u32 s19, s19, 1")
    e("s_cmp_ge_u32 s19, 0x200000")
    e("s_cbranch_scc1 L_tk_end")
    e("s_sleep 2")
    e("s_branch L_tk_loop")
    lab("L_tk_fetch")
    e("v_mov_b32 v10, 1")
    e("s_mov_b64 exec, 1")
    e("buffer_atomic_add v10, v9, %s, 0 offen sc0" % srd(SRD_DBG))
    e("s_waitcnt vmcnt(0)")
    e("s_lshl_b32 s17, s18, 2")
    e("s_add_u32 s17, s17, %d" % TK)
    e("v_mov_b32 v11, s17")
    e("ds_write_b32 v11, v10")
    e("s_mov_b64 exec, -1")
    e("v_readfirstlane_b32 s16, v10")
    e("s_add_u32 s18, s18, 1")
    e("s_nop 3")
    e("s_cmp_lt_u32 s16, %d" % POOLCH)
    e("s_cbranch_scc1 L_tk_loop")
    lab("L_tk_end")
    e("s_lshl_b32 s17, s18, 2")
    e("s_add_u32 s17, s17, %d" % TK)
    e("v_lshlrev_b32 v11, 2, v0")
    e("v_add_u32 v11, s17, v11")
    e("v_mov_b32 v10, 0x7fffffff")
    e("s_mov_b64 exec, 0xff")
    e("ds_write_b32 v11, v10")
    e("s_mov_b64 exec, -1")
    e("s_waitcnt lgkmcnt(0)")
    e("s_barrier")
    stamp(6)
    e("v_and_b32 v6, 31, v0")
    e("v_lshrrev_b32 v8, 2, v6")
    e("v_lshlrev_b32 v8, 14, v8")
    e("v_and_b32 v10, 3, v0")
    e("v_lshl_add_u32 v8, v10, 3, v8")
    e("ds_read_b64 v[12:13], v8 offset:%d" % (RINGB + 2048))
    e("s_waitcnt lgkmcnt(0)")
    e("v_mov_b32 v14, v12")
    allred("v_max_f32", 14, 4, [2, 3, 4])
    e("v_sub_f32 v15, v12, v14")
    e("v_mul_f32 v15, 0x%x, v15" % LOG2E)
    e("v_exp_f32 v15, v15")
    e("s_nop 0")
    e("v_mul_f32 v16, v15, v13")
    allred("v_add_f32", 16, 4, [2, 3, 4])
    e("v_lshlrev_b32 v8, 2, v6")
    e("ds_write_b32 v8, v15 offset:%d" % SC)
    e("v_mov_b32 v17, v16")
    e("v_mov_b32 v16, v14")
    e("v_lshrrev_b32 v8, 4, v0")
    e("v_and_b32 v10, 15, v0")
    e("v_lshlrev_b32 v18, 9, v8")
    e("v_lshl_add_u32 v18, v10, 5, v18")
    e("v_add_u32 v18, %d, v18" % RINGB)
    e("v_add_u32 v11, 0x10000, v18")
    e("v_lshlrev_b32 v19, 2, v8")
    e("s_waitcnt lgkmcnt(0)")
    for wv in range(8):
        e("ds_read_b32 v%d, v19 offset:%d" % (20 + wv, SC + 16 * wv))
    for j in range(8):
        e("v_mov_b32 v%d, 0" % (28 + j))
    for batch in ((0, 1, 2), (3, 4, 5), (6, 7)):
        for k, wv in enumerate(batch):
            off = (wv & 3) * 16384
            ar = 18 if wv < 4 else 11
            e("ds_read_b128 v[%d:%d], v%d offset:%d" % (36 + 8 * k, 39 + 8 * k, ar, off))
            e("ds_read_b128 v[%d:%d], v%d offset:%d" % (40 + 8 * k, 43 + 8 * k, ar, off + 16))
        e("s_waitcnt lgkmcnt(0)")
        for k, wv in enumerate(batch):
            for j in range(8):
                e("v_fmac_f32 v%d, v%d, v%d" % (28 + j, 20 + wv, 36 + 8 * k + j))
    e("v_lshlrev_b32 v18, 14, v8")
    e("v_lshl_add_u32 v18, v10, 5, v18")
    e("s_lshl_b32 s16, s4, 16")
    e("s_lshl_b32 s17, s5, 9")
    e("s_add_u32 s16, s16, s17")
    e("s_add_u32 s16, s16, %d" % AP)
    e("buffer_store_dwordx4 v[28:31], v18, %s, s16 offen sc1" % srd(SRD_WS))
    e("buffer_store_dwordx4 v[32:35], v18, %s, s16 offen offset:16 sc1" % srd(SRD_WS))
    e("v_lshlrev_b32 v18, 8, v0")
    e("s_lshl_b32 s16, s4, 10")
    e("s_lshl_b32 s17, s5, 3")
    e("s_add_u32 s16, s16, s17")
    e("s_add_u32 s16, s16, %d" % ML)
    e("s_mov_b64 exec, 0xf")
    e("buffer_store_dwordx2 v[16:17], v18, %s, s16 offen sc1" % srd(SRD_WS))
    e("s_mov_b64 exec, -1")
    e("s_mov_b32 s17, s2")
    set_flag(1)
    stamp(7)
    e("v_and_b32 v8, 31, v0")
    e("s_lshl_b32 s16, s4, 5")
    e("v_add_u32 v8, s16, v8")
    e("v_lshlrev_b32 v8, 3, v8")
    e("v_add_u32 v8, %d, v8" % (FLG + 2048))
    poll("L_poll_a", 8, 10)
    stamp(8)
    e("v_and_b32 v6, 31, v0")
    e("v_lshlrev_b32 v8, 3, v6")
    e("s_lshl_b32 s16, s6, 8")
    e("s_add_u32 s16, s16, %d" % ML)
    e("buffer_load_dwordx2 v[12:13], v8, %s, s16 offen sc1" % srd(SRD_WS))
    def apreg(i):
        return 128 + 4 * i if i < 10 else 40 + 4 * (i - 10)
    e("v_lshrrev_b32 v10, 5, v0")
    e("v_lshlrev_b32 v8, 9, v10")
    e("v_lshl_add_u32 v8, v6, 4, v8")
    e("s_lshl_b32 s16, s6, 14")
    e("s_add_u32 s16, s16, %d" % AP)
    for i in range(16):
        e("s_add_u32 s17, s16, %d" % (i * 1024))
        e("buffer_load_dwordx4 v[%d:%d], v8, %s, s17 offen sc1" % (apreg(i), apreg(i) + 3, srd(SRD_WS)))
    e("s_waitcnt vmcnt(16)")
    e("v_mov_b32 v14, v12")
    allred("v_max_f32", 14, 4, [0, 1, 2, 3, 4])
    e("v_sub_f32 v15, v12, v14")
    e("v_mul_f32 v15, 0x%x, v15" % LOG2E)
    e("v_exp_f32 v15, v15")
    e("s_nop 0")
    e("v_mul_f32 v16, v15, v13")
    allred("v_add_f32", 16, 4, [0, 1, 2, 3, 4])
    e("v_lshlrev_b32 v8, 2, v6")
    e("ds_write_b32 v8, v15 offset:%d" % WL)
    e("v_lshlrev_b32 v8, 2, v10")
    e("s_waitcnt lgkmcnt(0)")
    for i in range(16):
        e("ds_read_b32 v%d, v8 offset:%d" % (20 + i, WL + 8 * i))
    for j in range(4):
        e("v_mov_b32 v%d, 0" % (36 + j))
    e("s_waitcnt vmcnt(0) lgkmcnt(0)")
    for i in range(16):
        for j in range(4):
            e("v_fmac_f32 v%d, v%d, v%d" % (36 + j, 20 + i, apreg(i) + j))
    for j in range(4):
        allred("v_add_f32", 36 + j, 4, [5])
    e("v_rcp_f32 v17, v16")
    e("s_nop 0")
    for j in range(4):
        e("v_mul_f32 v18, v%d, v17" % (36 + j))
        e("v_fma_f32 v19, -v18, v16, v%d" % (36 + j))
        e("v_fma_f32 v%d, v19, v17, v18" % (36 + j))
    rnd_bf16_pair(36, 37, 4)
    rnd_bf16_pair(38, 39, 4)
    e("v_lshlrev_b32 v8, 4, v6")
    e("ds_write_b128 v8, v[36:39] offset:%d" % OL)
    e("v_lshrrev_b32 v8, 3, v0")
    e("v_lshlrev_b32 v8, 2, v8")
    e("s_waitcnt lgkmcnt(0)")
    for i in range(16):
        e("ds_read_b32 v%d, v8 offset:%d" % (20 + i, OL + 32 * i))
    e("s_waitcnt lgkmcnt(0)")
    gemv_rows(16, 64, 20, 48)
    e("s_lshl_b32 s16, s7, 13")
    e("s_lshl_b32 s17, s6, 8")
    e("s_add_u32 s16, s16, s17")
    e("s_add_u32 s16, s16, %d" % YA)
    e("v_lshlrev_b32 v6, 5, v0")
    e("s_mov_b64 exec, 0xff")
    e("buffer_store_dwordx4 v[48:51], v6, %s, s16 offen sc1" % srd(SRD_WS))
    e("buffer_store_dwordx4 v[52:55], v6, %s, s16 offen offset:16 sc1" % srd(SRD_WS))
    e("s_mov_b64 exec, -1")
    e("s_lshl_b32 s17, s7, 5")
    e("s_add_u32 s17, s17, s6")
    set_flag(2)
    stamp(9)
    e("s_cmp_ge_u32 s2, 8")
    e("s_cbranch_scc1 L_end")
    e("v_and_b32 v6, 15, v0")
    e("v_lshlrev_b32 v8, 3, v6")
    e("s_lshl_b32 s16, s7, 7")
    e("buffer_load_dwordx2 v[20:21], v8, %s, s16 offen" % srd(SRD_X))
    e("v_and_b32 v12, 31, v0")
    e("s_lshl_b32 s16, s7, 5")
    e("v_add_u32 v12, s16, v12")
    e("v_lshlrev_b32 v12, 3, v12")
    e("v_add_u32 v12, %d, v12" % (FLG + 4096))
    poll("L_poll_f", 12, 10)
    stamp(10)
    e("v_lshrrev_b32 v10, 4, v0")
    e("v_lshlrev_b32 v8, 8, v10")
    e("v_lshl_add_u32 v8, v6, 4, v8")
    e("s_lshl_b32 s16, s7, 13")
    for i in range(8):
        e("s_add_u32 s17, s16, %d" % (YA + i * 1024))
        e("buffer_load_dwordx4 v[%d:%d], v8, %s, s17 offen sc1" % (32 + 4 * i, 35 + 4 * i, srd(SRD_WS)))
    for i in range(8):
        e("s_add_u32 s17, s16, %d" % (YB + i * 1024))
        e("buffer_load_dwordx4 v[%d:%d], v8, %s, s17 offen sc1" % (64 + 4 * i, 67 + 4 * i, srd(SRD_WS)))
    e("s_waitcnt vmcnt(0)")
    for b in (32, 64):
        for i in range(1, 8):
            for j in range(4):
                e("v_add_f32 v%d, v%d, v%d" % (b + j, b + j, b + 4 * i + j))
        for j in range(4):
            allred("v_add_f32", b + j, 4, [4, 5])
    rnd_bf16_pair(32, 33, 4)
    rnd_bf16_pair(34, 35, 4)
    rnd_bf16_pair(64, 65, 4)
    rnd_bf16_pair(66, 67, 4)
    e("v_lshlrev_b32 v22, 16, v20")
    e("v_and_b32 v23, 0xffff0000, v20")
    e("v_lshlrev_b32 v24, 16, v21")
    e("v_and_b32 v25, 0xffff0000, v21")
    for j in range(4):
        e("v_add_f32 v%d, v%d, v%d" % (32 + j, 22 + j, 32 + j))
    rnd_bf16_pair(32, 33, 4)
    rnd_bf16_pair(34, 35, 4)
    for j in range(4):
        e("v_add_f32 v%d, v%d, v%d" % (32 + j, 32 + j, 64 + j))
    e("v_cvt_pk_bf16_f32 v36, v32, v33")
    e("v_cvt_pk_bf16_f32 v37, v34, v35")
    e("v_lshlrev_b32 v8, 3, v6")
    e("s_lshl_b32 s16, s7, 7")
    e("s_mov_b64 exec, 0xffff")
    e("buffer_store_dwordx2 v[36:37], v8, %s, s16 offen" % srd(SRD_OUT))
    e("s_mov_b64 exec, -1")
    stamp(11)

gen()
txt = "\n".join(header() + L + footer(168)) + "\n"
open(OUT, "w").write(txt)
print("wrote", OUT, len(txt), "bytes")
```

```python
import sys

NAME = "parallel_sum__gqa_block_cached__glu_gated_swiglu__decode"
OUT = "cdna_kernels/%s.s" % NAME

NT = True
PACE = 3
LAYOUT = "B"
INIT = 8
NREG = 5
SLEEP = 2
NS = 96
AHEAD = 12
FLG = 0x180000
STAMP = False
DBGTS = False

for a in sys.argv[1:]:
    if a.startswith("nt="): NT = bool(int(a[3:]))
    elif a.startswith("pace="): PACE = int(a[5:])
    elif a.startswith("layout="): LAYOUT = a[7:]
    elif a.startswith("init="): INIT = int(a[5:])
    elif a.startswith("nreg="): NREG = int(a[5:])
    elif a.startswith("sleep="): SLEEP = int(a[6:])
    elif a.startswith("ns="): NS = int(a[3:])
    elif a.startswith("ahead="): AHEAD = int(a[6:])
    elif a.startswith("out="): OUT = a[4:]
    elif a.startswith("stamp="): STAMP = bool(int(a[6:]))
    elif a.startswith("dbgts="): DBGTS = bool(int(a[6:]))

L = []
def e(s=""):
    L.append("    " + s if s and not s.endswith(":") else s)
def lab(s):
    L.append(s + ":")
def c(s):
    L.append("    ; " + s)

XN = 0
RS = XN + 2048
QL = RS + 16384
HL = QL + 1024
WL = HL + 256
OL = WL + 128
SC = OL + 512
LCNT = SC + 128
TK = LCNT + 128
RINGB = 24576
LDS_TOTAL = RINGB + 8 * 16384

QP = 0
GU = 0x10000
AP = 0x20000
ML = 0xA0000
YA = 0xA2000
YB = 0xB2000
TS = 0x100000

SRD_X, SRD_K, SRD_V, SRD_WQ, SRD_WO, SRD_W13, SRD_W2, SRD_OUT, SRD_DBG, SRD_WS = 40, 44, 48, 52, 56, 60, 64, 68, 72, 76
def srd(n): return "s[%d:%d]" % (n, n + 3)

LOG2E = 0x3fb8aa3b
SCALE = 0x3db504f3
EPS = 0x3727c5ac

def header():
    h = []
    h.append("; @launch grid=(256,1,1) block=(576,1,1) lds=%d" % LDS_TOTAL)
    h.append('.amdgcn_target "amdgcn-amd-amdhsa--gfx950"')
    h.append(".text")
    h.append(".globl %s_kernel" % NAME)
    h.append(".p2align 8")
    h.append(".type %s_kernel,@function" % NAME)
    h.append("%s_kernel:" % NAME)
    return h

def footer(nv):
    f = []
    f.append(".section .rodata,\"a\"")
    f.append(".p2align 6")
    f.append(".amdhsa_kernel %s_kernel" % NAME)
    f.append("  .amdhsa_next_free_vgpr %d" % nv)
    f.append("  .amdhsa_next_free_sgpr 102")
    f.append("  .amdhsa_accum_offset %d" % ((nv + 3) // 4 * 4))
    f.append("  .amdhsa_group_segment_fixed_size 0")
    f.append("  .amdhsa_kernarg_size 96")
    f.append("  .amdhsa_user_sgpr_count 2")
    f.append("  .amdhsa_user_sgpr_kernarg_segment_ptr 1")
    f.append("  .amdhsa_system_sgpr_workgroup_id_x 1")
    f.append(".end_amdhsa_kernel")
    return f

def build_srd(d, p, nbytes):
    e("s_mov_b32 s%d, s%d" % (d, p))
    e("s_mov_b32 s%d, s%d" % (d + 1, p + 1))
    e("s_mov_b32 s%d, 0x%x" % (d + 2, nbytes))
    e("s_mov_b32 s%d, 0x00020000" % (d + 3))

def rnd_bf16_pair(a, b, t):
    e("v_cvt_pk_bf16_f32 v%d, v%d, v%d" % (t, a, b))
    e("v_lshlrev_b32 v%d, 16, v%d" % (a, t))
    e("v_and_b32 v%d, 0xffff0000, v%d" % (b, t))
def rnd_bf16(a, t):
    e("v_cvt_pk_bf16_f32 v%d, v%d, v%d" % (t, a, a))
    e("v_lshlrev_b32 v%d, 16, v%d" % (a, t))

def dpp(op, d, a, b, ctrl):
    e("%s_dpp v%d, v%d, v%d %s row_mask:0xf bank_mask:0xf" % (op, d, a, b, ctrl))

def allred(op, v, t, bits):
    for b in bits:
        if b == 0:
            e("s_nop 1"); dpp(op, v, v, v, "quad_perm:[1,0,3,2]")
        elif b == 1:
            e("s_nop 1"); dpp(op, v, v, v, "quad_perm:[2,3,0,1]")
        elif b == 2:
            e("s_nop 1"); dpp(op, v, v, v, "row_ror:4")
        elif b == 3:
            e("s_nop 1"); dpp(op, v, v, v, "row_ror:8")
        elif b == 4:
            e("v_mov_b32 v%d, v%d" % (t, v)); e("s_nop 1")
            e("v_permlane16_swap_b32 v%d, v%d" % (v, t)); e("s_nop 1")
            e("%s v%d, v%d, v%d" % (op, v, v, t))
        elif b == 5:
            e("v_mov_b32 v%d, v%d" % (t, v)); e("s_nop 1")
            e("v_permlane32_swap_b32 v%d, v%d" % (v, t)); e("s_nop 1")
            e("%s v%d, v%d, v%d" % (op, v, v, t))

stamp_idx = [0]
ROLE = ["w"]
def stamp(slot):
    if DBGTS and ROLE[0] == "s":
        e("s_cmp_lg_u32 s2, 0")
        e("s_cbranch_scc1 L_dts%d" % slot)
        e("s_memrealtime s[90:91]")
        e("s_waitcnt lgkmcnt(0)")
        e("v_mov_b32 v2, s90")
        e("v_mov_b32 v1, %d" % (8 + 4 * slot))
        e("s_mov_b64 exec, 1")
        e("buffer_store_dword v2, v1, %s, 0 offen" % srd(SRD_DBG))
        e("s_mov_b64 exec, -1")
        lab("L_dts%d" % slot)
        return
    if not STAMP:
        return
    e("s_memrealtime s[90:91]")
    e("s_waitcnt lgkmcnt(0)")
    a, b, ad = (30, 31, 29) if ROLE[0] == "w" else (2, 3, 1)
    e("v_mov_b32 v%d, s90" % a)
    e("v_mov_b32 v%d, s91" % b)
    e("s_lshl_b32 s92, s2, 4")
    e("s_add_u32 s92, s92, s3")
    e("s_lshl_b32 s92, s92, 7")
    e("s_add_u32 s92, s92, %d" % (TS + slot * 8))
    e("v_mov_b32 v%d, s92" % ad)
    e("buffer_store_dwordx2 v[%d:%d], v%d, %s, 0 offen" % (a, b, ad, srd(SRD_WS)))

def stampS(slot):
    if not STAMP: return
    r = 80 + 2 * (slot - 4)
    e("s_memrealtime s[%d:%d]" % (r, r + 1))
    e("s_waitcnt lgkmcnt(0)")
def stampFlush(slots):
    if not STAMP: return
    for slot in slots:
        r = 80 + 2 * (slot - 4)
        e("v_mov_b32 v30, s%d" % r)
        e("v_mov_b32 v31, s%d" % (r + 1))
        e("s_lshl_b32 s92, s2, 4")
        e("s_add_u32 s92, s92, s3")
        e("s_lshl_b32 s92, s92, 7")
        e("s_add_u32 s92, s92, %d" % (TS + slot * 8))
        e("v_mov_b32 v29, s92")
        e("buffer_store_dwordx2 v[30:31], v29, %s, 0 offen" % srd(SRD_WS))
        e("s_nop 4")

def gen():
    e("s_cmp_ge_u32 s2, 256")
    e("s_cbranch_scc1 L_end")
    e("s_load_dwordx16 s[16:31], s[0:1], 0")
    e("s_load_dwordx8 s[32:39], s[0:1], 64")
    e("v_lshrrev_b32 v1, 6, v0")
    e("v_and_b32 v0, 63, v0")
    e("s_nop 0")
    e("v_readfirstlane_b32 s3, v1")
    e("s_lshr_b32 s4, s2, 5")
    e("s_and_b32 s5, s2, 31")
    e("s_lshr_b32 s6, s2, 3")
    e("s_and_b32 s7, s2, 7")
    e("s_sub_u32 s8, s2, 224")
    e("s_cmp_ge_u32 s2, 224")
    e("s_cselect_b32 s8, s8, s2")
    e("s_cmp_ge_u32 s8, 112")
    e("s_cselect_b32 s9, 1, 0")
    e("s_mul_i32 s10, s9, 112")
    e("s_sub_u32 s10, s8, s10")
    e("s_mov_b32 s11, 0")
    for t in (28, 56, 84):
        e("s_cmp_ge_u32 s10, %d" % t)
        e("s_addc_u32 s11, s11, 0")
    e("s_mul_i32 s12, s11, 28")
    e("s_sub_u32 s12, s10, s12")
    e("s_waitcnt lgkmcnt(0)")
    build_srd(SRD_X, 16, 1024)
    build_srd(SRD_K, 18, 134217728)
    build_srd(SRD_V, 20, 134217728)
    build_srd(SRD_WQ, 22, 4194304)
    build_srd(SRD_WO, 24, 4194304)
    e("s_cmp_eq_u32 s9, 0")
    e("s_cselect_b32 s%d, s28, s30" % SRD_W13)
    e("s_cselect_b32 s%d, s29, s31" % (SRD_W13 + 1))
    e("s_mov_b32 s%d, 0x%x" % (SRD_W13 + 2, 1835008))
    e("s_mov_b32 s%d, 0x00020000" % (SRD_W13 + 3))
    build_srd(SRD_W2, 32, 1835008)
    build_srd(SRD_OUT, 34, 1024)
    build_srd(SRD_DBG, 36, 256)
    build_srd(SRD_WS, 38, 536870912)
    e("s_cmp_eq_u32 s3, 8")
    e("s_cbranch_scc1 L_service")
    worker()
    service()
    lab("L_end")
    e("s_endpgm")

def dma_unit(isK, slot, saddr):
    e("s_add_u32 m0, s15, %d" % (slot * 4096))
    e("s_nop 0")
    for j in range(4):
        dma_piece(isK, j, saddr)
def dma_piece(isK, j, saddr):
    vo = (2 + j) if isK else (6 + (j & 1))
    e("buffer_load_dwordx4 v%d, %s, s%d offen offset:%d%s lds" %
      (vo, srd(SRD_K if isK else SRD_V), saddr, j * 1024, " nt" if NT else ""))

POOLCH = (128 - NS) * 32 // 4
OB = 128
VM, VL = 160, 161
SB = 162
PA = 166

def read_k(bank, slot):
    for sx in range(4):
        e("ds_read_b128 v[%d:%d], v%d offset:%d" % (bank + 4 * sx, bank + 3 + 4 * sx, 8 + sx, slot * 4096))
def read_v(bank, slot):
    for D in range(8):
        e("ds_read_b64_tr_b16 v[%d:%d], v%d offset:%d" % (bank + 2 * D, bank + 1 + 2 * D, 12 + D, slot * 4096))

def qk_softmax(kb):
    for sx in range(4):
        cc = "0" if sx == 0 else "v[%d:%d]" % (SB, SB + 3)
        e("v_mfma_f32_16x16x32_bf16 v[%d:%d], v[%d:%d], v[%d:%d], %s" %
          (SB, SB + 3, kb + 4 * sx, kb + 3 + 4 * sx, 112 + 4 * sx, 115 + 4 * sx, cc))
    e("s_nop 7")
    e("s_nop 1")
    rnd_bf16_pair(SB, SB + 1, 22)
    rnd_bf16_pair(SB + 2, SB + 3, 22)
    for k in range(4):
        e("v_mul_f32 v%d, 0x%x, v%d" % (SB + k, SCALE, SB + k))
    rnd_bf16_pair(SB, SB + 1, 22)
    rnd_bf16_pair(SB + 2, SB + 3, 22)
    e("v_max3_f32 v23, v%d, v%d, v%d" % (SB, SB + 1, SB + 2))
    e("v_max_f32 v23, v23, v%d" % (SB + 3))
    allred("v_max_f32", 23, 22, [4, 5])
    e("v_max_f32 v23, v23, v%d" % VM)
    e("v_sub_f32 v24, v%d, v23" % VM)
    e("v_mov_b32 v%d, v23" % VM)
    e("v_mul_f32 v24, s33, v24")
    for k in range(4):
        e("v_sub_f32 v%d, v%d, v23" % (SB + k, SB + k))
    e("v_exp_f32 v24, v24")
    for k in range(4):
        e("v_mul_f32 v%d, s33, v%d" % (SB + k, SB + k))
    for k in range(4):
        e("v_exp_f32 v%d, v%d" % (SB + k, SB + k))
    e("v_mul_f32 v%d, v%d, v24" % (VL, VL))
    for h in range(4):
        e("v_mov_b32_dpp v%d, v24 quad_perm:[%d,%d,%d,%d] row_mask:0xf bank_mask:0xf" % (26 + h, h, h, h, h))
    for k in range(4):
        e("v_add_f32 v%d, v%d, v%d" % (VL, VL, SB + k))
    e("v_cvt_pk_bf16_f32 v%d, v%d, v%d" % (PA, SB, SB + 1))
    e("v_cvt_pk_bf16_f32 v%d, v%d, v%d" % (PA + 1, SB + 2, SB + 3))
    for D in range(8):
        for h in range(4):
            e("v_mul_f32 v%d, v%d, v%d" % (OB + 4 * D + h, OB + 4 * D + h, 26 + h))
def pv(vb):
    e("s_nop 1")
    for D in range(8):
        e("v_mfma_f32_16x16x16_bf16 v[%d:%d], v[%d:%d], v[%d:%d], v[%d:%d]" %
          (OB + 4 * D, OB + 3 + 4 * D, PA, PA + 1, vb + 2 * D, vb + 1 + 2 * D, OB + 4 * D, OB + 3 + 4 * D))

def get_next(tag):
    e("s_mov_b64 exec, 1")
    e("v_mov_b32 v22, %d" % LCNT)
    e("v_mov_b32 v23, 1")
    e("ds_add_rtn_u32 v23, v22, v23")
    e("s_mov_b64 exec, -1")
    e("s_waitcnt lgkmcnt(0)")
    e("v_readfirstlane_b32 s16, v23")
    e("s_nop 3")
    e("s_cmp_ge_u32 s16, %d" % NS)
    e("s_cbranch_scc1 L_dyn%s" % tag)
    e("s_lshl_b32 s36, s16, 12")
    e("s_add_u32 s36, s36, s14")
    e("s_branch L_got%s" % tag)
    lab("L_dyn%s" % tag)
    e("s_sub_u32 s16, s16, %d" % NS)
    e("s_lshr_b32 s17, s16, 2")
    e("s_min_u32 s17, s17, 270")
    e("s_lshl_b32 s17, s17, 2")
    e("s_add_u32 s17, s17, %d" % TK)
    e("v_mov_b32 v22, s17")
    e("s_mov_b32 s19, 0")
    lab("L_tkw%s" % tag)
    e("ds_read_b32 v23, v22")
    e("s_waitcnt lgkmcnt(0)")
    e("v_readfirstlane_b32 s18, v23")
    e("s_nop 3")
    e("s_cmp_lg_u32 s18, -1")
    e("s_cbranch_scc1 L_tkg%s" % tag)
    e("s_add_u32 s19, s19, 1")
    e("s_cmp_ge_u32 s19, 0x100000")
    e("s_cbranch_scc1 L_tkend%s" % tag)
    e("s_sleep 1")
    e("s_branch L_tkw%s" % tag)
    lab("L_tkg%s" % tag)
    e("s_cmp_ge_u32 s18, %d" % POOLCH)
    e("s_cbranch_scc1 L_tkend%s" % tag)
    e("s_lshl_b32 s18, s18, 2")
    e("s_and_b32 s16, s16, 3")
    e("s_add_u32 s18, s18, s16")
    e("s_lshl_b32 s36, s18, 12")
    e("s_add_u32 s36, s36, s35")
    e("s_branch L_got%s" % tag)
    lab("L_tkend%s" % tag)
    e("s_mov_b32 s37, 1")
    lab("L_got%s" % tag)

def wait12(tag):
    e("s_cmp_eq_u32 s37, 0")
    e("s_cbranch_scc1 L_w%s" % tag)
    e("s_waitcnt vmcnt(0)")
    lab("L_w%s" % tag)
    e("s_waitcnt vmcnt(12)")

def loop_tile(par, tag):
    ks, vs = 2 * par, 2 * par + 1
    e("s_mov_b32 s38, s37")
    e("s_cmp_lg_u32 s37, 0")
    e("s_cbranch_scc1 L_nn%s" % tag)
    get_next(tag)
    lab("L_nn%s" % tag)
    wait12(tag + "a")
    read_k(32, ks)
    e("s_waitcnt lgkmcnt(0)")
    e("s_cmp_lg_u32 s37, 0")
    e("s_cbranch_scc1 L_sk%s" % tag)
    dma_unit(True, ks, 36)
    lab("L_sk%s" % tag)
    qk_softmax(32)
    wait12(tag + "b")
    read_v(48, vs)
    e("s_waitcnt lgkmcnt(0)")
    e("s_cmp_lg_u32 s37, 0")
    e("s_cbranch_scc1 L_sv%s" % tag)
    dma_unit(False, vs, 36)
    lab("L_sv%s" % tag)
    pv(48)
    e("s_cmp_lg_u32 s38, 0")
    e("s_cbranch_scc1 L_wdone")

def worker():
    c("================= worker waves (s3 = 0..7) =================")
    stamp(0)
    e("v_lshlrev_b32 v30, 4, v0")
    e("buffer_load_dwordx4 v[32:35], v30, %s, 0 offen" % srd(SRD_X))
    e("v_lshrrev_b32 v24, 3, v0")
    e("v_and_b32 v25, 7, v0")
    e("v_lshlrev_b32 v26, 13, v24")
    e("v_lshl_add_u32 v26, v25, 4, v26")
    e("s_lshr_b32 s16, s5, 3")
    e("s_and_b32 s17, s5, 7")
    e("s_lshl_b32 s18, s16, 7")
    e("s_lshl_b32 s19, s3, 4")
    e("s_add_u32 s18, s18, s19")
    e("s_lshl_b32 s19, s18, 13")
    e("s_lshl_b32 s20, s4, 10")
    e("s_add_u32 s19, s19, s20")
    e("s_lshl_b32 s20, s17, 7")
    e("s_add_u32 s19, s19, s20")
    e("s_add_u32 s20, s19, 65536")
    e("buffer_load_dwordx4 v[36:39], v26, %s, s19 offen" % srd(SRD_WQ))
    e("buffer_load_dwordx4 v[40:43], v26, %s, s20 offen" % srd(SRD_WQ))
    e("s_movk_i32 s21, 3584")
    e("v_mul_lo_u32 v27, v24, s21")
    e("v_lshl_add_u32 v27, v25, 4, v27")
    e("s_lshl_b32 s22, s11, 7")
    e("s_lshl_b32 s23, s3, 4")
    e("s_add_u32 s22, s22, s23")
    e("s_mul_i32 s23, s22, 3584")
    e("s_lshl_b32 s24, s12, 7")
    e("s_add_u32 s23, s23, s24")
    e("s_add_u32 s24, s23, %d" % (8 * 3584))
    e("buffer_load_dwordx4 v[44:47], v27, %s, s23 offen" % srd(SRD_W13))
    e("buffer_load_dwordx4 v[48:51], v27, %s, s24 offen" % srd(SRD_W13))
    e("s_lshl_b32 s14, s4, 24")
    e("s_add_u32 s35, s14, %d" % (32 * NS * 4096))
    e("s_mul_i32 s15, s5, %d" % (NS * 4096))
    e("s_add_u32 s14, s14, s15")
    e("s_lshl_b32 s15, s3, 12")
    e("s_add_u32 s34, s14, s15")
    e("s_mov_b32 s33, 0x%x" % LOG2E)
    e("s_mov_b32 s37, 0")
    e("s_lshl_b32 s15, s3, 14")
    e("s_add_u32 s15, s15, %d" % RINGB)
    e("v_lshrrev_b32 v20, 4, v0")
    e("v_and_b32 v21, 15, v0")
    e("v_lshlrev_b32 v22, 8, v20")
    e("v_xor_b32 v23, v21, v20")
    for j in range(4):
        e("v_xor_b32 v28, %d, v23" % (4 * j))
        e("v_lshl_add_u32 v%d, v28, 4, v22" % (2 + j))
    e("v_lshlrev_b32 v28, 1, v20")
    e("v_xor_b32 v28, v21, v28")
    e("v_lshl_add_u32 v6, v28, 4, v22")
    e("v_xor_b32 v28, 8, v28")
    e("v_lshl_add_u32 v7, v28, 4, v22")
    def pre_setup(u):
        e("s_add_u32 s20, s34, %d" % ((u // 2) * 32768))
        e("s_add_u32 m0, s15, %d" % ((u % 4) * 4096))
        e("s_nop 0")
    for i in range(INIT):
        if i % 4 == 0:
            pre_setup(i // 4)
        dma_piece((i // 4) % 2 == 0, i % 4, 20)
    nd = INIT
    e("v_lshlrev_b32 v29, 8, v21")
    e("v_add_u32 v29, s15, v29")
    for s in range(4):
        e("v_xor_b32 v28, %d, v23" % (4 * s))
        e("v_lshl_add_u32 v%d, v28, 4, v29" % (8 + s))
    e("v_lshrrev_b32 v28, 2, v21")
    e("v_lshl_add_u32 v28, v20, 2, v28")
    e("v_lshlrev_b32 v29, 8, v28")
    e("v_add_u32 v29, s15, v29")
    e("v_and_b32 v28, 7, v28")
    e("v_lshlrev_b32 v28, 1, v28")
    e("v_and_b32 v31, 3, v21")
    e("v_lshrrev_b32 v52, 1, v31")
    e("v_or_b32 v28, v28, v52")
    e("v_and_b32 v31, 1, v31")
    e("v_lshl_add_u32 v29, v31, 3, v29")
    for D in range(8):
        e("v_xor_b32 v52, %d, v28" % (2 * D))
        e("v_lshl_add_u32 v%d, v52, 4, v29" % (12 + D))
    e("s_waitcnt vmcnt(%d)" % (4 + nd))
    stampS(4)
    for j in range(4):
        e("v_lshlrev_b32 v%d, 16, v%d" % (56 + 2 * j, 32 + j))
        e("v_and_b32 v%d, 0xffff0000, v%d" % (57 + 2 * j, 32 + j))
    e("v_add_f32 v64, v56, v57")
    for j in range(2, 8):
        e("v_add_f32 v64, v64, v%d" % (56 + j))
    allred("v_add_f32", 64, 65, [0, 1, 2, 3, 4, 5])
    e("v_mul_f32 v64, 0x3b000000, v64")
    for j in range(8):
        e("v_sub_f32 v%d, v%d, v64" % (66 + j, 56 + j))
    e("v_mul_f32 v74, v66, v66")
    for j in range(1, 8):
        e("v_fmac_f32 v74, v%d, v%d" % (66 + j, 66 + j))
    allred("v_add_f32", 74, 65, [0, 1, 2, 3, 4, 5])
    e("v_mul_f32 v74, 0x3b000000, v74")
    rnd_bf16_pair(64, 74, 65)
    e("v_add_f32 v74, 0x%x, v74" % EPS)
    rnd_bf16(74, 65)
    e("v_sqrt_f32 v74, v74")
    e("s_nop 0")
    rnd_bf16(74, 65)
    e("v_rcp_f32 v75, v74")
    for j in range(8):
        e("v_sub_f32 v%d, v%d, v64" % (56 + j, 56 + j))
    for j in range(0, 8, 2):
        rnd_bf16_pair(56 + j, 57 + j, 65)
    for j in range(8):
        e("v_mul_f32 v%d, v%d, v75" % (66 + j, 56 + j))
    for j in range(8):
        e("v_fma_f32 v%d, -v%d, v74, v%d" % (76 + j, 66 + j, 56 + j))
    for j in range(8):
        e("v_fma_f32 v%d, v%d, v75, v%d" % (56 + j, 76 + j, 66 + j))
    for j in range(0, 8, 2):
        rnd_bf16_pair(56 + j, 57 + j, 65)
    e("v_lshlrev_b32 v65, 5, v0")
    e("ds_write_b128 v65, v[56:59] offset:%d" % XN)
    e("ds_write_b128 v65, v[60:63] offset:%d" % (XN + 16))
    e("v_add_u32 v65, s18, v24")
    e("v_lshlrev_b32 v65, 2, v65")
    e("v_add_u32 v66, s22, v24")
    e("v_lshlrev_b32 v66, 2, v66")
    e("s_waitcnt lgkmcnt(0)")
    e("ds_read_b32 v68, v65 offset:%d" % XN)
    e("ds_read_b32 v69, v65 offset:%d" % (XN + 32))
    e("ds_read_b32 v70, v66 offset:%d" % XN)
    e("ds_read_b32 v71, v66 offset:%d" % (XN + 32))
    for j in range(16):
        e("v_mov_b32 v%d, 0" % (80 + j))
    e("s_waitcnt vmcnt(%d) lgkmcnt(0)" % nd)
    stampS(5)
    for mat in range(2):
        for row in range(2):
            wbase = 36 + 8 * mat + 4 * row
            xr = 68 + 2 * mat + row
            for j in range(4):
                e("v_lshlrev_b32 v72, 16, v%d" % (wbase + j))
                e("v_and_b32 v73, 0xffff0000, v%d" % (wbase + j))
                e("v_fmac_f32 v%d, v%d, v72" % (80 + 8 * mat + 2 * j, xr))
                e("v_fmac_f32 v%d, v%d, v73" % (81 + 8 * mat + 2 * j, xr))
    e("s_nop 1")
    for j in range(16):
        dpp("v_add_f32", 80 + j, 80 + j, 80 + j, "row_ror:8")
    e("s_lshl_b32 s16, s3, 10")
    e("v_lshl_add_u32 v65, v25, 5, v22")
    e("v_add_u32 v65, s16, v65")
    e("ds_write_b128 v65, v[80:83] offset:%d" % RS)
    e("ds_write_b128 v65, v[84:87] offset:%d" % (RS + 16))
    e("ds_write_b128 v65, v[88:91] offset:%d" % (RS + 8192))
    e("ds_write_b128 v65, v[92:95] offset:%d" % (RS + 8192 + 16))
    e("s_cmp_lg_u32 s3, 0")
    e("s_cbranch_scc1 L_noinit")
    e("v_mov_b32 v66, -1")
    e("v_mov_b32 v67, -1")
    e("v_mov_b32 v68, -1")
    e("v_mov_b32 v69, -1")
    e("v_lshlrev_b32 v65, 4, v0")
    e("ds_write_b128 v65, v[66:69] offset:%d" % TK)
    e("v_lshlrev_b32 v65, 2, v0")
    e("ds_write_b32 v65, v66 offset:%d" % (TK + 1024))
    e("v_mov_b32 v65, 0")
    e("v_mov_b32 v66, 40")
    e("ds_write_b32 v65, v66 offset:%d" % LCNT)
    lab("L_noinit")
    e("s_waitcnt lgkmcnt(0)")
    stampS(6)
    e("s_barrier")
    stamp(1)
    stampFlush([4, 5, 6])
    for i in range(INIT, 36):
        u = i // 4
        e("s_waitcnt vmcnt(%d)" % (PACE - 1))
        if i % 4 == 0 and u >= 4:
            pu = u - 4
            if pu % 2 == 0:
                read_k(32 + 16 * pu, pu % 4)
            else:
                read_v(32 + 16 * pu, pu % 4)
            e("s_waitcnt lgkmcnt(0)")
        if i % 4 == 0 or i == INIT:
            pre_setup(u)
        dma_piece(u % 2 == 0, i % 4, 20)
    for k in range(32):
        e("v_mov_b32 v%d, 0" % (OB + k))
    e("v_mov_b32 v%d, 0xf149f2ca" % VM)
    e("v_mov_b32 v%d, 0" % VL)
    e("s_barrier")
    stamp(2)
    e("v_and_b32 v28, 3, v21")
    e("v_lshlrev_b32 v28, 8, v28")
    e("v_lshl_add_u32 v28, v20, 4, v28")
    for sx in range(4):
        e("ds_read_b128 v[%d:%d], v28 offset:%d" % (112 + 4 * sx, 115 + 4 * sx, QL + 64 * sx))
    e("s_waitcnt lgkmcnt(0)")
    qk_softmax(32); pv(48)
    qk_softmax(64); pv(80)
    qk_softmax(96)
    e("s_waitcnt vmcnt(12)")
    read_v(48, 1)
    e("s_waitcnt lgkmcnt(0)")
    e("s_add_u32 s20, s34, %d" % (4 * 32768))
    dma_unit(False, 1, 20)
    pv(48)
    lab("L_loop")
    loop_tile(1, "o")
    loop_tile(0, "e")
    e("s_branch L_loop")
    lab("L_wdone")
    allred("v_add_f32", VL, 22, [4, 5])
    stamp(3)
    e("s_nop 7")
    e("s_nop 1")
    e("v_lshlrev_b32 v28, 2, v0")
    e("v_add_u32 v28, s15, v28")
    e("s_mov_b64 exec, 0xffff")
    for D in range(8):
        for h in range(4):
            e("ds_write_b32 v28, v%d offset:%d" % (OB + 4 * D + h, h * 512 + D * 64))
    e("s_mov_b64 exec, 0xf")
    e("v_lshlrev_b32 v28, 3, v0")
    e("v_add_u32 v28, s15, v28")
    e("ds_write_b64 v28, v[%d:%d] offset:2048" % (VM, VL))
    e("s_mov_b64 exec, -1")
    e("s_waitcnt lgkmcnt(0)")
    e("s_barrier")
    e("s_endpgm")

def poll(label, vaddr, vtmp):
    e("s_mov_b32 s16, 0")
    lab(label)
    e("buffer_load_dwordx2 v[%d:%d], v%d, %s, 0 offen sc1" % (vtmp, vtmp + 1, vaddr, srd(SRD_WS)))
    e("s_waitcnt vmcnt(0)")
    e("v_cmp_ne_u64 vcc, s[94:95], v[%d:%d]" % (vtmp, vtmp + 1))
    e("s_nop 1")
    e("s_cbranch_vccz %s_done" % label)
    e("s_add_u32 s16, s16, 1")
    e("s_cmp_ge_u32 s16, 0x40000")
    e("s_cbranch_scc1 %s_done" % label)
    e("s_sleep %d" % SLEEP)
    e("s_branch %s" % label)
    lab(label + "_done")

def set_flag(ph):
    e("s_waitcnt vmcnt(0)")
    e("v_mov_b32 v2, s94")
    e("v_mov_b32 v3, s95")
    e("s_lshl_b32 s17, s17, 3")
    e("s_add_u32 s17, s17, %d" % (FLG + ph * 2048))
    e("v_mov_b32 v1, s17")
    e("s_mov_b64 exec, 1")
    e("buffer_store_dwordx2 v[2:3], v1, %s, 0 offen sc1" % srd(SRD_WS))
    e("s_mov_b64 exec, -1")

def gemv_rows(nrows, wbase, xbase, acc):
    for j in range(8):
        e("v_mov_b32 v%d, 0" % (acc + j))
    for i in range(nrows):
        for j in range(4):
            e("v_lshlrev_b32 v4, 16, v%d" % (wbase + 4 * i + j))
            e("v_and_b32 v5, 0xffff0000, v%d" % (wbase + 4 * i + j))
            e("v_fmac_f32 v%d, v%d, v4" % (acc + 2 * j, xbase + i))
            e("v_fmac_f32 v%d, v%d, v5" % (acc + 2 * j + 1, xbase + i))
    for j in range(8):
        allred("v_add_f32", acc + j, 4, [3, 4, 5])

def service():
    lab("L_service")
    ROLE[0] = "s"
    c("================= service wave =================")
    stamp(0)
    e("v_lshrrev_b32 v24, 3, v0")
    e("v_and_b32 v25, 7, v0")
    e("v_mov_b32 v1, 0")
    e("s_cmp_lg_u32 s2, 0")
    e("s_cbranch_scc1 L_nonce_wait")
    e("s_memrealtime s[94:95]")
    e("s_waitcnt lgkmcnt(0)")
    e("s_or_b32 s94, s94, 1")
    e("v_mov_b32 v2, s94")
    e("v_mov_b32 v3, s95")
    e("s_mov_b64 exec, 1")
    e("buffer_store_dwordx2 v[2:3], v1, %s, 0 offen sc1" % srd(SRD_DBG))
    e("s_mov_b64 exec, -1")
    lab("L_nonce_wait")
    e("s_barrier")
    stamp(1)
    e("v_lshlrev_b32 v6, 2, v0")
    for mat in range(2):
        for sl in range(32):
            e("ds_read_b32 v%d, v6 offset:%d" % (32 + 32 * mat + sl, RS + mat * 8192 + sl * 256))
        e("s_waitcnt lgkmcnt(0)")
    for mat in range(2):
        b = 32 + 32 * mat
        for st in (16, 8, 4, 2, 1):
            for k in range(st):
                e("v_add_f32 v%d, v%d, v%d" % (b + k, b + k, b + k + st))
    e("s_lshr_b32 s16, s5, 3")
    e("s_lshl_b32 s16, s16, 14")
    e("s_lshl_b32 s17, s4, 11")
    e("s_add_u32 s16, s16, s17")
    e("s_and_b32 s17, s5, 7")
    e("s_lshl_b32 s17, s17, 8")
    e("s_add_u32 s16, s16, s17")
    e("s_add_u32 s16, s16, %d" % QP)
    e("buffer_store_dword v32, v6, %s, s16 offen sc1" % srd(SRD_WS))
    e("s_mul_i32 s16, s9, %d" % (4 * 1792 * 4))
    e("s_mul_i32 s17, s11, %d" % (1792 * 4))
    e("s_add_u32 s16, s16, s17")
    e("s_lshl_b32 s17, s12, 8")
    e("s_add_u32 s16, s16, s17")
    e("s_add_u32 s16, s16, %d" % GU)
    e("buffer_store_dword v64, v6, %s, s16 offen sc1" % srd(SRD_WS))
    e("v_mov_b32 v1, 0")
    e("s_mov_b32 s16, 0")
    lab("L_nonce_loop")
    e("buffer_load_dwordx2 v[2:3], v1, %s, 0 offen sc1" % srd(SRD_DBG))
    e("s_waitcnt vmcnt(0)")
    e("v_readfirstlane_b32 s94, v2")
    e("v_readfirstlane_b32 s95, v3")
    e("s_nop 3")
    e("s_and_b32 s17, s94, 1")
    e("s_cmp_lg_u32 s17, 0")
    e("s_cbranch_scc1 L_nonce_done")
    e("s_add_u32 s16, s16, 1")
    e("s_cmp_ge_u32 s16, 0x40000")
    e("s_cbranch_scc1 L_nonce_done")
    e("s_sleep 4")
    e("s_branch L_nonce_loop")
    lab("L_nonce_done")
    stamp(12)
    e("s_mov_b32 s17, s2")
    set_flag(0)
    stamp(2)
    e("v_and_b32 v8, 31, v0")
    e("s_lshl_b32 s16, s4, 5")
    e("v_add_u32 v8, s16, v8")
    e("v_lshlrev_b32 v8, 3, v8")
    e("v_add_u32 v8, %d, v8" % FLG)
    poll("L_poll_q", 8, 10)
    stamp(3)
    e("v_lshlrev_b32 v6, 5, v0")
    e("s_lshl_b32 s16, s4, 11")
    e("s_add_u32 s16, s16, %d" % QP)
    for kq in range(4):
        e("s_add_u32 s17, s16, %d" % (kq * 16384))
        e("buffer_load_dwordx4 v[%d:%d], v6, %s, s17 offen sc1" % (32 + 8 * kq, 35 + 8 * kq, srd(SRD_WS)))
        e("buffer_load_dwordx4 v[%d:%d], v6, %s, s17 offen offset:16 sc1" % (36 + 8 * kq, 39 + 8 * kq, srd(SRD_WS)))
    e("s_waitcnt vmcnt(0)")
    for kq in range(1, 4):
        for j in range(8):
            e("v_add_f32 v%d, v%d, v%d" % (32 + j, 32 + j, 32 + 8 * kq + j))
    for j in range(4):
        e("v_cvt_pk_bf16_f32 v%d, v%d, v%d" % (40 + j, 32 + 2 * j, 33 + 2 * j))
    e("v_lshlrev_b32 v6, 4, v0")
    e("ds_write_b128 v6, v[40:43] offset:%d" % QL)
    e("s_waitcnt lgkmcnt(0)")
    e("s_barrier")
    stamp(4)
    e("v_lshlrev_b32 v8, 3, v0")
    e("v_add_u32 v8, %d, v8" % FLG)
    e("s_mov_b32 s16, 0")
    lab("L_poll_b")
    for k in range(4):
        e("buffer_load_dwordx2 v[%d:%d], v8, %s, 0 offen offset:%d sc1" % (10 + 2 * k, 11 + 2 * k, srd(SRD_WS), 512 * k))
    e("s_waitcnt vmcnt(0)")
    e("v_cmp_ne_u64 vcc, s[94:95], v[10:11]")
    for k in range(1, 4):
        e("v_cmp_ne_u64 s[18:19], s[94:95], v[%d:%d]" % (10 + 2 * k, 11 + 2 * k))
        e("s_nop 1")
        e("s_or_b64 vcc, vcc, s[18:19]")
    e("s_cbranch_vccz L_poll_b_done")
    e("s_add_u32 s16, s16, 1")
    e("s_cmp_ge_u32 s16, 0x40000")
    e("s_cbranch_scc1 L_poll_b_done")
    e("s_sleep %d" % SLEEP)
    e("s_branch L_poll_b")
    lab("L_poll_b_done")
    e("v_lshlrev_b32 v7, 10, v24")
    e("v_lshl_add_u32 v7, v25, 4, v7")
    e("s_mul_i32 s16, s6, %d" % (56 * 1024))
    e("s_lshl_b32 s17, s7, 7")
    e("s_add_u32 s16, s16, s17")
    for i in range(7):
        e("s_add_u32 s17, s16, %d" % (i * 8192))
        e("buffer_load_dwordx4 v[%d:%d], v7, %s, s17 offen" % (128 + 4 * i, 131 + 4 * i, srd(SRD_W2)))
    e("v_min_u32 v6, 55, v0")
    e("s_mul_i32 s16, s6, 56")
    e("v_add_u32 v6, s16, v6")
    e("v_lshlrev_b32 v6, 2, v6")
    for m in range(2):
        for kq in range(4):
            e("s_mov_b32 s17, %d" % (GU + (m * 4 + kq) * 1792 * 4))
            e("buffer_load_dword v%d, v6, %s, s17 offen sc1" % (32 + 4 * m + kq, srd(SRD_WS)))
    e("s_lshl_b32 s16, s6, 17")
    e("s_lshl_b32 s17, s7, 7")
    e("s_add_u32 s16, s16, s17")
    for i in range(16):
        e("s_add_u32 s17, s16, %d" % (i * 8192))
        e("buffer_load_dwordx4 v[%d:%d], v7, %s, s17 offen" % (64 + 4 * i, 67 + 4 * i, srd(SRD_WO)))
    e("s_waitcnt vmcnt(16)")
    for m in range(2):
        for kq in range(1, 4):
            e("v_add_f32 v%d, v%d, v%d" % (32 + 4 * m, 32 + 4 * m, 32 + 4 * m + kq))
    rnd_bf16_pair(32, 36, 4)
    e("v_mul_f32 v33, 0x%x, v32" % (LOG2E | 0x80000000))
    e("v_exp_f32 v33, v33")
    e("s_nop 0")
    e("v_add_f32 v33, 1.0, v33")
    e("v_rcp_f32 v34, v33")
    e("s_nop 0")
    e("v_mul_f32 v35, v32, v34")
    rnd_bf16(35, 4)
    e("v_mul_f32 v35, v35, v36")
    rnd_bf16(35, 4)
    e("v_lshlrev_b32 v6, 2, v0")
    e("ds_write_b32 v6, v35 offset:%d" % HL)
    e("v_lshlrev_b32 v6, 2, v24")
    e("s_waitcnt lgkmcnt(0)")
    for i in range(7):
        e("ds_read_b32 v%d, v6 offset:%d" % (32 + i, HL + 32 * i))
    e("s_waitcnt lgkmcnt(0)")
    gemv_rows(7, 128, 32, 40)
    e("s_lshl_b32 s16, s7, 13")
    e("s_lshl_b32 s17, s6, 8")
    e("s_add_u32 s16, s16, s17")
    e("s_add_u32 s16, s16, %d" % YB)
    e("v_lshlrev_b32 v6, 5, v0")
    e("s_mov_b64 exec, 0xff")
    e("buffer_store_dwordx4 v[40:43], v6, %s, s16 offen sc1" % srd(SRD_WS))
    e("buffer_store_dwordx4 v[44:47], v6, %s, s16 offen offset:16 sc1" % srd(SRD_WS))
    e("s_mov_b64 exec, -1")
    stamp(5)
    e("s_mov_b32 s18, 0")
    e("s_mov_b32 s19, 0")
    e("v_mov_b32 v8, %d" % LCNT)
    e("s_lshl_b32 s16, s4, 2")
    e("s_add_u32 s16, s16, 64")
    e("v_mov_b32 v9, s16")
    lab("L_tk_loop")
    e("ds_read_b32 v10, v8")
    e("s_waitcnt lgkmcnt(0)")
    e("v_readfirstlane_b32 s16, v10")
    e("s_nop 3")
    e("s_add_u32 s16, s16, %d" % (AHEAD + 3))
    e("s_lshl_b32 s17, s18, 2")
    e("s_add_u32 s17, s17, %d" % NS)
    e("s_cmp_gt_u32 s16, s17")
    e("s_cbranch_scc0 L_tk_idle")
    e("s_sub_u32 s16, s16, s17")
    e("s_lshr_b32 s16, s16, 2")
    e("s_cmp_lg_u32 s16, 0")
    e("s_cbranch_scc1 L_tk_fetch")
    lab("L_tk_idle")
    e("s_add_u32 s19, s19, 1")
    e("s_cmp_ge_u32 s19, 0x200000")
    e("s_cbranch_scc1 L_tk_end")
    e("s_sleep 2")
    e("s_branch L_tk_loop")
    lab("L_tk_fetch")
    e("s_min_u32 s16, s16, 4")
    e("v_mov_b32 v10, s16")
    e("s_mov_b64 exec, 1")
    e("buffer_atomic_add v10, v9, %s, 0 offen sc0" % srd(SRD_DBG))
    e("s_mov_b64 exec, -1")
    e("s_waitcnt vmcnt(0)")
    e("v_readfirstlane_b32 s17, v10")
    e("s_lshl_b32 s20, s18, 2")
    e("s_add_u32 s20, s20, %d" % TK)
    e("v_lshlrev_b32 v11, 2, v0")
    e("v_add_u32 v11, s20, v11")
    e("v_add_u32 v10, s17, v0")
    e("v_cmp_gt_u32 vcc, s16, v0")
    e("s_and_saveexec_b64 s[20:21], vcc")
    e("ds_write_b32 v11, v10")
    e("s_mov_b64 exec, -1")
    e("s_add_u32 s18, s18, s16")
    e("s_add_u32 s17, s17, s16")
    e("s_cmp_le_u32 s17, %d" % POOLCH)
    e("s_cbranch_scc1 L_tk_loop")
    lab("L_tk_end")
    e("s_lshl_b32 s17, s18, 2")
    e("s_add_u32 s17, s17, %d" % TK)
    e("v_lshlrev_b32 v11, 2, v0")
    e("v_add_u32 v11, s17, v11")
    e("v_mov_b32 v10, 0x7fffffff")
    e("s_mov_b64 exec, 0xff")
    e("ds_write_b32 v11, v10")
    e("s_mov_b64 exec, -1")
    e("s_waitcnt lgkmcnt(0)")
    e("s_barrier")
    stamp(6)
    e("v_and_b32 v6, 31, v0")
    e("v_lshrrev_b32 v8, 2, v6")
    e("v_lshlrev_b32 v8, 14, v8")
    e("v_and_b32 v10, 3, v0")
    e("v_lshl_add_u32 v8, v10, 3, v8")
    e("ds_read_b64 v[12:13], v8 offset:%d" % (RINGB + 2048))
    e("s_waitcnt lgkmcnt(0)")
    e("v_mov_b32 v14, v12")
    allred("v_max_f32", 14, 4, [2, 3, 4])
    e("v_sub_f32 v15, v12, v14")
    e("v_mul_f32 v15, 0x%x, v15" % LOG2E)
    e("v_exp_f32 v15, v15")
    e("s_nop 0")
    e("v_mul_f32 v16, v15, v13")
    allred("v_add_f32", 16, 4, [2, 3, 4])
    e("v_lshlrev_b32 v8, 2, v6")
    e("ds_write_b32 v8, v15 offset:%d" % SC)
    e("v_mov_b32 v17, v16")
    e("v_mov_b32 v16, v14")
    e("v_lshrrev_b32 v8, 4, v0")
    e("v_and_b32 v10, 15, v0")
    e("v_lshlrev_b32 v18, 9, v8")
    e("v_lshl_add_u32 v18, v10, 5, v18")
    e("v_add_u32 v18, %d, v18" % RINGB)
    e("v_add_u32 v11, 0x10000, v18")
    e("v_lshlrev_b32 v19, 2, v8")
    e("s_waitcnt lgkmcnt(0)")
    for wv in range(8):
        e("ds_read_b32 v%d, v19 offset:%d" % (20 + wv, SC + 16 * wv))
    for j in range(8):
        e("v_mov_b32 v%d, 0" % (28 + j))
    for batch in ((0, 1, 2), (3, 4, 5), (6, 7)):
        for k, wv in enumerate(batch):
            off = (wv & 3) * 16384
            ar = 18 if wv < 4 else 11
            e("ds_read_b128 v[%d:%d], v%d offset:%d" % (36 + 8 * k, 39 + 8 * k, ar, off))
            e("ds_read_b128 v[%d:%d], v%d offset:%d" % (40 + 8 * k, 43 + 8 * k, ar, off + 16))
        e("s_waitcnt lgkmcnt(0)")
        for k, wv in enumerate(batch):
            for j in range(8):
                e("v_fmac_f32 v%d, v%d, v%d" % (28 + j, 20 + wv, 36 + 8 * k + j))
    e("v_lshlrev_b32 v18, 14, v8")
    e("v_lshl_add_u32 v18, v10, 5, v18")
    e("s_lshl_b32 s16, s4, 16")
    e("s_lshl_b32 s17, s5, 9")
    e("s_add_u32 s16, s16, s17")
    e("s_add_u32 s16, s16, %d" % AP)
    e("buffer_store_dwordx4 v[28:31], v18, %s, s16 offen sc1" % srd(SRD_WS))
    e("buffer_store_dwordx4 v[32:35], v18, %s, s16 offen offset:16 sc1" % srd(SRD_WS))
    e("v_lshlrev_b32 v18, 8, v0")
    e("s_lshl_b32 s16, s4, 10")
    e("s_lshl_b32 s17, s5, 3")
    e("s_add_u32 s16, s16, s17")
    e("s_add_u32 s16, s16, %d" % ML)
    e("s_mov_b64 exec, 0xf")
    e("buffer_store_dwordx2 v[16:17], v18, %s, s16 offen sc1" % srd(SRD_WS))
    e("s_mov_b64 exec, -1")
    e("s_mov_b32 s17, s2")
    set_flag(1)
    stamp(7)
    e("v_and_b32 v8, 31, v0")
    e("s_lshl_b32 s16, s4, 5")
    e("v_add_u32 v8, s16, v8")
    e("v_lshlrev_b32 v8, 3, v8")
    e("v_add_u32 v8, %d, v8" % (FLG + 2048))
    poll("L_poll_a", 8, 10)
    stamp(8)
    e("v_and_b32 v6, 31, v0")
    e("v_lshlrev_b32 v8, 3, v6")
    e("s_lshl_b32 s16, s6, 8")
    e("s_add_u32 s16, s16, %d" % ML)
    e("buffer_load_dwordx2 v[12:13], v8, %s, s16 offen sc1" % srd(SRD_WS))
    def apreg(i):
        return 128 + 4 * i if i < 10 else 40 + 4 * (i - 10)
    e("v_lshrrev_b32 v10, 5, v0")
    e("v_lshlrev_b32 v8, 9, v10")
    e("v_lshl_add_u32 v8, v6, 4, v8")
    e("s_lshl_b32 s16, s6, 14")
    e("s_add_u32 s16, s16, %d" % AP)
    for i in range(16):
        e("s_add_u32 s17, s16, %d" % (i * 1024))
        e("buffer_load_dwordx4 v[%d:%d], v8, %s, s17 offen sc1" % (apreg(i), apreg(i) + 3, srd(SRD_WS)))
    e("s_waitcnt vmcnt(16)")
    e("v_mov_b32 v14, v12")
    allred("v_max_f32", 14, 4, [0, 1, 2, 3, 4])
    e("v_sub_f32 v15, v12, v14")
    e("v_mul_f32 v15, 0x%x, v15" % LOG2E)
    e("v_exp_f32 v15, v15")
    e("s_nop 0")
    e("v_mul_f32 v16, v15, v13")
    allred("v_add_f32", 16, 4, [0, 1, 2, 3, 4])
    e("v_lshlrev_b32 v8, 2, v6")
    e("ds_write_b32 v8, v15 offset:%d" % WL)
    e("v_lshlrev_b32 v8, 2, v10")
    e("s_waitcnt lgkmcnt(0)")
    for i in range(16):
        e("ds_read_b32 v%d, v8 offset:%d" % (20 + i, WL + 8 * i))
    for j in range(4):
        e("v_mov_b32 v%d, 0" % (36 + j))
    e("s_waitcnt vmcnt(0) lgkmcnt(0)")
    for i in range(16):
        for j in range(4):
            e("v_fmac_f32 v%d, v%d, v%d" % (36 + j, 20 + i, apreg(i) + j))
    for j in range(4):
        allred("v_add_f32", 36 + j, 4, [5])
    e("v_rcp_f32 v17, v16")
    e("s_nop 0")
    for j in range(4):
        e("v_mul_f32 v18, v%d, v17" % (36 + j))
        e("v_fma_f32 v19, -v18, v16, v%d" % (36 + j))
        e("v_fma_f32 v%d, v19, v17, v18" % (36 + j))
    rnd_bf16_pair(36, 37, 4)
    rnd_bf16_pair(38, 39, 4)
    e("v_lshlrev_b32 v8, 4, v6")
    e("ds_write_b128 v8, v[36:39] offset:%d" % OL)
    e("v_lshrrev_b32 v8, 3, v0")
    e("v_lshlrev_b32 v8, 2, v8")
    e("s_waitcnt lgkmcnt(0)")
    for i in range(16):
        e("ds_read_b32 v%d, v8 offset:%d" % (20 + i, OL + 32 * i))
    e("s_waitcnt lgkmcnt(0)")
    gemv_rows(16, 64, 20, 48)
    e("s_lshl_b32 s16, s7, 13")
    e("s_lshl_b32 s17, s6, 8")
    e("s_add_u32 s16, s16, s17")
    e("s_add_u32 s16, s16, %d" % YA)
    e("v_lshlrev_b32 v6, 5, v0")
    e("s_mov_b64 exec, 0xff")
    e("buffer_store_dwordx4 v[48:51], v6, %s, s16 offen sc1" % srd(SRD_WS))
    e("buffer_store_dwordx4 v[52:55], v6, %s, s16 offen offset:16 sc1" % srd(SRD_WS))
    e("s_mov_b64 exec, -1")
    e("s_lshl_b32 s17, s7, 5")
    e("s_add_u32 s17, s17, s6")
    set_flag(2)
    stamp(9)
    e("s_cmp_ge_u32 s2, 8")
    e("s_cbranch_scc1 L_end")
    e("v_and_b32 v6, 15, v0")
    e("v_lshlrev_b32 v8, 3, v6")
    e("s_lshl_b32 s16, s7, 7")
    e("buffer_load_dwordx2 v[20:21], v8, %s, s16 offen" % srd(SRD_X))
    e("v_and_b32 v12, 31, v0")
    e("s_lshl_b32 s16, s7, 5")
    e("v_add_u32 v12, s16, v12")
    e("v_lshlrev_b32 v12, 3, v12")
    e("v_add_u32 v12, %d, v12" % (FLG + 4096))
    poll("L_poll_f", 12, 10)
    stamp(10)
    e("v_lshrrev_b32 v10, 4, v0")
    e("v_lshlrev_b32 v8, 8, v10")
    e("v_lshl_add_u32 v8, v6, 4, v8")
    e("s_lshl_b32 s16, s7, 13")
    for i in range(8):
        e("s_add_u32 s17, s16, %d" % (YA + i * 1024))
        e("buffer_load_dwordx4 v[%d:%d], v8, %s, s17 offen sc1" % (32 + 4 * i, 35 + 4 * i, srd(SRD_WS)))
    for i in range(8):
        e("s_add_u32 s17, s16, %d" % (YB + i * 1024))
        e("buffer_load_dwordx4 v[%d:%d], v8, %s, s17 offen sc1" % (64 + 4 * i, 67 + 4 * i, srd(SRD_WS)))
    e("s_waitcnt vmcnt(0)")
    for b in (32, 64):
        for i in range(1, 8):
            for j in range(4):
                e("v_add_f32 v%d, v%d, v%d" % (b + j, b + j, b + 4 * i + j))
        for j in range(4):
            allred("v_add_f32", b + j, 4, [4, 5])
    rnd_bf16_pair(32, 33, 4)
    rnd_bf16_pair(34, 35, 4)
    rnd_bf16_pair(64, 65, 4)
    rnd_bf16_pair(66, 67, 4)
    e("v_lshlrev_b32 v22, 16, v20")
    e("v_and_b32 v23, 0xffff0000, v20")
    e("v_lshlrev_b32 v24, 16, v21")
    e("v_and_b32 v25, 0xffff0000, v21")
    for j in range(4):
        e("v_add_f32 v%d, v%d, v%d" % (32 + j, 22 + j, 32 + j))
    rnd_bf16_pair(32, 33, 4)
    rnd_bf16_pair(34, 35, 4)
    for j in range(4):
        e("v_add_f32 v%d, v%d, v%d" % (32 + j, 32 + j, 64 + j))
    e("v_cvt_pk_bf16_f32 v36, v32, v33")
    e("v_cvt_pk_bf16_f32 v37, v34, v35")
    e("v_lshlrev_b32 v8, 3, v6")
    e("s_lshl_b32 s16, s7, 7")
    e("s_mov_b64 exec, 0xffff")
    e("buffer_store_dwordx2 v[36:37], v8, %s, s16 offen" % srd(SRD_OUT))
    e("s_mov_b64 exec, -1")
    stamp(11)

gen()
txt = "\n".join(header() + L + footer(168)) + "\n"
open(OUT, "w").write(txt)
print("wrote", OUT, len(txt), "bytes")
```

```python
import sys

NAME = "parallel_sum__gqa_block_cached__glu_gated_swiglu__decode"
OUT = "cdna_kernels/%s.s" % NAME

NT = True
PACE = 3
LAYOUT = "B"
INIT = 8
NREG = 5
SLEEP = 2
NS = 96
AHEAD = 20
FLG = 0x180000
STAMP = False
DBGTS = False

for a in sys.argv[1:]:
    if a.startswith("nt="): NT = bool(int(a[3:]))
    elif a.startswith("pace="): PACE = int(a[5:])
    elif a.startswith("layout="): LAYOUT = a[7:]
    elif a.startswith("init="): INIT = int(a[5:])
    elif a.startswith("nreg="): NREG = int(a[5:])
    elif a.startswith("sleep="): SLEEP = int(a[6:])
    elif a.startswith("ns="): NS = int(a[3:])
    elif a.startswith("ahead="): AHEAD = int(a[6:])
    elif a.startswith("out="): OUT = a[4:]
    elif a.startswith("stamp="): STAMP = bool(int(a[6:]))
    elif a.startswith("dbgts="): DBGTS = bool(int(a[6:]))

L = []
def e(s=""):
    L.append("    " + s if s and not s.endswith(":") else s)
def lab(s):
    L.append(s + ":")
def c(s):
    L.append("    ; " + s)

XN = 0
RS = XN + 2048
QL = RS + 16384
HL = QL + 1024
WL = HL + 256
OL = WL + 128
SC = OL + 512
LCNT = SC + 128
TK = LCNT + 128
RINGB = 24576
LDS_TOTAL = RINGB + 8 * 16384

QP = 0
GU = 0x10000
AP = 0x20000
ML = 0xA0000
YA = 0xA2000
YB = 0xB2000
TS = 0x100000

SRD_X, SRD_K, SRD_V, SRD_WQ, SRD_WO, SRD_W13, SRD_W2, SRD_OUT, SRD_DBG, SRD_WS = 40, 44, 48, 52, 56, 60, 64, 68, 72, 76
def srd(n): return "s[%d:%d]" % (n, n + 3)

LOG2E = 0x3fb8aa3b
SCALE = 0x3db504f3
EPS = 0x3727c5ac

def header():
    h = []
    h.append("; @launch grid=(256,1,1) block=(576,1,1) lds=%d" % LDS_TOTAL)
    h.append('.amdgcn_target "amdgcn-amd-amdhsa--gfx950"')
    h.append(".text")
    h.append(".globl %s_kernel" % NAME)
    h.append(".p2align 8")
    h.append(".type %s_kernel,@function" % NAME)
    h.append("%s_kernel:" % NAME)
    return h

def footer(nv):
    f = []
    f.append(".section .rodata,\"a\"")
    f.append(".p2align 6")
    f.append(".amdhsa_kernel %s_kernel" % NAME)
    f.append("  .amdhsa_next_free_vgpr %d" % nv)
    f.append("  .amdhsa_next_free_sgpr 102")
    f.append("  .amdhsa_accum_offset %d" % ((nv + 3) // 4 * 4))
    f.append("  .amdhsa_group_segment_fixed_size 0")
    f.append("  .amdhsa_kernarg_size 96")
    f.append("  .amdhsa_user_sgpr_count 2")
    f.append("  .amdhsa_user_sgpr_kernarg_segment_ptr 1")
    f.append("  .amdhsa_system_sgpr_workgroup_id_x 1")
    f.append(".end_amdhsa_kernel")
    return f

def build_srd(d, p, nbytes):
    e("s_mov_b32 s%d, s%d" % (d, p))
    e("s_mov_b32 s%d, s%d" % (d + 1, p + 1))
    e("s_mov_b32 s%d, 0x%x" % (d + 2, nbytes))
    e("s_mov_b32 s%d, 0x00020000" % (d + 3))

def rnd_bf16_pair(a, b, t):
    e("v_cvt_pk_bf16_f32 v%d, v%d, v%d" % (t, a, b))
    e("v_lshlrev_b32 v%d, 16, v%d" % (a, t))
    e("v_and_b32 v%d, 0xffff0000, v%d" % (b, t))
def rnd_bf16(a, t):
    e("v_cvt_pk_bf16_f32 v%d, v%d, v%d" % (t, a, a))
    e("v_lshlrev_b32 v%d, 16, v%d" % (a, t))

def dpp(op, d, a, b, ctrl):
    e("%s_dpp v%d, v%d, v%d %s row_mask:0xf bank_mask:0xf" % (op, d, a, b, ctrl))

def allred(op, v, t, bits):
    for b in bits:
        if b == 0:
            e("s_nop 1"); dpp(op, v, v, v, "quad_perm:[1,0,3,2]")
        elif b == 1:
            e("s_nop 1"); dpp(op, v, v, v, "quad_perm:[2,3,0,1]")
        elif b == 2:
            e("s_nop 1"); dpp(op, v, v, v, "row_ror:4")
        elif b == 3:
            e("s_nop 1"); dpp(op, v, v, v, "row_ror:8")
        elif b == 4:
            e("v_mov_b32 v%d, v%d" % (t, v)); e("s_nop 1")
            e("v_permlane16_swap_b32 v%d, v%d" % (v, t)); e("s_nop 1")
            e("%s v%d, v%d, v%d" % (op, v, v, t))
        elif b == 5:
            e("v_mov_b32 v%d, v%d" % (t, v)); e("s_nop 1")
            e("v_permlane32_swap_b32 v%d, v%d" % (v, t)); e("s_nop 1")
            e("%s v%d, v%d, v%d" % (op, v, v, t))

stamp_idx = [0]
ROLE = ["w"]
def stamp(slot):
    if DBGTS and ROLE[0] == "s":
        e("s_cmp_lg_u32 s2, 0")
        e("s_cbranch_scc1 L_dts%d" % slot)
        e("s_memrealtime s[90:91]")
        e("s_waitcnt lgkmcnt(0)")
        e("v_mov_b32 v2, s90")
        e("v_mov_b32 v1, %d" % (8 + 4 * slot))
        e("s_mov_b64 exec, 1")
        e("buffer_store_dword v2, v1, %s, 0 offen" % srd(SRD_DBG))
        e("s_mov_b64 exec, -1")
        lab("L_dts%d" % slot)
        return
    if not STAMP:
        return
    e("s_memrealtime s[90:91]")
    e("s_waitcnt lgkmcnt(0)")
    a, b, ad = (30, 31, 29) if ROLE[0] == "w" else (2, 3, 1)
    e("v_mov_b32 v%d, s90" % a)
    e("v_mov_b32 v%d, s91" % b)
    e("s_lshl_b32 s92, s2, 4")
    e("s_add_u32 s92, s92, s3")
    e("s_lshl_b32 s92, s92, 7")
    e("s_add_u32 s92, s92, %d" % (TS + slot * 8))
    e("v_mov_b32 v%d, s92" % ad)
    e("buffer_store_dwordx2 v[%d:%d], v%d, %s, 0 offen" % (a, b, ad, srd(SRD_WS)))

def stampS(slot):
    if not STAMP: return
    r = 80 + 2 * (slot - 4)
    e("s_memrealtime s[%d:%d]" % (r, r + 1))
    e("s_waitcnt lgkmcnt(0)")
def stampFlush(slots):
    if not STAMP: return
    for slot in slots:
        r = 80 + 2 * (slot - 4)
        e("v_mov_b32 v30, s%d" % r)
        e("v_mov_b32 v31, s%d" % (r + 1))
        e("s_lshl_b32 s92, s2, 4")
        e("s_add_u32 s92, s92, s3")
        e("s_lshl_b32 s92, s92, 7")
        e("s_add_u32 s92, s92, %d" % (TS + slot * 8))
        e("v_mov_b32 v29, s92")
        e("buffer_store_dwordx2 v[30:31], v29, %s, 0 offen" % srd(SRD_WS))
        e("s_nop 4")

def gen():
    e("s_cmp_ge_u32 s2, 256")
    e("s_cbranch_scc1 L_end")
    e("s_load_dwordx16 s[16:31], s[0:1], 0")
    e("s_load_dwordx8 s[32:39], s[0:1], 64")
    e("v_lshrrev_b32 v1, 6, v0")
    e("v_and_b32 v0, 63, v0")
    e("s_nop 0")
    e("v_readfirstlane_b32 s3, v1")
    e("s_lshr_b32 s4, s2, 5")
    e("s_and_b32 s5, s2, 31")
    e("s_lshr_b32 s6, s2, 3")
    e("s_and_b32 s7, s2, 7")
    e("s_sub_u32 s8, s2, 224")
    e("s_cmp_ge_u32 s2, 224")
    e("s_cselect_b32 s8, s8, s2")
    e("s_cmp_ge_u32 s8, 112")
    e("s_cselect_b32 s9, 1, 0")
    e("s_mul_i32 s10, s9, 112")
    e("s_sub_u32 s10, s8, s10")
    e("s_mov_b32 s11, 0")
    for t in (28, 56, 84):
        e("s_cmp_ge_u32 s10, %d" % t)
        e("s_addc_u32 s11, s11, 0")
    e("s_mul_i32 s12, s11, 28")
    e("s_sub_u32 s12, s10, s12")
    e("s_waitcnt lgkmcnt(0)")
    build_srd(SRD_X, 16, 1024)
    build_srd(SRD_K, 18, 134217728)
    build_srd(SRD_V, 20, 134217728)
    build_srd(SRD_WQ, 22, 4194304)
    build_srd(SRD_WO, 24, 4194304)
    e("s_cmp_eq_u32 s9, 0")
    e("s_cselect_b32 s%d, s28, s30" % SRD_W13)
    e("s_cselect_b32 s%d, s29, s31" % (SRD_W13 + 1))
    e("s_mov_b32 s%d, 0x%x" % (SRD_W13 + 2, 1835008))
    e("s_mov_b32 s%d, 0x00020000" % (SRD_W13 + 3))
    build_srd(SRD_W2, 32, 1835008)
    build_srd(SRD_OUT, 34, 1024)
    build_srd(SRD_DBG, 36, 256)
    build_srd(SRD_WS, 38, 536870912)
    e("s_cmp_eq_u32 s3, 8")
    e("s_cbranch_scc1 L_service")
    worker()
    service()
    lab("L_end")
    e("s_endpgm")

def dma_unit(isK, slot, saddr):
    e("s_add_u32 m0, s15, %d" % (slot * 4096))
    e("s_nop 0")
    for j in range(4):
        dma_piece(isK, j, saddr)
def dma_piece(isK, j, saddr):
    vo = (2 + j) if isK else (6 + (j & 1))
    e("buffer_load_dwordx4 v%d, %s, s%d offen offset:%d%s lds" %
      (vo, srd(SRD_K if isK else SRD_V), saddr, j * 1024, " nt" if NT else ""))

POOLCH = (128 - NS) * 32 // 4
OB = 128
VM, VL = 160, 161
SB = 162
PA = 166

def read_k(bank, slot):
    for sx in range(4):
        e("ds_read_b128 v[%d:%d], v%d offset:%d" % (bank + 4 * sx, bank + 3 + 4 * sx, 8 + sx, slot * 4096))
def read_v(bank, slot):
    for D in range(8):
        e("ds_read_b64_tr_b16 v[%d:%d], v%d offset:%d" % (bank + 2 * D, bank + 1 + 2 * D, 12 + D, slot * 4096))

def qk_softmax(kb):
    for sx in range(4):
        cc = "0" if sx == 0 else "v[%d:%d]" % (SB, SB + 3)
        e("v_mfma_f32_16x16x32_bf16 v[%d:%d], v[%d:%d], v[%d:%d], %s" %
          (SB, SB + 3, kb + 4 * sx, kb + 3 + 4 * sx, 112 + 4 * sx, 115 + 4 * sx, cc))
    e("s_nop 7")
    e("s_nop 1")
    rnd_bf16_pair(SB, SB + 1, 22)
    rnd_bf16_pair(SB + 2, SB + 3, 22)
    for k in range(4):
        e("v_mul_f32 v%d, 0x%x, v%d" % (SB + k, SCALE, SB + k))
    rnd_bf16_pair(SB, SB + 1, 22)
    rnd_bf16_pair(SB + 2, SB + 3, 22)
    e("v_max3_f32 v23, v%d, v%d, v%d" % (SB, SB + 1, SB + 2))
    e("v_max_f32 v23, v23, v%d" % (SB + 3))
    allred("v_max_f32", 23, 22, [4, 5])
    e("v_max_f32 v23, v23, v%d" % VM)
    e("v_sub_f32 v24, v%d, v23" % VM)
    e("v_mov_b32 v%d, v23" % VM)
    e("v_mul_f32 v24, s33, v24")
    for k in range(4):
        e("v_sub_f32 v%d, v%d, v23" % (SB + k, SB + k))
    e("v_exp_f32 v24, v24")
    for k in range(4):
        e("v_mul_f32 v%d, s33, v%d" % (SB + k, SB + k))
    for k in range(4):
        e("v_exp_f32 v%d, v%d" % (SB + k, SB + k))
    e("v_mul_f32 v%d, v%d, v24" % (VL, VL))
    for h in range(4):
        e("v_mov_b32_dpp v%d, v24 quad_perm:[%d,%d,%d,%d] row_mask:0xf bank_mask:0xf" % (26 + h, h, h, h, h))
    for k in range(4):
        e("v_add_f32 v%d, v%d, v%d" % (VL, VL, SB + k))
    e("v_cvt_pk_bf16_f32 v%d, v%d, v%d" % (PA, SB, SB + 1))
    e("v_cvt_pk_bf16_f32 v%d, v%d, v%d" % (PA + 1, SB + 2, SB + 3))
    for D in range(8):
        for h in range(4):
            e("v_mul_f32 v%d, v%d, v%d" % (OB + 4 * D + h, OB + 4 * D + h, 26 + h))
def pv(vb):
    e("s_nop 1")
    for D in range(8):
        e("v_mfma_f32_16x16x16_bf16 v[%d:%d], v[%d:%d], v[%d:%d], v[%d:%d]" %
          (OB + 4 * D, OB + 3 + 4 * D, PA, PA + 1, vb + 2 * D, vb + 1 + 2 * D, OB + 4 * D, OB + 3 + 4 * D))

def get_next(tag):
    e("s_mov_b64 exec, 1")
    e("v_mov_b32 v22, %d" % LCNT)
    e("v_mov_b32 v23, 1")
    e("ds_add_rtn_u32 v23, v22, v23")
    e("s_mov_b64 exec, -1")
    e("s_waitcnt lgkmcnt(0)")
    e("v_readfirstlane_b32 s16, v23")
    e("s_nop 3")
    e("s_cmp_ge_u32 s16, %d" % NS)
    e("s_cbranch_scc1 L_dyn%s" % tag)
    e("s_lshl_b32 s36, s16, 12")
    e("s_add_u32 s36, s36, s14")
    e("s_branch L_got%s" % tag)
    lab("L_dyn%s" % tag)
    e("s_sub_u32 s16, s16, %d" % NS)
    e("s_lshr_b32 s17, s16, 2")
    e("s_min_u32 s17, s17, 270")
    e("s_lshl_b32 s17, s17, 2")
    e("s_add_u32 s17, s17, %d" % TK)
    e("v_mov_b32 v22, s17")
    e("s_mov_b32 s19, 0")
    lab("L_tkw%s" % tag)
    e("ds_read_b32 v23, v22")
    e("s_waitcnt lgkmcnt(0)")
    e("v_readfirstlane_b32 s18, v23")
    e("s_nop 3")
    e("s_cmp_lg_u32 s18, -1")
    e("s_cbranch_scc1 L_tkg%s" % tag)
    e("s_add_u32 s19, s19, 1")
    e("s_cmp_ge_u32 s19, 0x100000")
    e("s_cbranch_scc1 L_tkend%s" % tag)
    e("s_sleep 1")
    e("s_branch L_tkw%s" % tag)
    lab("L_tkg%s" % tag)
    e("s_cmp_ge_u32 s18, %d" % POOLCH)
    e("s_cbranch_scc1 L_tkend%s" % tag)
    e("s_lshl_b32 s18, s18, 2")
    e("s_and_b32 s16, s16, 3")
    e("s_add_u32 s18, s18, s16")
    e("s_lshl_b32 s36, s18, 12")
    e("s_add_u32 s36, s36, s35")
    e("s_branch L_got%s" % tag)
    lab("L_tkend%s" % tag)
    e("s_mov_b32 s37, 1")
    lab("L_got%s" % tag)

def wait12(tag):
    e("s_cmp_eq_u32 s37, 0")
    e("s_cbranch_scc1 L_w%s" % tag)
    e("s_waitcnt vmcnt(0)")
    lab("L_w%s" % tag)
    e("s_waitcnt vmcnt(12)")

def loop_tile(par, tag):
    ks, vs = 2 * par, 2 * par + 1
    e("s_mov_b32 s38, s37")
    e("s_cmp_lg_u32 s37, 0")
    e("s_cbranch_scc1 L_nn%s" % tag)
    get_next(tag)
    lab("L_nn%s" % tag)
    wait12(tag + "a")
    read_k(32, ks)
    e("s_waitcnt lgkmcnt(0)")
    e("s_cmp_lg_u32 s37, 0")
    e("s_cbranch_scc1 L_sk%s" % tag)
    dma_unit(True, ks, 36)
    lab("L_sk%s" % tag)
    qk_softmax(32)
    wait12(tag + "b")
    read_v(48, vs)
    e("s_waitcnt lgkmcnt(0)")
    e("s_cmp_lg_u32 s37, 0")
    e("s_cbranch_scc1 L_sv%s" % tag)
    dma_unit(False, vs, 36)
    lab("L_sv%s" % tag)
    pv(48)
    e("s_cmp_lg_u32 s38, 0")
    e("s_cbranch_scc1 L_wdone")

def worker():
    c("================= worker waves (s3 = 0..7) =================")
    stamp(0)
    e("v_lshlrev_b32 v30, 4, v0")
    e("buffer_load_dwordx4 v[32:35], v30, %s, 0 offen" % srd(SRD_X))
    e("v_lshrrev_b32 v24, 3, v0")
    e("v_and_b32 v25, 7, v0")
    e("v_lshlrev_b32 v26, 13, v24")
    e("v_lshl_add_u32 v26, v25, 4, v26")
    e("s_lshr_b32 s16, s5, 3")
    e("s_and_b32 s17, s5, 7")
    e("s_lshl_b32 s18, s16, 7")
    e("s_lshl_b32 s19, s3, 4")
    e("s_add_u32 s18, s18, s19")
    e("s_lshl_b32 s19, s18, 13")
    e("s_lshl_b32 s20, s4, 10")
    e("s_add_u32 s19, s19, s20")
    e("s_lshl_b32 s20, s17, 7")
    e("s_add_u32 s19, s19, s20")
    e("s_add_u32 s20, s19, 65536")
    e("buffer_load_dwordx4 v[36:39], v26, %s, s19 offen" % srd(SRD_WQ))
    e("buffer_load_dwordx4 v[40:43], v26, %s, s20 offen" % srd(SRD_WQ))
    e("s_movk_i32 s21, 3584")
    e("v_mul_lo_u32 v27, v24, s21")
    e("v_lshl_add_u32 v27, v25, 4, v27")
    e("s_lshl_b32 s22, s11, 7")
    e("s_lshl_b32 s23, s3, 4")
    e("s_add_u32 s22, s22, s23")
    e("s_mul_i32 s23, s22, 3584")
    e("s_lshl_b32 s24, s12, 7")
    e("s_add_u32 s23, s23, s24")
    e("s_add_u32 s24, s23, %d" % (8 * 3584))
    e("buffer_load_dwordx4 v[44:47], v27, %s, s23 offen" % srd(SRD_W13))
    e("buffer_load_dwordx4 v[48:51], v27, %s, s24 offen" % srd(SRD_W13))
    e("s_lshl_b32 s14, s4, 24")
    e("s_add_u32 s35, s14, %d" % (32 * NS * 4096))
    e("s_mul_i32 s15, s5, %d" % (NS * 4096))
    e("s_add_u32 s14, s14, s15")
    e("s_lshl_b32 s15, s3, 12")
    e("s_add_u32 s34, s14, s15")
    e("s_mov_b32 s33, 0x%x" % LOG2E)
    e("s_mov_b32 s37, 0")
    e("s_lshl_b32 s15, s3, 14")
    e("s_add_u32 s15, s15, %d" % RINGB)
    e("v_lshrrev_b32 v20, 4, v0")
    e("v_and_b32 v21, 15, v0")
    e("v_lshlrev_b32 v22, 8, v20")
    e("v_xor_b32 v23, v21, v20")
    for j in range(4):
        e("v_xor_b32 v28, %d, v23" % (4 * j))
        e("v_lshl_add_u32 v%d, v28, 4, v22" % (2 + j))
    e("v_lshlrev_b32 v28, 1, v20")
    e("v_xor_b32 v28, v21, v28")
    e("v_lshl_add_u32 v6, v28, 4, v22")
    e("v_xor_b32 v28, 8, v28")
    e("v_lshl_add_u32 v7, v28, 4, v22")
    def pre_setup(u):
        e("s_add_u32 s20, s34, %d" % ((u // 2) * 32768))
        e("s_add_u32 m0, s15, %d" % ((u % 4) * 4096))
        e("s_nop 0")
    for i in range(INIT):
        if i % 4 == 0:
            pre_setup(i // 4)
        dma_piece((i // 4) % 2 == 0, i % 4, 20)
    nd = INIT
    e("v_lshlrev_b32 v29, 8, v21")
    e("v_add_u32 v29, s15, v29")
    for s in range(4):
        e("v_xor_b32 v28, %d, v23" % (4 * s))
        e("v_lshl_add_u32 v%d, v28, 4, v29" % (8 + s))
    e("v_lshrrev_b32 v28, 2, v21")
    e("v_lshl_add_u32 v28, v20, 2, v28")
    e("v_lshlrev_b32 v29, 8, v28")
    e("v_add_u32 v29, s15, v29")
    e("v_and_b32 v28, 7, v28")
    e("v_lshlrev_b32 v28, 1, v28")
    e("v_and_b32 v31, 3, v21")
    e("v_lshrrev_b32 v52, 1, v31")
    e("v_or_b32 v28, v28, v52")
    e("v_and_b32 v31, 1, v31")
    e("v_lshl_add_u32 v29, v31, 3, v29")
    for D in range(8):
        e("v_xor_b32 v52, %d, v28" % (2 * D))
        e("v_lshl_add_u32 v%d, v52, 4, v29" % (12 + D))
    e("s_waitcnt vmcnt(%d)" % (4 + nd))
    stampS(4)
    for j in range(4):
        e("v_lshlrev_b32 v%d, 16, v%d" % (56 + 2 * j, 32 + j))
        e("v_and_b32 v%d, 0xffff0000, v%d" % (57 + 2 * j, 32 + j))
    e("v_add_f32 v64, v56, v57")
    for j in range(2, 8):
        e("v_add_f32 v64, v64, v%d" % (56 + j))
    allred("v_add_f32", 64, 65, [0, 1, 2, 3, 4, 5])
    e("v_mul_f32 v64, 0x3b000000, v64")
    for j in range(8):
        e("v_sub_f32 v%d, v%d, v64" % (66 + j, 56 + j))
    e("v_mul_f32 v74, v66, v66")
    for j in range(1, 8):
        e("v_fmac_f32 v74, v%d, v%d" % (66 + j, 66 + j))
    allred("v_add_f32", 74, 65, [0, 1, 2, 3, 4, 5])
    e("v_mul_f32 v74, 0x3b000000, v74")
    rnd_bf16_pair(64, 74, 65)
    e("v_add_f32 v74, 0x%x, v74" % EPS)
    rnd_bf16(74, 65)
    e("v_sqrt_f32 v74, v74")
    e("s_nop 0")
    rnd_bf16(74, 65)
    e("v_rcp_f32 v75, v74")
    for j in range(8):
        e("v_sub_f32 v%d, v%d, v64" % (56 + j, 56 + j))
    for j in range(0, 8, 2):
        rnd_bf16_pair(56 + j, 57 + j, 65)
    for j in range(8):
        e("v_mul_f32 v%d, v%d, v75" % (66 + j, 56 + j))
    for j in range(8):
        e("v_fma_f32 v%d, -v%d, v74, v%d" % (76 + j, 66 + j, 56 + j))
    for j in range(8):
        e("v_fma_f32 v%d, v%d, v75, v%d" % (56 + j, 76 + j, 66 + j))
    for j in range(0, 8, 2):
        rnd_bf16_pair(56 + j, 57 + j, 65)
    e("v_lshlrev_b32 v65, 5, v0")
    e("ds_write_b128 v65, v[56:59] offset:%d" % XN)
    e("ds_write_b128 v65, v[60:63] offset:%d" % (XN + 16))
    e("v_add_u32 v65, s18, v24")
    e("v_lshlrev_b32 v65, 2, v65")
    e("v_add_u32 v66, s22, v24")
    e("v_lshlrev_b32 v66, 2, v66")
    e("s_waitcnt lgkmcnt(0)")
    e("ds_read_b32 v68, v65 offset:%d" % XN)
    e("ds_read_b32 v69, v65 offset:%d" % (XN + 32))
    e("ds_read_b32 v70, v66 offset:%d" % XN)
    e("ds_read_b32 v71, v66 offset:%d" % (XN + 32))
    for j in range(16):
        e("v_mov_b32 v%d, 0" % (80 + j))
    e("s_waitcnt vmcnt(%d) lgkmcnt(0)" % nd)
    stampS(5)
    for mat in range(2):
        for row in range(2):
            wbase = 36 + 8 * mat + 4 * row
            xr = 68 + 2 * mat + row
            for j in range(4):
                e("v_lshlrev_b32 v72, 16, v%d" % (wbase + j))
                e("v_and_b32 v73, 0xffff0000, v%d" % (wbase + j))
                e("v_fmac_f32 v%d, v%d, v72" % (80 + 8 * mat + 2 * j, xr))
                e("v_fmac_f32 v%d, v%d, v73" % (81 + 8 * mat + 2 * j, xr))
    e("s_nop 1")
    for j in range(16):
        dpp("v_add_f32", 80 + j, 80 + j, 80 + j, "row_ror:8")
    e("s_lshl_b32 s16, s3, 10")
    e("v_lshl_add_u32 v65, v25, 5, v22")
    e("v_add_u32 v65, s16, v65")
    e("ds_write_b128 v65, v[80:83] offset:%d" % RS)
    e("ds_write_b128 v65, v[84:87] offset:%d" % (RS + 16))
    e("ds_write_b128 v65, v[88:91] offset:%d" % (RS + 8192))
    e("ds_write_b128 v65, v[92:95] offset:%d" % (RS + 8192 + 16))
    e("s_cmp_lg_u32 s3, 0")
    e("s_cbranch_scc1 L_noinit")
    e("v_mov_b32 v66, -1")
    e("v_mov_b32 v67, -1")
    e("v_mov_b32 v68, -1")
    e("v_mov_b32 v69, -1")
    e("v_lshlrev_b32 v65, 4, v0")
    e("ds_write_b128 v65, v[66:69] offset:%d" % TK)
    e("v_lshlrev_b32 v65, 2, v0")
    e("ds_write_b32 v65, v66 offset:%d" % (TK + 1024))
    e("v_mov_b32 v65, 0")
    e("v_mov_b32 v66, 40")
    e("ds_write_b32 v65, v66 offset:%d" % LCNT)
    lab("L_noinit")
    e("s_waitcnt lgkmcnt(0)")
    stampS(6)
    e("s_barrier")
    stamp(1)
    stampFlush([4, 5, 6])
    for i in range(INIT, 36):
        u = i // 4
        e("s_waitcnt vmcnt(%d)" % (PACE - 1))
        if i % 4 == 0 and u >= 4:
            pu = u - 4
            if pu % 2 == 0:
                read_k(32 + 16 * pu, pu % 4)
            else:
                read_v(32 + 16 * pu, pu % 4)
            e("s_waitcnt lgkmcnt(0)")
        if i % 4 == 0 or i == INIT:
            pre_setup(u)
        dma_piece(u % 2 == 0, i % 4, 20)
    for k in range(32):
        e("v_mov_b32 v%d, 0" % (OB + k))
    e("v_mov_b32 v%d, 0xf149f2ca" % VM)
    e("v_mov_b32 v%d, 0" % VL)
    e("s_barrier")
    stamp(2)
    e("v_and_b32 v28, 3, v21")
    e("v_lshlrev_b32 v28, 8, v28")
    e("v_lshl_add_u32 v28, v20, 4, v28")
    for sx in range(4):
        e("ds_read_b128 v[%d:%d], v28 offset:%d" % (112 + 4 * sx, 115 + 4 * sx, QL + 64 * sx))
    e("s_waitcnt lgkmcnt(0)")
    qk_softmax(32); pv(48)
    qk_softmax(64); pv(80)
    qk_softmax(96)
    e("s_waitcnt vmcnt(12)")
    read_v(48, 1)
    e("s_waitcnt lgkmcnt(0)")
    e("s_add_u32 s20, s34, %d" % (4 * 32768))
    dma_unit(False, 1, 20)
    pv(48)
    lab("L_loop")
    loop_tile(1, "o")
    loop_tile(0, "e")
    e("s_branch L_loop")
    lab("L_wdone")
    allred("v_add_f32", VL, 22, [4, 5])
    stamp(3)
    e("s_nop 7")
    e("s_nop 1")
    e("v_lshlrev_b32 v28, 2, v0")
    e("v_add_u32 v28, s15, v28")
    e("s_mov_b64 exec, 0xffff")
    for D in range(8):
        for h in range(4):
            e("ds_write_b32 v28, v%d offset:%d" % (OB + 4 * D + h, h * 512 + D * 64))
    e("s_mov_b64 exec, 0xf")
    e("v_lshlrev_b32 v28, 3, v0")
    e("v_add_u32 v28, s15, v28")
    e("ds_write_b64 v28, v[%d:%d] offset:2048" % (VM, VL))
    e("s_mov_b64 exec, -1")
    e("s_waitcnt lgkmcnt(0)")
    e("s_barrier")
    e("s_endpgm")

def poll(label, vaddr, vtmp):
    e("s_mov_b32 s16, 0")
    lab(label)
    e("buffer_load_dwordx2 v[%d:%d], v%d, %s, 0 offen sc1" % (vtmp, vtmp + 1, vaddr, srd(SRD_WS)))
    e("s_waitcnt vmcnt(0)")
    e("v_cmp_ne_u64 vcc, s[94:95], v[%d:%d]" % (vtmp, vtmp + 1))
    e("s_nop 1")
    e("s_cbranch_vccz %s_done" % label)
    e("s_add_u32 s16, s16, 1")
    e("s_cmp_ge_u32 s16, 0x40000")
    e("s_cbranch_scc1 %s_done" % label)
    e("s_sleep %d" % SLEEP)
    e("s_branch %s" % label)
    lab(label + "_done")

def set_flag(ph):
    e("s_waitcnt vmcnt(0)")
    e("v_mov_b32 v2, s94")
    e("v_mov_b32 v3, s95")
    e("s_lshl_b32 s17, s17, 3")
    e("s_add_u32 s17, s17, %d" % (FLG + ph * 2048))
    e("v_mov_b32 v1, s17")
    e("s_mov_b64 exec, 1")
    e("buffer_store_dwordx2 v[2:3], v1, %s, 0 offen sc1" % srd(SRD_WS))
    e("s_mov_b64 exec, -1")

def gemv_rows(nrows, wbase, xbase, acc):
    for j in range(8):
        e("v_mov_b32 v%d, 0" % (acc + j))
    for i in range(nrows):
        for j in range(4):
            e("v_lshlrev_b32 v4, 16, v%d" % (wbase + 4 * i + j))
            e("v_and_b32 v5, 0xffff0000, v%d" % (wbase + 4 * i + j))
            e("v_fmac_f32 v%d, v%d, v4" % (acc + 2 * j, xbase + i))
            e("v_fmac_f32 v%d, v%d, v5" % (acc + 2 * j + 1, xbase + i))
    for j in range(8):
        allred("v_add_f32", acc + j, 4, [3, 4, 5])

def service():
    lab("L_service")
    ROLE[0] = "s"
    e("s_setprio 3")
    c("================= service wave =================")
    stamp(0)
    e("v_lshrrev_b32 v24, 3, v0")
    e("v_and_b32 v25, 7, v0")
    e("v_mov_b32 v1, 0")
    e("s_cmp_lg_u32 s2, 0")
    e("s_cbranch_scc1 L_nonce_wait")
    e("s_memrealtime s[94:95]")
    e("s_waitcnt lgkmcnt(0)")
    e("s_or_b32 s94, s94, 1")
    e("v_mov_b32 v2, s94")
    e("v_mov_b32 v3, s95")
    e("s_mov_b64 exec, 1")
    e("buffer_store_dwordx2 v[2:3], v1, %s, 0 offen sc1" % srd(SRD_DBG))
    e("s_mov_b64 exec, -1")
    lab("L_nonce_wait")
    e("v_lshlrev_b32 v7, 10, v24")
    e("v_lshl_add_u32 v7, v25, 4, v7")
    e("s_mul_i32 s16, s6, %d" % (56 * 1024))
    e("s_lshl_b32 s17, s7, 7")
    e("s_add_u32 s16, s16, s17")
    for i in range(7):
        e("s_add_u32 s17, s16, %d" % (i * 8192))
        e("buffer_load_dwordx4 v[%d:%d], v7, %s, s17 offen" % (128 + 4 * i, 131 + 4 * i, srd(SRD_W2)))
    e("s_lshl_b32 s16, s6, 17")
    e("s_lshl_b32 s17, s7, 7")
    e("s_add_u32 s16, s16, s17")
    for i in range(16):
        e("s_add_u32 s17, s16, %d" % (i * 8192))
        e("buffer_load_dwordx4 v[%d:%d], v7, %s, s17 offen" % (64 + 4 * i, 67 + 4 * i, srd(SRD_WO)))
    e("s_barrier")
    stamp(1)
    e("v_lshlrev_b32 v6, 2, v0")
    for mat in range(2):
        for sl in range(32):
            e("ds_read_b32 v%d, v6 offset:%d" % (32 + sl, RS + mat * 8192 + sl * 256))
        e("s_waitcnt lgkmcnt(0)")
        for st in (16, 8, 4, 2, 1):
            for k in range(st):
                e("v_add_f32 v%d, v%d, v%d" % (32 + k, 32 + k, 32 + k + st))
        e("v_mov_b32 v%d, v32" % (28 + mat))
    e("s_lshr_b32 s16, s5, 3")
    e("s_lshl_b32 s16, s16, 14")
    e("s_lshl_b32 s17, s4, 11")
    e("s_add_u32 s16, s16, s17")
    e("s_and_b32 s17, s5, 7")
    e("s_lshl_b32 s17, s17, 8")
    e("s_add_u32 s16, s16, s17")
    e("s_add_u32 s16, s16, %d" % QP)
    e("buffer_store_dword v28, v6, %s, s16 offen sc1" % srd(SRD_WS))
    e("s_mul_i32 s16, s9, %d" % (4 * 1792 * 4))
    e("s_mul_i32 s17, s11, %d" % (1792 * 4))
    e("s_add_u32 s16, s16, s17")
    e("s_lshl_b32 s17, s12, 8")
    e("s_add_u32 s16, s16, s17")
    e("s_add_u32 s16, s16, %d" % GU)
    e("buffer_store_dword v29, v6, %s, s16 offen sc1" % srd(SRD_WS))
    e("v_mov_b32 v1, 0")
    e("s_mov_b32 s16, 0")
    lab("L_nonce_loop")
    e("buffer_load_dwordx2 v[2:3], v1, %s, 0 offen sc1" % srd(SRD_DBG))
    e("s_waitcnt vmcnt(0)")
    e("v_readfirstlane_b32 s94, v2")
    e("v_readfirstlane_b32 s95, v3")
    e("s_nop 3")
    e("s_and_b32 s17, s94, 1")
    e("s_cmp_lg_u32 s17, 0")
    e("s_cbranch_scc1 L_nonce_done")
    e("s_add_u32 s16, s16, 1")
    e("s_cmp_ge_u32 s16, 0x40000")
    e("s_cbranch_scc1 L_nonce_done")
    e("s_sleep 4")
    e("s_branch L_nonce_loop")
    lab("L_nonce_done")
    stamp(12)
    e("s_mov_b32 s17, s2")
    set_flag(0)
    stamp(2)
    e("v_and_b32 v8, 31, v0")
    e("s_lshl_b32 s16, s4, 5")
    e("v_add_u32 v8, s16, v8")
    e("v_lshlrev_b32 v8, 3, v8")
    e("v_add_u32 v8, %d, v8" % FLG)
    poll("L_poll_q", 8, 10)
    stamp(3)
    e("v_lshlrev_b32 v6, 5, v0")
    e("s_lshl_b32 s16, s4, 11")
    e("s_add_u32 s16, s16, %d" % QP)
    for kq in range(4):
        e("s_add_u32 s17, s16, %d" % (kq * 16384))
        e("buffer_load_dwordx4 v[%d:%d], v6, %s, s17 offen sc1" % (32 + 8 * kq, 35 + 8 * kq, srd(SRD_WS)))
        e("buffer_load_dwordx4 v[%d:%d], v6, %s, s17 offen offset:16 sc1" % (36 + 8 * kq, 39 + 8 * kq, srd(SRD_WS)))
    e("s_waitcnt vmcnt(0)")
    for kq in range(1, 4):
        for j in range(8):
            e("v_add_f32 v%d, v%d, v%d" % (32 + j, 32 + j, 32 + 8 * kq + j))
    for j in range(4):
        e("v_cvt_pk_bf16_f32 v%d, v%d, v%d" % (40 + j, 32 + 2 * j, 33 + 2 * j))
    e("v_lshlrev_b32 v6, 4, v0")
    e("ds_write_b128 v6, v[40:43] offset:%d" % QL)
    e("s_waitcnt lgkmcnt(0)")
    e("s_barrier")
    stamp(4)
    e("v_lshlrev_b32 v8, 3, v0")
    e("v_add_u32 v8, %d, v8" % FLG)
    e("s_mov_b32 s16, 0")
    lab("L_poll_b")
    for k in range(4):
        e("buffer_load_dwordx2 v[%d:%d], v8, %s, 0 offen offset:%d sc1" % (10 + 2 * k, 11 + 2 * k, srd(SRD_WS), 512 * k))
    e("s_waitcnt vmcnt(0)")
    e("v_cmp_ne_u64 vcc, s[94:95], v[10:11]")
    for k in range(1, 4):
        e("v_cmp_ne_u64 s[18:19], s[94:95], v[%d:%d]" % (10 + 2 * k, 11 + 2 * k))
        e("s_nop 1")
        e("s_or_b64 vcc, vcc, s[18:19]")
    e("s_cbranch_vccz L_poll_b_done")
    e("s_add_u32 s16, s16, 1")
    e("s_cmp_ge_u32 s16, 0x40000")
    e("s_cbranch_scc1 L_poll_b_done")
    e("s_sleep %d" % SLEEP)
    e("s_branch L_poll_b")
    lab("L_poll_b_done")
    e("v_min_u32 v6, 55, v0")
    e("s_mul_i32 s16, s6, 56")
    e("v_add_u32 v6, s16, v6")
    e("v_lshlrev_b32 v6, 2, v6")
    for m in range(2):
        for kq in range(4):
            e("s_mov_b32 s17, %d" % (GU + (m * 4 + kq) * 1792 * 4))
            e("buffer_load_dword v%d, v6, %s, s17 offen sc1" % (32 + 4 * m + kq, srd(SRD_WS)))
    e("s_waitcnt vmcnt(0)")
    for m in range(2):
        for kq in range(1, 4):
            e("v_add_f32 v%d, v%d, v%d" % (32 + 4 * m, 32 + 4 * m, 32 + 4 * m + kq))
    rnd_bf16_pair(32, 36, 4)
    e("v_mul_f32 v33, 0x%x, v32" % (LOG2E | 0x80000000))
    e("v_exp_f32 v33, v33")
    e("s_nop 0")
    e("v_add_f32 v33, 1.0, v33")
    e("v_rcp_f32 v34, v33")
    e("s_nop 0")
    e("v_mul_f32 v35, v32, v34")
    rnd_bf16(35, 4)
    e("v_mul_f32 v35, v35, v36")
    rnd_bf16(35, 4)
    e("v_lshlrev_b32 v6, 2, v0")
    e("ds_write_b32 v6, v35 offset:%d" % HL)
    e("v_lshlrev_b32 v6, 2, v24")
    e("s_waitcnt lgkmcnt(0)")
    for i in range(7):
        e("ds_read_b32 v%d, v6 offset:%d" % (32 + i, HL + 32 * i))
    e("s_waitcnt lgkmcnt(0)")
    gemv_rows(7, 128, 32, 40)
    e("s_lshl_b32 s16, s7, 13")
    e("s_lshl_b32 s17, s6, 8")
    e("s_add_u32 s16, s16, s17")
    e("s_add_u32 s16, s16, %d" % YB)
    e("v_lshlrev_b32 v6, 5, v0")
    e("s_mov_b64 exec, 0xff")
    e("buffer_store_dwordx4 v[40:43], v6, %s, s16 offen sc1" % srd(SRD_WS))
    e("buffer_store_dwordx4 v[44:47], v6, %s, s16 offen offset:16 sc1" % srd(SRD_WS))
    e("s_mov_b64 exec, -1")
    stamp(5)
    e("s_mov_b32 s18, 0")
    e("s_mov_b32 s19, 0")
    e("v_mov_b32 v8, %d" % LCNT)
    e("s_lshl_b32 s16, s4, 2")
    e("s_add_u32 s16, s16, 64")
    e("v_mov_b32 v9, s16")
    lab("L_tk_loop")
    e("ds_read_b32 v10, v8")
    e("s_waitcnt lgkmcnt(0)")
    e("v_readfirstlane_b32 s16, v10")
    e("s_nop 3")
    e("s_add_u32 s16, s16, %d" % (AHEAD + 3))
    e("s_lshl_b32 s17, s18, 2")
    e("s_add_u32 s17, s17, %d" % NS)
    e("s_cmp_gt_u32 s16, s17")
    e("s_cbranch_scc0 L_tk_idle")
    e("s_sub_u32 s16, s16, s17")
    e("s_lshr_b32 s16, s16, 2")
    e("s_cmp_lg_u32 s16, 0")
    e("s_cbranch_scc1 L_tk_fetch")
    lab("L_tk_idle")
    e("s_add_u32 s19, s19, 1")
    e("s_cmp_ge_u32 s19, 0x200000")
    e("s_cbranch_scc1 L_tk_end")
    e("s_sleep 2")
    e("s_branch L_tk_loop")
    lab("L_tk_fetch")
    e("s_min_u32 s16, s16, 4")
    e("v_mov_b32 v10, s16")
    e("s_mov_b64 exec, 1")
    e("buffer_atomic_add v10, v9, %s, 0 offen sc0" % srd(SRD_DBG))
    e("s_mov_b64 exec, -1")
    e("s_waitcnt vmcnt(0)")
    e("v_readfirstlane_b32 s17, v10")
    e("s_lshl_b32 s20, s18, 2")
    e("s_add_u32 s20, s20, %d" % TK)
    e("v_lshlrev_b32 v11, 2, v0")
    e("v_add_u32 v11, s20, v11")
    e("v_add_u32 v10, s17, v0")
    e("v_cmp_gt_u32 vcc, s16, v0")
    e("s_and_saveexec_b64 s[20:21], vcc")
    e("ds_write_b32 v11, v10")
    e("s_mov_b64 exec, -1")
    e("s_add_u32 s18, s18, s16")
    e("s_add_u32 s17, s17, s16")
    e("s_cmp_ge_u32 s18, 256")
    e("s_cbranch_scc1 L_tk_end")
    e("s_cmp_le_u32 s17, %d" % POOLCH)
    e("s_cbranch_scc1 L_tk_loop")
    lab("L_tk_end")
    e("s_lshl_b32 s17, s18, 2")
    e("s_add_u32 s17, s17, %d" % TK)
    e("v_lshlrev_b32 v11, 2, v0")
    e("v_add_u32 v11, s17, v11")
    e("v_mov_b32 v10, 0x7fffffff")
    e("s_mov_b64 exec, 0xff")
    e("ds_write_b32 v11, v10")
    e("s_mov_b64 exec, -1")
    e("s_waitcnt lgkmcnt(0)")
    e("s_barrier")
    stamp(6)
    e("v_and_b32 v6, 31, v0")
    e("v_lshrrev_b32 v8, 2, v6")
    e("v_lshlrev_b32 v8, 14, v8")
    e("v_and_b32 v10, 3, v0")
    e("v_lshl_add_u32 v8, v10, 3, v8")
    e("ds_read_b64 v[12:13], v8 offset:%d" % (RINGB + 2048))
    e("s_waitcnt lgkmcnt(0)")
    e("v_mov_b32 v14, v12")
    allred("v_max_f32", 14, 4, [2, 3, 4])
    e("v_sub_f32 v15, v12, v14")
    e("v_mul_f32 v15, 0x%x, v15" % LOG2E)
    e("v_exp_f32 v15, v15")
    e("s_nop 0")
    e("v_mul_f32 v16, v15, v13")
    allred("v_add_f32", 16, 4, [2, 3, 4])
    e("v_lshlrev_b32 v8, 2, v6")
    e("ds_write_b32 v8, v15 offset:%d" % SC)
    e("v_mov_b32 v17, v16")
    e("v_mov_b32 v16, v14")
    e("v_lshrrev_b32 v8, 4, v0")
    e("v_and_b32 v10, 15, v0")
    e("v_lshlrev_b32 v18, 9, v8")
    e("v_lshl_add_u32 v18, v10, 5, v18")
    e("v_add_u32 v18, %d, v18" % RINGB)
    e("v_add_u32 v11, 0x10000, v18")
    e("v_lshlrev_b32 v19, 2, v8")
    e("s_waitcnt lgkmcnt(0)")
    for wv in range(8):
        e("ds_read_b32 v%d, v19 offset:%d" % (20 + wv, SC + 16 * wv))
    for j in range(8):
        e("v_mov_b32 v%d, 0" % (28 + j))
    for batch in ((0, 1, 2), (3, 4, 5), (6, 7)):
        for k, wv in enumerate(batch):
            off = (wv & 3) * 16384
            ar = 18 if wv < 4 else 11
            e("ds_read_b128 v[%d:%d], v%d offset:%d" % (36 + 8 * k, 39 + 8 * k, ar, off))
            e("ds_read_b128 v[%d:%d], v%d offset:%d" % (40 + 8 * k, 43 + 8 * k, ar, off + 16))
        e("s_waitcnt lgkmcnt(0)")
        for k, wv in enumerate(batch):
            for j in range(8):
                e("v_fmac_f32 v%d, v%d, v%d" % (28 + j, 20 + wv, 36 + 8 * k + j))
    e("v_lshlrev_b32 v18, 14, v8")
    e("v_lshl_add_u32 v18, v10, 5, v18")
    e("s_lshl_b32 s16, s4, 16")
    e("s_lshl_b32 s17, s5, 9")
    e("s_add_u32 s16, s16, s17")
    e("s_add_u32 s16, s16, %d" % AP)
    e("buffer_store_dwordx4 v[28:31], v18, %s, s16 offen sc1" % srd(SRD_WS))
    e("buffer_store_dwordx4 v[32:35], v18, %s, s16 offen offset:16 sc1" % srd(SRD_WS))
    e("v_lshlrev_b32 v18, 8, v0")
    e("s_lshl_b32 s16, s4, 10")
    e("s_lshl_b32 s17, s5, 3")
    e("s_add_u32 s16, s16, s17")
    e("s_add_u32 s16, s16, %d" % ML)
    e("s_mov_b64 exec, 0xf")
    e("buffer_store_dwordx2 v[16:17], v18, %s, s16 offen sc1" % srd(SRD_WS))
    e("s_mov_b64 exec, -1")
    e("s_mov_b32 s17, s2")
    set_flag(1)
    stamp(7)
    e("v_and_b32 v8, 31, v0")
    e("s_lshl_b32 s16, s4, 5")
    e("v_add_u32 v8, s16, v8")
    e("v_lshlrev_b32 v8, 3, v8")
    e("v_add_u32 v8, %d, v8" % (FLG + 2048))
    poll("L_poll_a", 8, 10)
    stamp(8)
    e("v_and_b32 v6, 31, v0")
    e("v_lshlrev_b32 v8, 3, v6")
    e("s_lshl_b32 s16, s6, 8")
    e("s_add_u32 s16, s16, %d" % ML)
    e("buffer_load_dwordx2 v[12:13], v8, %s, s16 offen sc1" % srd(SRD_WS))
    def apreg(i):
        return 128 + 4 * i if i < 10 else 40 + 4 * (i - 10)
    e("v_lshrrev_b32 v10, 5, v0")
    e("v_lshlrev_b32 v8, 9, v10")
    e("v_lshl_add_u32 v8, v6, 4, v8")
    e("s_lshl_b32 s16, s6, 14")
    e("s_add_u32 s16, s16, %d" % AP)
    for i in range(16):
        e("s_add_u32 s17, s16, %d" % (i * 1024))
        e("buffer_load_dwordx4 v[%d:%d], v8, %s, s17 offen sc1" % (apreg(i), apreg(i) + 3, srd(SRD_WS)))
    e("s_waitcnt vmcnt(16)")
    e("v_mov_b32 v14, v12")
    allred("v_max_f32", 14, 4, [0, 1, 2, 3, 4])
    e("v_sub_f32 v15, v12, v14")
    e("v_mul_f32 v15, 0x%x, v15" % LOG2E)
    e("v_exp_f32 v15, v15")
    e("s_nop 0")
    e("v_mul_f32 v16, v15, v13")
    allred("v_add_f32", 16, 4, [0, 1, 2, 3, 4])
    e("v_lshlrev_b32 v8, 2, v6")
    e("ds_write_b32 v8, v15 offset:%d" % WL)
    e("v_lshlrev_b32 v8, 2, v10")
    e("s_waitcnt lgkmcnt(0)")
    for i in range(16):
        e("ds_read_b32 v%d, v8 offset:%d" % (20 + i, WL + 8 * i))
    for j in range(4):
        e("v_mov_b32 v%d, 0" % (36 + j))
    e("s_waitcnt vmcnt(0) lgkmcnt(0)")
    for i in range(16):
        for j in range(4):
            e("v_fmac_f32 v%d, v%d, v%d" % (36 + j, 20 + i, apreg(i) + j))
    for j in range(4):
        allred("v_add_f32", 36 + j, 4, [5])
    e("v_rcp_f32 v17, v16")
    e("s_nop 0")
    for j in range(4):
        e("v_mul_f32 v18, v%d, v17" % (36 + j))
        e("v_fma_f32 v19, -v18, v16, v%d" % (36 + j))
        e("v_fma_f32 v%d, v19, v17, v18" % (36 + j))
    rnd_bf16_pair(36, 37, 4)
    rnd_bf16_pair(38, 39, 4)
    e("v_lshlrev_b32 v8, 4, v6")
    e("ds_write_b128 v8, v[36:39] offset:%d" % OL)
    e("v_lshrrev_b32 v8, 3, v0")
    e("v_lshlrev_b32 v8, 2, v8")
    e("s_waitcnt lgkmcnt(0)")
    for i in range(16):
        e("ds_read_b32 v%d, v8 offset:%d" % (20 + i, OL + 32 * i))
    e("s_waitcnt lgkmcnt(0)")
    gemv_rows(16, 64, 20, 48)
    e("s_lshl_b32 s16, s7, 13")
    e("s_lshl_b32 s17, s6, 8")
    e("s_add_u32 s16, s16, s17")
    e("s_add_u32 s16, s16, %d" % YA)
    e("v_lshlrev_b32 v6, 5, v0")
    e("s_mov_b64 exec, 0xff")
    e("buffer_store_dwordx4 v[48:51], v6, %s, s16 offen sc1" % srd(SRD_WS))
    e("buffer_store_dwordx4 v[52:55], v6, %s, s16 offen offset:16 sc1" % srd(SRD_WS))
    e("s_mov_b64 exec, -1")
    e("s_lshl_b32 s17, s7, 5")
    e("s_add_u32 s17, s17, s6")
    set_flag(2)
    stamp(9)
    e("s_cmp_ge_u32 s2, 8")
    e("s_cbranch_scc1 L_end")
    e("v_and_b32 v6, 15, v0")
    e("v_lshlrev_b32 v8, 3, v6")
    e("s_lshl_b32 s16, s7, 7")
    e("buffer_load_dwordx2 v[20:21], v8, %s, s16 offen" % srd(SRD_X))
    e("v_and_b32 v12, 31, v0")
    e("s_lshl_b32 s16, s7, 5")
    e("v_add_u32 v12, s16, v12")
    e("v_lshlrev_b32 v12, 3, v12")
    e("v_add_u32 v12, %d, v12" % (FLG + 4096))
    poll("L_poll_f", 12, 10)
    stamp(10)
    e("v_lshrrev_b32 v10, 4, v0")
    e("v_lshlrev_b32 v8, 8, v10")
    e("v_lshl_add_u32 v8, v6, 4, v8")
    e("s_lshl_b32 s16, s7, 13")
    for i in range(8):
        e("s_add_u32 s17, s16, %d" % (YA + i * 1024))
        e("buffer_load_dwordx4 v[%d:%d], v8, %s, s17 offen sc1" % (32 + 4 * i, 35 + 4 * i, srd(SRD_WS)))
    for i in range(8):
        e("s_add_u32 s17, s16, %d" % (YB + i * 1024))
        e("buffer_load_dwordx4 v[%d:%d], v8, %s, s17 offen sc1" % (64 + 4 * i, 67 + 4 * i, srd(SRD_WS)))
    e("s_waitcnt vmcnt(0)")
    for b in (32, 64):
        for i in range(1, 8):
            for j in range(4):
                e("v_add_f32 v%d, v%d, v%d" % (b + j, b + j, b + 4 * i + j))
        for j in range(4):
            allred("v_add_f32", b + j, 4, [4, 5])
    rnd_bf16_pair(32, 33, 4)
    rnd_bf16_pair(34, 35, 4)
    rnd_bf16_pair(64, 65, 4)
    rnd_bf16_pair(66, 67, 4)
    e("v_lshlrev_b32 v22, 16, v20")
    e("v_and_b32 v23, 0xffff0000, v20")
    e("v_lshlrev_b32 v24, 16, v21")
    e("v_and_b32 v25, 0xffff0000, v21")
    for j in range(4):
        e("v_add_f32 v%d, v%d, v%d" % (32 + j, 22 + j, 32 + j))
    rnd_bf16_pair(32, 33, 4)
    rnd_bf16_pair(34, 35, 4)
    for j in range(4):
        e("v_add_f32 v%d, v%d, v%d" % (32 + j, 32 + j, 64 + j))
    e("v_cvt_pk_bf16_f32 v36, v32, v33")
    e("v_cvt_pk_bf16_f32 v37, v34, v35")
    e("v_lshlrev_b32 v8, 3, v6")
    e("s_lshl_b32 s16, s7, 7")
    e("s_mov_b64 exec, 0xffff")
    e("buffer_store_dwordx2 v[36:37], v8, %s, s16 offen" % srd(SRD_OUT))
    e("s_mov_b64 exec, -1")
    stamp(11)

gen()
txt = "\n".join(header() + L + footer(168)) + "\n"
open(OUT, "w").write(txt)
print("wrote", OUT, len(txt), "bytes")
```

```python
import sys

NAME = "parallel_sum__gqa_block_cached__glu_gated_swiglu__decode"
OUT = "cdna_kernels/%s.s" % NAME

NT = True
PACE = 3
LAYOUT = "B"
INIT = 8
NREG = 5
SLEEP = 2
FLG = 0x180000
STAMP = False
DBGTS = False

for a in sys.argv[1:]:
    if a.startswith("nt="): NT = bool(int(a[3:]))
    elif a.startswith("pace="): PACE = int(a[5:])
    elif a.startswith("layout="): LAYOUT = a[7:]
    elif a.startswith("init="): INIT = int(a[5:])
    elif a.startswith("nreg="): NREG = int(a[5:])
    elif a.startswith("sleep="): SLEEP = int(a[6:])
    elif a.startswith("out="): OUT = a[4:]
    elif a.startswith("stamp="): STAMP = bool(int(a[6:]))
    elif a.startswith("dbgts="): DBGTS = bool(int(a[6:]))

L = []
def e(s=""):
    L.append("    " + s if s and not s.endswith(":") else s)
def lab(s):
    L.append(s + ":")
def c(s):
    L.append("    ; " + s)

XN = 0
RS = XN + 2048
QL = RS + 16384
HL = QL + 1024
WL = HL + 256
OL = WL + 128
SC = OL + 512
RINGB = 24576
LDS_TOTAL = RINGB + 8 * 16384

QP = 0
GU = 0x10000
AP = 0x20000
ML = 0xA0000
YA = 0xA2000
YB = 0xB2000
TS = 0x100000

SRD_X, SRD_K, SRD_V, SRD_WQ, SRD_WO, SRD_W13, SRD_W2, SRD_OUT, SRD_DBG, SRD_WS = 40, 44, 48, 52, 56, 60, 64, 68, 72, 76
def srd(n): return "s[%d:%d]" % (n, n + 3)

LOG2E = 0x3fb8aa3b
SCALE = 0x3db504f3
EPS = 0x3727c5ac

def header():
    h = []
    h.append("; @launch grid=(256,1,1) block=(576,1,1) lds=%d" % LDS_TOTAL)
    h.append('.amdgcn_target "amdgcn-amd-amdhsa--gfx950"')
    h.append(".text")
    h.append(".globl %s_kernel" % NAME)
    h.append(".p2align 8")
    h.append(".type %s_kernel,@function" % NAME)
    h.append("%s_kernel:" % NAME)
    return h

def footer(nv):
    f = []
    f.append(".section .rodata,\"a\"")
    f.append(".p2align 6")
    f.append(".amdhsa_kernel %s_kernel" % NAME)
    f.append("  .amdhsa_next_free_vgpr %d" % nv)
    f.append("  .amdhsa_next_free_sgpr 102")
    f.append("  .amdhsa_accum_offset %d" % ((nv + 3) // 4 * 4))
    f.append("  .amdhsa_group_segment_fixed_size 0")
    f.append("  .amdhsa_kernarg_size 96")
    f.append("  .amdhsa_user_sgpr_count 2")
    f.append("  .amdhsa_user_sgpr_kernarg_segment_ptr 1")
    f.append("  .amdhsa_system_sgpr_workgroup_id_x 1")
    f.append(".end_amdhsa_kernel")
    return f

def build_srd(d, p, nbytes):
    e("s_mov_b32 s%d, s%d" % (d, p))
    e("s_mov_b32 s%d, s%d" % (d + 1, p + 1))
    e("s_mov_b32 s%d, 0x%x" % (d + 2, nbytes))
    e("s_mov_b32 s%d, 0x00020000" % (d + 3))

def rnd_bf16_pair(a, b, t):
    e("v_cvt_pk_bf16_f32 v%d, v%d, v%d" % (t, a, b))
    e("v_lshlrev_b32 v%d, 16, v%d" % (a, t))
    e("v_and_b32 v%d, 0xffff0000, v%d" % (b, t))
def rnd_bf16(a, t):
    e("v_cvt_pk_bf16_f32 v%d, v%d, v%d" % (t, a, a))
    e("v_lshlrev_b32 v%d, 16, v%d" % (a, t))

def dpp(op, d, a, b, ctrl):
    e("%s_dpp v%d, v%d, v%d %s row_mask:0xf bank_mask:0xf" % (op, d, a, b, ctrl))

def allred(op, v, t, bits):
    for b in bits:
        if b == 0:
            e("s_nop 1"); dpp(op, v, v, v, "quad_perm:[1,0,3,2]")
        elif b == 1:
            e("s_nop 1"); dpp(op, v, v, v, "quad_perm:[2,3,0,1]")
        elif b == 2:
            e("s_nop 1"); dpp(op, v, v, v, "row_ror:4")
        elif b == 3:
            e("s_nop 1"); dpp(op, v, v, v, "row_ror:8")
        elif b == 4:
            e("v_mov_b32 v%d, v%d" % (t, v)); e("s_nop 1")
            e("v_permlane16_swap_b32 v%d, v%d" % (v, t)); e("s_nop 1")
            e("%s v%d, v%d, v%d" % (op, v, v, t))
        elif b == 5:
            e("v_mov_b32 v%d, v%d" % (t, v)); e("s_nop 1")
            e("v_permlane32_swap_b32 v%d, v%d" % (v, t)); e("s_nop 1")
            e("%s v%d, v%d, v%d" % (op, v, v, t))

stamp_idx = [0]
ROLE = ["w"]
def stamp(slot):
    if DBGTS and ROLE[0] == "s":
        e("s_cmp_lg_u32 s2, 0")
        e("s_cbranch_scc1 L_dts%d" % slot)
        e("s_memrealtime s[90:91]")
        e("s_waitcnt lgkmcnt(0)")
        e("v_mov_b32 v2, s90")
        e("v_mov_b32 v1, %d" % (8 + 4 * slot))
        e("s_mov_b64 exec, 1")
        e("buffer_store_dword v2, v1, %s, 0 offen" % srd(SRD_DBG))
        e("s_mov_b64 exec, -1")
        lab("L_dts%d" % slot)
        return
    if not STAMP:
        return
    e("s_memrealtime s[90:91]")
    e("s_waitcnt lgkmcnt(0)")
    a, b, ad = (160, 161, 162) if ROLE[0] == "w" else (2, 3, 1)
    e("v_mov_b32 v%d, s90" % a)
    e("v_mov_b32 v%d, s91" % b)
    e("s_lshl_b32 s92, s2, 4")
    e("s_add_u32 s92, s92, s3")
    e("s_lshl_b32 s92, s92, 7")
    e("s_add_u32 s92, s92, %d" % (TS + slot * 8))
    e("v_mov_b32 v%d, s92" % ad)
    e("buffer_store_dwordx2 v[%d:%d], v%d, %s, 0 offen" % (a, b, ad, srd(SRD_WS)))

def stampS(slot):
    if not STAMP: return
    r = 80 + 2 * (slot - 4)
    e("s_memrealtime s[%d:%d]" % (r, r + 1))
    e("s_waitcnt lgkmcnt(0)")
def stampFlush(slots):
    if not STAMP: return
    for slot in slots:
        r = 80 + 2 * (slot - 4)
        e("v_mov_b32 v160, s%d" % r)
        e("v_mov_b32 v161, s%d" % (r + 1))
        e("s_lshl_b32 s92, s2, 4")
        e("s_add_u32 s92, s92, s3")
        e("s_lshl_b32 s92, s92, 7")
        e("s_add_u32 s92, s92, %d" % (TS + slot * 8))
        e("v_mov_b32 v162, s92")
        e("buffer_store_dwordx2 v[160:161], v162, %s, 0 offen" % srd(SRD_WS))
        e("s_nop 4")

def gen():
    e("s_cmp_ge_u32 s2, 256")
    e("s_cbranch_scc1 L_end")
    e("s_load_dwordx16 s[16:31], s[0:1], 0")
    e("s_load_dwordx8 s[32:39], s[0:1], 64")
    e("v_lshrrev_b32 v1, 6, v0")
    e("v_and_b32 v0, 63, v0")
    e("s_nop 0")
    e("v_readfirstlane_b32 s3, v1")
    e("s_lshr_b32 s4, s2, 5")
    e("s_and_b32 s5, s2, 31")
    e("s_lshr_b32 s6, s2, 3")
    e("s_and_b32 s7, s2, 7")
    e("s_sub_u32 s8, s2, 224")
    e("s_cmp_ge_u32 s2, 224")
    e("s_cselect_b32 s8, s8, s2")
    e("s_cmp_ge_u32 s8, 112")
    e("s_cselect_b32 s9, 1, 0")
    e("s_mul_i32 s10, s9, 112")
    e("s_sub_u32 s10, s8, s10")
    e("s_mov_b32 s11, 0")
    for t in (28, 56, 84):
        e("s_cmp_ge_u32 s10, %d" % t)
        e("s_addc_u32 s11, s11, 0")
    e("s_mul_i32 s12, s11, 28")
    e("s_sub_u32 s12, s10, s12")
    e("s_waitcnt lgkmcnt(0)")
    build_srd(SRD_X, 16, 1024)
    build_srd(SRD_K, 18, 134217728)
    build_srd(SRD_V, 20, 134217728)
    build_srd(SRD_WQ, 22, 4194304)
    build_srd(SRD_WO, 24, 4194304)
    e("s_cmp_eq_u32 s9, 0")
    e("s_cselect_b32 s%d, s28, s30" % SRD_W13)
    e("s_cselect_b32 s%d, s29, s31" % (SRD_W13 + 1))
    e("s_mov_b32 s%d, 0x%x" % (SRD_W13 + 2, 1835008))
    e("s_mov_b32 s%d, 0x00020000" % (SRD_W13 + 3))
    build_srd(SRD_W2, 32, 1835008)
    build_srd(SRD_OUT, 34, 1024)
    build_srd(SRD_DBG, 36, 256)
    build_srd(SRD_WS, 38, 536870912)
    e("s_cmp_eq_u32 s3, 8")
    e("s_cbranch_scc1 L_service")
    worker()
    service()
    lab("L_end")
    e("s_endpgm")

USTRIDE = {"A": 4096, "B": 32768, "C": 1 << 20}
if LAYOUT.startswith("I"):
    IL = int(LAYOUT[1:])
    USTRIDE[LAYOUT] = IL * 32768
if LAYOUT == "D":
    USTRIDE["D"] = 0
def dma_setup(u):
    isK = u < 16
    uu = u if isK else u - 16
    if LAYOUT in ("E", "F"):
        pass
    elif LAYOUT in ("G", "H"):
        if LAYOUT == "G":
            e("s_add_u32 s21, s3, %d" % (uu & 7))
            e("s_and_b32 s21, s21, 7")
        else:
            e("s_xor_b32 s21, s3, %d" % (uu & 7))
        e("s_lshl_b32 s21, s21, 12")
        e("s_add_u32 s20, s14, s21")
        e("s_add_u32 s20, s20, %d" % (uu * 32768))
    elif LAYOUT == "D":
        e("s_add_u32 s20, s14, %d" % ((uu // 2) * 65536 + (uu % 2) * 4096))
    else:
        e("s_add_u32 s20, s14, %d" % (uu * USTRIDE[LAYOUT]))
    e("s_add_u32 m0, s15, %d" % ((u % 4) * 4096))
    e("s_nop 0")
def dma_one(u, j):
    isK = u < 16
    uu = u if isK else u - 16
    vo = (2 + j) if isK else (6 + (j & 1))
    if LAYOUT == "E":
        e("s_add_u32 s20, s14, %d" % ((4 * uu + j) * 8192 - j * 1024))
    elif LAYOUT == "F":
        if j % 2 == 0:
            e("s_add_u32 s20, s14, %d" % ((2 * uu + j // 2) * 16384 - (j // 2) * 2048))
    e("buffer_load_dwordx4 v%d, %s, s20 offen offset:%d%s lds" %
      (vo, srd(SRD_K if isK else SRD_V), j * 1024, " nt" if NT else ""))
def dma_unit(u):
    dma_setup(u)
    for j in range(4):
        dma_one(u, j)

def worker():
    c("================= worker waves (s3 = 0..7) =================")
    stamp(0)
    e("v_lshlrev_b32 v30, 4, v0")
    e("buffer_load_dwordx4 v[32:35], v30, %s, 0 offen" % srd(SRD_X))
    e("v_lshrrev_b32 v24, 3, v0")
    e("v_and_b32 v25, 7, v0")
    e("v_lshlrev_b32 v26, 13, v24")
    e("v_lshl_add_u32 v26, v25, 4, v26")
    e("s_lshr_b32 s16, s5, 3")
    e("s_and_b32 s17, s5, 7")
    e("s_lshl_b32 s18, s16, 7")
    e("s_lshl_b32 s19, s3, 4")
    e("s_add_u32 s18, s18, s19")
    e("s_lshl_b32 s19, s18, 13")
    e("s_lshl_b32 s20, s4, 10")
    e("s_add_u32 s19, s19, s20")
    e("s_lshl_b32 s20, s17, 7")
    e("s_add_u32 s19, s19, s20")
    e("s_add_u32 s20, s19, 65536")
    e("buffer_load_dwordx4 v[36:39], v26, %s, s19 offen" % srd(SRD_WQ))
    e("buffer_load_dwordx4 v[40:43], v26, %s, s20 offen" % srd(SRD_WQ))
    e("s_movk_i32 s21, 3584")
    e("v_mul_lo_u32 v27, v24, s21")
    e("v_lshl_add_u32 v27, v25, 4, v27")
    e("s_lshl_b32 s22, s11, 7")
    e("s_lshl_b32 s23, s3, 4")
    e("s_add_u32 s22, s22, s23")
    e("s_mul_i32 s23, s22, 3584")
    e("s_lshl_b32 s24, s12, 7")
    e("s_add_u32 s23, s23, s24")
    e("s_add_u32 s24, s23, %d" % (8 * 3584))
    e("buffer_load_dwordx4 v[44:47], v27, %s, s23 offen" % srd(SRD_W13))
    e("buffer_load_dwordx4 v[48:51], v27, %s, s24 offen" % srd(SRD_W13))
    if LAYOUT == "A":
        e("s_lshl_b32 s14, s2, 19")
        e("s_lshl_b32 s15, s3, 16")
        e("s_add_u32 s14, s14, s15")
    elif LAYOUT == "B":
        e("s_lshl_b32 s14, s2, 19")
        e("s_lshl_b32 s15, s3, 12")
        e("s_add_u32 s14, s14, s15")
    elif LAYOUT == "D":
        e("s_lshl_b32 s14, s2, 19")
        e("s_lshl_b32 s15, s3, 13")
        e("s_add_u32 s14, s14, s15")
    elif LAYOUT in ("G", "H"):
        e("s_lshl_b32 s14, s2, 19")
    elif LAYOUT == "E":
        e("s_lshl_b32 s14, s2, 19")
        e("s_lshl_b32 s15, s3, 10")
        e("s_add_u32 s14, s14, s15")
    elif LAYOUT == "F":
        e("s_lshl_b32 s14, s2, 19")
        e("s_lshl_b32 s15, s3, 11")
        e("s_add_u32 s14, s14, s15")
    elif LAYOUT.startswith("I"):
        import math
        lg = int(math.log2(IL))
        e("s_lshr_b32 s14, s2, %d" % lg)
        e("s_lshl_b32 s14, s14, %d" % (19 + lg))
        e("s_and_b32 s15, s2, %d" % (IL - 1))
        e("s_lshl_b32 s15, s15, 15")
        e("s_add_u32 s14, s14, s15")
        e("s_lshl_b32 s15, s3, 12")
        e("s_add_u32 s14, s14, s15")
    else:
        e("s_lshl_b32 s14, s4, 24")
        e("s_lshl_b32 s15, s5, 15")
        e("s_add_u32 s14, s14, s15")
        e("s_lshl_b32 s15, s3, 12")
        e("s_add_u32 s14, s14, s15")
    e("s_lshl_b32 s15, s3, 14")
    e("s_add_u32 s15, s15, %d" % RINGB)
    e("v_lshrrev_b32 v20, 4, v0")
    e("v_and_b32 v21, 15, v0")
    e("v_lshlrev_b32 v22, 8, v20")
    e("v_xor_b32 v23, v21, v20")
    for j in range(4):
        e("v_xor_b32 v28, %d, v23" % (4 * j))
        e("v_lshl_add_u32 v%d, v28, 4, v22" % (2 + j))
    e("v_lshlrev_b32 v28, 1, v20")
    e("v_xor_b32 v28, v21, v28")
    e("v_lshl_add_u32 v6, v28, 4, v22")
    e("v_xor_b32 v28, 8, v28")
    e("v_lshl_add_u32 v7, v28, 4, v22")
    for i in range(INIT):
        if i % 4 == 0:
            dma_setup(i // 4)
        dma_one(i // 4, i % 4)
    nd = INIT
    e("v_lshlrev_b32 v29, 8, v21")
    e("v_add_u32 v29, s15, v29")
    for s in range(4):
        e("v_xor_b32 v28, %d, v23" % (4 * s))
        e("v_lshl_add_u32 v%d, v28, 4, v29" % (8 + s))
    e("v_lshrrev_b32 v28, 2, v21")
    e("v_lshl_add_u32 v28, v20, 2, v28")
    e("v_lshlrev_b32 v29, 8, v28")
    e("v_add_u32 v29, s15, v29")
    e("v_and_b32 v28, 7, v28")
    e("v_lshlrev_b32 v28, 1, v28")
    e("v_and_b32 v31, 3, v21")
    e("v_lshrrev_b32 v52, 1, v31")
    e("v_or_b32 v28, v28, v52")
    e("v_and_b32 v31, 1, v31")
    e("v_lshl_add_u32 v29, v31, 3, v29")
    for D in range(8):
        e("v_xor_b32 v52, %d, v28" % (2 * D))
        e("v_lshl_add_u32 v%d, v52, 4, v29" % (12 + D))
    e("s_waitcnt vmcnt(%d)" % (4 + nd))
    stampS(4)
    for j in range(4):
        e("v_lshlrev_b32 v%d, 16, v%d" % (56 + 2 * j, 32 + j))
        e("v_and_b32 v%d, 0xffff0000, v%d" % (57 + 2 * j, 32 + j))
    e("v_add_f32 v64, v56, v57")
    for j in range(2, 8):
        e("v_add_f32 v64, v64, v%d" % (56 + j))
    allred("v_add_f32", 64, 65, [0, 1, 2, 3, 4, 5])
    e("v_mul_f32 v64, 0x3b000000, v64")
    for j in range(8):
        e("v_sub_f32 v%d, v%d, v64" % (66 + j, 56 + j))
    e("v_mul_f32 v74, v66, v66")
    for j in range(1, 8):
        e("v_fmac_f32 v74, v%d, v%d" % (66 + j, 66 + j))
    allred("v_add_f32", 74, 65, [0, 1, 2, 3, 4, 5])
    e("v_mul_f32 v74, 0x3b000000, v74")
    rnd_bf16_pair(64, 74, 65)
    e("v_add_f32 v74, 0x%x, v74" % EPS)
    rnd_bf16(74, 65)
    e("v_sqrt_f32 v74, v74")
    e("s_nop 0")
    rnd_bf16(74, 65)
    e("v_rcp_f32 v75, v74")
    for j in range(8):
        e("v_sub_f32 v%d, v%d, v64" % (56 + j, 56 + j))
    for j in range(0, 8, 2):
        rnd_bf16_pair(56 + j, 57 + j, 65)
    for j in range(8):
        e("v_mul_f32 v%d, v%d, v75" % (66 + j, 56 + j))
    for j in range(8):
        e("v_fma_f32 v%d, -v%d, v74, v%d" % (76 + j, 66 + j, 56 + j))
    for j in range(8):
        e("v_fma_f32 v%d, v%d, v75, v%d" % (56 + j, 76 + j, 66 + j))
    for j in range(0, 8, 2):
        rnd_bf16_pair(56 + j, 57 + j, 65)
    e("v_lshlrev_b32 v65, 5, v0")
    e("ds_write_b128 v65, v[56:59] offset:%d" % XN)
    e("ds_write_b128 v65, v[60:63] offset:%d" % (XN + 16))
    e("v_add_u32 v65, s18, v24")
    e("v_lshlrev_b32 v65, 2, v65")
    e("v_add_u32 v66, s22, v24")
    e("v_lshlrev_b32 v66, 2, v66")
    e("s_waitcnt lgkmcnt(0)")
    e("ds_read_b32 v68, v65 offset:%d" % XN)
    e("ds_read_b32 v69, v65 offset:%d" % (XN + 32))
    e("ds_read_b32 v70, v66 offset:%d" % XN)
    e("ds_read_b32 v71, v66 offset:%d" % (XN + 32))
    for j in range(16):
        e("v_mov_b32 v%d, 0" % (80 + j))
    e("s_waitcnt vmcnt(%d) lgkmcnt(0)" % nd)
    stampS(5)
    for mat in range(2):
        for row in range(2):
            wbase = 36 + 8 * mat + 4 * row
            xr = 68 + 2 * mat + row
            for j in range(4):
                e("v_lshlrev_b32 v72, 16, v%d" % (wbase + j))
                e("v_and_b32 v73, 0xffff0000, v%d" % (wbase + j))
                e("v_fmac_f32 v%d, v%d, v72" % (80 + 8 * mat + 2 * j, xr))
                e("v_fmac_f32 v%d, v%d, v73" % (81 + 8 * mat + 2 * j, xr))
    e("s_nop 1")
    for j in range(16):
        dpp("v_add_f32", 80 + j, 80 + j, 80 + j, "row_ror:8")
    e("s_lshl_b32 s16, s3, 10")
    e("v_lshl_add_u32 v65, v25, 5, v22")
    e("v_add_u32 v65, s16, v65")
    e("ds_write_b128 v65, v[80:83] offset:%d" % RS)
    e("ds_write_b128 v65, v[84:87] offset:%d" % (RS + 16))
    e("ds_write_b128 v65, v[88:91] offset:%d" % (RS + 8192))
    e("ds_write_b128 v65, v[92:95] offset:%d" % (RS + 8192 + 16))
    e("s_waitcnt lgkmcnt(0)")
    stampS(6)
    e("s_barrier")
    stamp(1)
    stampFlush([4, 5, 6])
    for i in range(INIT, 4 * (4 + NREG)):
        u = i // 4
        e("s_waitcnt vmcnt(%d)" % (PACE - 1))
        if i % 4 == 0 and u >= 4:
            pu = u - 4
            for sx in range(4):
                e("ds_read_b128 v[%d:%d], v%d offset:%d" % (32 + 16 * pu + 4 * sx, 35 + 16 * pu + 4 * sx, 8 + sx, (pu % 4) * 4096))
            e("s_waitcnt lgkmcnt(0)")
        if i % 4 == 0 or i == INIT:
            dma_setup(u)
        dma_one(u, i % 4)
    e("s_barrier")
    stamp(2)
    e("v_and_b32 v28, 3, v21")
    e("v_lshlrev_b32 v28, 8, v28")
    e("v_lshl_add_u32 v28, v20, 4, v28")
    for sx in range(4):
        e("ds_read_b128 v[%d:%d], v28 offset:%d" % (112 + 4 * sx, 115 + 4 * sx, QL + 64 * sx))
    e("v_lshrrev_b32 v29, 2, v21")
    for T in range(4):
        e("v_cmp_eq_u32 s[%d:%d], %d, v29" % (24 + 2 * T, 25 + 2 * T, T))
    e("s_waitcnt lgkmcnt(0)")
    SB = 144
    for u in range(16):
        tg, T = u // 4, u % 4
        for k in range(16):
            e("v_cndmask_b32 v%d, 0, v%d, s[%d:%d]" % (128 + k, 112 + k, 24 + 2 * T, 25 + 2 * T))
        if u < NREG:
            kb = 32 + 16 * u
            e("s_nop 1")
        else:
            kb = 32
            e("s_waitcnt vmcnt(12)")
            for sx in range(4):
                e("ds_read_b128 v[%d:%d], v%d offset:%d" % (32 + 4 * sx, 35 + 4 * sx, 8 + sx, (u % 4) * 4096))
            e("s_waitcnt lgkmcnt(0)")
            dma_unit(u + 4)
        for sx in range(4):
            cc = "0" if (T == 0 and sx == 0) else "v[%d:%d]" % (SB + 4 * tg, SB + 4 * tg + 3)
            e("v_mfma_f32_16x16x32_bf16 v[%d:%d], v[%d:%d], v[%d:%d], %s" %
              (SB + 4 * tg, SB + 4 * tg + 3, kb + 4 * sx, kb + 3 + 4 * sx, 128 + 4 * sx, 131 + 4 * sx, cc))
    e("s_nop 7")
    e("s_nop 1")
    for k in range(0, 16, 2):
        rnd_bf16_pair(SB + k, SB + k + 1, 28)
    for k in range(16):
        e("v_mul_f32 v%d, 0x%x, v%d" % (SB + k, SCALE, SB + k))
    for k in range(0, 16, 2):
        rnd_bf16_pair(SB + k, SB + k + 1, 28)
    e("v_max3_f32 v52, v%d, v%d, v%d" % (SB, SB + 1, SB + 2))
    for k in range(3, 15, 2):
        e("v_max3_f32 v52, v52, v%d, v%d" % (SB + k, SB + k + 1))
    e("v_max_f32 v52, v52, v%d" % (SB + 15))
    allred("v_max_f32", 52, 28, [2, 3, 4, 5])
    e("s_mov_b32 s16, 0x%x" % LOG2E)
    for k in range(16):
        e("v_sub_f32 v%d, v%d, v52" % (SB + k, SB + k))
    for k in range(16):
        e("v_mul_f32 v%d, s16, v%d" % (SB + k, SB + k))
    for k in range(16):
        e("v_exp_f32 v%d, v%d" % (SB + k, SB + k))
    e("s_nop 0")
    e("v_add_f32 v53, v%d, v%d" % (SB, SB + 1))
    for k in range(2, 16):
        e("v_add_f32 v53, v53, v%d" % (SB + k))
    allred("v_add_f32", 53, 28, [2, 3, 4, 5])
    PB = 112
    for tg in range(4):
        e("v_cvt_pk_bf16_f32 v%d, v%d, v%d" % (PB + 2 * tg, SB + 4 * tg, SB + 4 * tg + 1))
        e("v_cvt_pk_bf16_f32 v%d, v%d, v%d" % (PB + 2 * tg + 1, SB + 4 * tg + 2, SB + 4 * tg + 3))
    for uv in range(16):
        u = 16 + uv
        tg, T = uv // 4, uv % 4
        rem = min(u + 3, 31) - u
        e("s_waitcnt vmcnt(%d)" % (4 * rem))
        for D in range(8):
            e("ds_read_b64_tr_b16 v[%d:%d], v%d offset:%d" % (32 + 2 * D, 33 + 2 * D, 12 + D, (u % 4) * 4096))
        pa = 48 + 2 * (uv & 1)
        if T == 0:
            e("v_mov_b32 v%d, v%d" % (pa, PB + 2 * tg))
            e("v_mov_b32 v%d, v%d" % (pa + 1, PB + 2 * tg + 1))
        else:
            e("v_mov_b32_dpp v%d, v%d row_shl:%d row_mask:0xf bank_mask:0xf" % (pa, PB + 2 * tg, 4 * T))
            e("v_mov_b32_dpp v%d, v%d row_shl:%d row_mask:0xf bank_mask:0xf" % (pa + 1, PB + 2 * tg + 1, 4 * T))
        e("s_waitcnt lgkmcnt(0)")
        if u + 4 < 32:
            dma_unit(u + 4)
        else:
            e("s_nop 1")
        for D in range(8):
            cc = "0" if uv == 0 else "v[%d:%d]" % (56 + 4 * D, 59 + 4 * D)
            e("v_mfma_f32_16x16x16_bf16 v[%d:%d], v[%d:%d], v[%d:%d], %s" %
              (56 + 4 * D, 59 + 4 * D, pa, pa + 1, 32 + 2 * D, 33 + 2 * D, cc))
    stamp(3)
    e("s_nop 7")
    e("s_nop 1")
    e("v_lshlrev_b32 v28, 2, v0")
    e("v_add_u32 v28, s15, v28")
    e("s_mov_b64 exec, 0xffff")
    for D in range(8):
        for h in range(4):
            e("ds_write_b32 v28, v%d offset:%d" % (56 + 4 * D + h, h * 512 + D * 64))
    e("s_mov_b64 exec, 0xf")
    e("v_lshlrev_b32 v28, 3, v0")
    e("v_add_u32 v28, s15, v28")
    e("ds_write_b64 v28, v[52:53] offset:2048")
    e("s_mov_b64 exec, -1")
    e("s_waitcnt lgkmcnt(0)")
    e("s_barrier")
    e("s_endpgm")

def poll(label, vaddr, vtmp):
    e("s_mov_b32 s16, 0")
    lab(label)
    e("buffer_load_dwordx2 v[%d:%d], v%d, %s, 0 offen sc1" % (vtmp, vtmp + 1, vaddr, srd(SRD_WS)))
    e("s_waitcnt vmcnt(0)")
    e("v_cmp_ne_u64 vcc, s[94:95], v[%d:%d]" % (vtmp, vtmp + 1))
    e("s_nop 1")
    e("s_cbranch_vccz %s_done" % label)
    e("s_add_u32 s16, s16, 1")
    e("s_cmp_ge_u32 s16, 0x40000")
    e("s_cbranch_scc1 %s_done" % label)
    e("s_sleep %d" % SLEEP)
    e("s_branch %s" % label)
    lab(label + "_done")

def set_flag(ph):
    e("s_waitcnt vmcnt(0)")
    e("v_mov_b32 v2, s94")
    e("v_mov_b32 v3, s95")
    e("s_lshl_b32 s17, s17, 3")
    e("s_add_u32 s17, s17, %d" % (FLG + ph * 2048))
    e("v_mov_b32 v1, s17")
    e("s_mov_b64 exec, 1")
    e("buffer_store_dwordx2 v[2:3], v1, %s, 0 offen sc1" % srd(SRD_WS))
    e("s_mov_b64 exec, -1")

def gemv_rows(nrows, wbase, xbase, acc):
    for j in range(8):
        e("v_mov_b32 v%d, 0" % (acc + j))
    for i in range(nrows):
        for j in range(4):
            e("v_lshlrev_b32 v4, 16, v%d" % (wbase + 4 * i + j))
            e("v_and_b32 v5, 0xffff0000, v%d" % (wbase + 4 * i + j))
            e("v_fmac_f32 v%d, v%d, v4" % (acc + 2 * j, xbase + i))
            e("v_fmac_f32 v%d, v%d, v5" % (acc + 2 * j + 1, xbase + i))
    for j in range(8):
        allred("v_add_f32", acc + j, 4, [3, 4, 5])

def service():
    lab("L_service")
    ROLE[0] = "s"
    c("================= service wave =================")
    stamp(0)
    e("v_lshrrev_b32 v24, 3, v0")
    e("v_and_b32 v25, 7, v0")
    e("v_mov_b32 v1, 0")
    e("s_cmp_lg_u32 s2, 0")
    e("s_cbranch_scc1 L_nonce_wait")
    e("s_memrealtime s[94:95]")
    e("s_waitcnt lgkmcnt(0)")
    e("s_or_b32 s94, s94, 1")
    e("v_mov_b32 v2, s94")
    e("v_mov_b32 v3, s95")
    e("s_mov_b64 exec, 1")
    e("buffer_store_dwordx2 v[2:3], v1, %s, 0 offen sc1" % srd(SRD_DBG))
    e("s_mov_b64 exec, -1")
    lab("L_nonce_wait")
    e("v_lshlrev_b32 v7, 10, v24")
    e("v_lshl_add_u32 v7, v25, 4, v7")
    e("s_mul_i32 s16, s6, %d" % (56 * 1024))
    e("s_lshl_b32 s17, s7, 7")
    e("s_add_u32 s16, s16, s17")
    for i in range(7):
        e("s_add_u32 s17, s16, %d" % (i * 8192))
        e("buffer_load_dwordx4 v[%d:%d], v7, %s, s17 offen" % (128 + 4 * i, 131 + 4 * i, srd(SRD_W2)))
    e("s_lshl_b32 s16, s6, 17")
    e("s_lshl_b32 s17, s7, 7")
    e("s_add_u32 s16, s16, s17")
    for i in range(16):
        e("s_add_u32 s17, s16, %d" % (i * 8192))
        e("buffer_load_dwordx4 v[%d:%d], v7, %s, s17 offen" % (64 + 4 * i, 67 + 4 * i, srd(SRD_WO)))
    e("s_barrier")
    stamp(1)
    e("v_lshlrev_b32 v6, 2, v0")
    for mat in range(2):
        for sl in range(32):
            e("ds_read_b32 v%d, v6 offset:%d" % (32 + sl, RS + mat * 8192 + sl * 256))
        e("s_waitcnt lgkmcnt(0)")
        for st in (16, 8, 4, 2, 1):
            for k in range(st):
                e("v_add_f32 v%d, v%d, v%d" % (32 + k, 32 + k, 32 + k + st))
        e("v_mov_b32 v%d, v32" % (28 + mat))
    e("s_lshr_b32 s16, s5, 3")
    e("s_lshl_b32 s16, s16, 14")
    e("s_lshl_b32 s17, s4, 11")
    e("s_add_u32 s16, s16, s17")
    e("s_and_b32 s17, s5, 7")
    e("s_lshl_b32 s17, s17, 8")
    e("s_add_u32 s16, s16, s17")
    e("s_add_u32 s16, s16, %d" % QP)
    e("buffer_store_dword v28, v6, %s, s16 offen sc1" % srd(SRD_WS))
    e("s_mul_i32 s16, s9, %d" % (4 * 1792 * 4))
    e("s_mul_i32 s17, s11, %d" % (1792 * 4))
    e("s_add_u32 s16, s16, s17")
    e("s_lshl_b32 s17, s12, 8")
    e("s_add_u32 s16, s16, s17")
    e("s_add_u32 s16, s16, %d" % GU)
    e("buffer_store_dword v29, v6, %s, s16 offen sc1" % srd(SRD_WS))
    e("v_mov_b32 v1, 0")
    e("s_mov_b32 s16, 0")
    lab("L_nonce_loop")
    e("buffer_load_dwordx2 v[2:3], v1, %s, 0 offen sc1" % srd(SRD_DBG))
    e("s_waitcnt vmcnt(0)")
    e("v_readfirstlane_b32 s94, v2")
    e("v_readfirstlane_b32 s95, v3")
    e("s_nop 3")
    e("s_and_b32 s17, s94, 1")
    e("s_cmp_lg_u32 s17, 0")
    e("s_cbranch_scc1 L_nonce_done")
    e("s_add_u32 s16, s16, 1")
    e("s_cmp_ge_u32 s16, 0x40000")
    e("s_cbranch_scc1 L_nonce_done")
    e("s_sleep 4")
    e("s_branch L_nonce_loop")
    lab("L_nonce_done")
    stamp(12)
    e("s_mov_b32 s17, s2")
    set_flag(0)
    stamp(2)
    e("v_and_b32 v8, 31, v0")
    e("s_lshl_b32 s16, s4, 5")
    e("v_add_u32 v8, s16, v8")
    e("v_lshlrev_b32 v8, 3, v8")
    e("v_add_u32 v8, %d, v8" % FLG)
    poll("L_poll_q", 8, 10)
    stamp(3)
    e("v_lshlrev_b32 v6, 5, v0")
    e("s_lshl_b32 s16, s4, 11")
    e("s_add_u32 s16, s16, %d" % QP)
    for kq in range(4):
        e("s_add_u32 s17, s16, %d" % (kq * 16384))
        e("buffer_load_dwordx4 v[%d:%d], v6, %s, s17 offen sc1" % (32 + 8 * kq, 35 + 8 * kq, srd(SRD_WS)))
        e("buffer_load_dwordx4 v[%d:%d], v6, %s, s17 offen offset:16 sc1" % (36 + 8 * kq, 39 + 8 * kq, srd(SRD_WS)))
    e("s_waitcnt vmcnt(0)")
    for kq in range(1, 4):
        for j in range(8):
            e("v_add_f32 v%d, v%d, v%d" % (32 + j, 32 + j, 32 + 8 * kq + j))
    for j in range(4):
        e("v_cvt_pk_bf16_f32 v%d, v%d, v%d" % (40 + j, 32 + 2 * j, 33 + 2 * j))
    e("v_lshlrev_b32 v6, 4, v0")
    e("ds_write_b128 v6, v[40:43] offset:%d" % QL)
    e("s_waitcnt lgkmcnt(0)")
    e("s_barrier")
    stamp(4)
    e("v_lshlrev_b32 v8, 3, v0")
    e("v_add_u32 v8, %d, v8" % FLG)
    e("s_mov_b32 s16, 0")
    lab("L_poll_b")
    for k in range(4):
        e("buffer_load_dwordx2 v[%d:%d], v8, %s, 0 offen offset:%d sc1" % (10 + 2 * k, 11 + 2 * k, srd(SRD_WS), 512 * k))
    e("s_waitcnt vmcnt(0)")
    e("v_cmp_ne_u64 vcc, s[94:95], v[10:11]")
    for k in range(1, 4):
        e("v_cmp_ne_u64 s[18:19], s[94:95], v[%d:%d]" % (10 + 2 * k, 11 + 2 * k))
        e("s_nop 1")
        e("s_or_b64 vcc, vcc, s[18:19]")
    e("s_cbranch_vccz L_poll_b_done")
    e("s_add_u32 s16, s16, 1")
    e("s_cmp_ge_u32 s16, 0x40000")
    e("s_cbranch_scc1 L_poll_b_done")
    e("s_sleep %d" % SLEEP)
    e("s_branch L_poll_b")
    lab("L_poll_b_done")
    e("v_min_u32 v6, 55, v0")
    e("s_mul_i32 s16, s6, 56")
    e("v_add_u32 v6, s16, v6")
    e("v_lshlrev_b32 v6, 2, v6")
    for m in range(2):
        for kq in range(4):
            e("s_mov_b32 s17, %d" % (GU + (m * 4 + kq) * 1792 * 4))
            e("buffer_load_dword v%d, v6, %s, s17 offen sc1" % (32 + 4 * m + kq, srd(SRD_WS)))
    e("s_waitcnt vmcnt(0)")
    for m in range(2):
        for kq in range(1, 4):
            e("v_add_f32 v%d, v%d, v%d" % (32 + 4 * m, 32 + 4 * m, 32 + 4 * m + kq))
    rnd_bf16_pair(32, 36, 4)
    e("v_mul_f32 v33, 0x%x, v32" % (LOG2E | 0x80000000))
    e("v_exp_f32 v33, v33")
    e("s_nop 0")
    e("v_add_f32 v33, 1.0, v33")
    e("v_rcp_f32 v34, v33")
    e("s_nop 0")
    e("v_mul_f32 v35, v32, v34")
    rnd_bf16(35, 4)
    e("v_mul_f32 v35, v35, v36")
    rnd_bf16(35, 4)
    e("v_lshlrev_b32 v6, 2, v0")
    e("ds_write_b32 v6, v35 offset:%d" % HL)
    e("v_lshlrev_b32 v6, 2, v24")
    e("s_waitcnt lgkmcnt(0)")
    for i in range(7):
        e("ds_read_b32 v%d, v6 offset:%d" % (32 + i, HL + 32 * i))
    e("s_waitcnt lgkmcnt(0)")
    gemv_rows(7, 128, 32, 40)
    e("s_lshl_b32 s16, s7, 13")
    e("s_lshl_b32 s17, s6, 8")
    e("s_add_u32 s16, s16, s17")
    e("s_add_u32 s16, s16, %d" % YB)
    e("v_lshlrev_b32 v6, 5, v0")
    e("s_mov_b64 exec, 0xff")
    e("buffer_store_dwordx4 v[40:43], v6, %s, s16 offen sc1" % srd(SRD_WS))
    e("buffer_store_dwordx4 v[44:47], v6, %s, s16 offen offset:16 sc1" % srd(SRD_WS))
    e("s_mov_b64 exec, -1")
    stamp(5)
    e("s_barrier")
    stamp(6)
    e("v_and_b32 v6, 31, v0")
    e("v_lshrrev_b32 v8, 2, v6")
    e("v_lshlrev_b32 v8, 14, v8")
    e("v_and_b32 v10, 3, v0")
    e("v_lshl_add_u32 v8, v10, 3, v8")
    e("ds_read_b64 v[12:13], v8 offset:%d" % (RINGB + 2048))
    e("s_waitcnt lgkmcnt(0)")
    e("v_mov_b32 v14, v12")
    allred("v_max_f32", 14, 4, [2, 3, 4])
    e("v_sub_f32 v15, v12, v14")
    e("v_mul_f32 v15, 0x%x, v15" % LOG2E)
    e("v_exp_f32 v15, v15")
    e("s_nop 0")
    e("v_mul_f32 v16, v15, v13")
    allred("v_add_f32", 16, 4, [2, 3, 4])
    e("v_lshlrev_b32 v8, 2, v6")
    e("ds_write_b32 v8, v15 offset:%d" % SC)
    e("v_mov_b32 v17, v16")
    e("v_mov_b32 v16, v14")
    e("v_lshrrev_b32 v8, 4, v0")
    e("v_and_b32 v10, 15, v0")
    e("v_lshlrev_b32 v18, 9, v8")
    e("v_lshl_add_u32 v18, v10, 5, v18")
    e("v_add_u32 v18, %d, v18" % RINGB)
    e("v_add_u32 v11, 0x10000, v18")
    e("v_lshlrev_b32 v19, 2, v8")
    e("s_waitcnt lgkmcnt(0)")
    for wv in range(8):
        e("ds_read_b32 v%d, v19 offset:%d" % (20 + wv, SC + 16 * wv))
    for j in range(8):
        e("v_mov_b32 v%d, 0" % (28 + j))
    for batch in ((0, 1, 2), (3, 4, 5), (6, 7)):
        for k, wv in enumerate(batch):
            off = (wv & 3) * 16384
            ar = 18 if wv < 4 else 11
            e("ds_read_b128 v[%d:%d], v%d offset:%d" % (36 + 8 * k, 39 + 8 * k, ar, off))
            e("ds_read_b128 v[%d:%d], v%d offset:%d" % (40 + 8 * k, 43 + 8 * k, ar, off + 16))
        e("s_waitcnt lgkmcnt(0)")
        for k, wv in enumerate(batch):
            for j in range(8):
                e("v_fmac_f32 v%d, v%d, v%d" % (28 + j, 20 + wv, 36 + 8 * k + j))
    e("v_lshlrev_b32 v18, 14, v8")
    e("v_lshl_add_u32 v18, v10, 5, v18")
    e("s_lshl_b32 s16, s4, 16")
    e("s_lshl_b32 s17, s5, 9")
    e("s_add_u32 s16, s16, s17")
    e("s_add_u32 s16, s16, %d" % AP)
    e("buffer_store_dwordx4 v[28:31], v18, %s, s16 offen sc1" % srd(SRD_WS))
    e("buffer_store_dwordx4 v[32:35], v18, %s, s16 offen offset:16 sc1" % srd(SRD_WS))
    e("v_lshlrev_b32 v18, 8, v0")
    e("s_lshl_b32 s16, s4, 10")
    e("s_lshl_b32 s17, s5, 3")
    e("s_add_u32 s16, s16, s17")
    e("s_add_u32 s16, s16, %d" % ML)
    e("s_mov_b64 exec, 0xf")
    e("buffer_store_dwordx2 v[16:17], v18, %s, s16 offen sc1" % srd(SRD_WS))
    e("s_mov_b64 exec, -1")
    e("s_mov_b32 s17, s2")
    set_flag(1)
    stamp(7)
    e("v_and_b32 v8, 31, v0")
    e("s_lshl_b32 s16, s4, 5")
    e("v_add_u32 v8, s16, v8")
    e("v_lshlrev_b32 v8, 3, v8")
    e("v_add_u32 v8, %d, v8" % (FLG + 2048))
    poll("L_poll_a", 8, 10)
    stamp(8)
    e("v_and_b32 v6, 31, v0")
    e("v_lshlrev_b32 v8, 3, v6")
    e("s_lshl_b32 s16, s6, 8")
    e("s_add_u32 s16, s16, %d" % ML)
    e("buffer_load_dwordx2 v[12:13], v8, %s, s16 offen sc1" % srd(SRD_WS))
    def apreg(i):
        return 128 + 4 * i if i < 10 else 40 + 4 * (i - 10)
    e("v_lshrrev_b32 v10, 5, v0")
    e("v_lshlrev_b32 v8, 9, v10")
    e("v_lshl_add_u32 v8, v6, 4, v8")
    e("s_lshl_b32 s16, s6, 14")
    e("s_add_u32 s16, s16, %d" % AP)
    for i in range(16):
        e("s_add_u32 s17, s16, %d" % (i * 1024))
        e("buffer_load_dwordx4 v[%d:%d], v8, %s, s17 offen sc1" % (apreg(i), apreg(i) + 3, srd(SRD_WS)))
    e("s_waitcnt vmcnt(16)")
    e("v_mov_b32 v14, v12")
    allred("v_max_f32", 14, 4, [0, 1, 2, 3, 4])
    e("v_sub_f32 v15, v12, v14")
    e("v_mul_f32 v15, 0x%x, v15" % LOG2E)
    e("v_exp_f32 v15, v15")
    e("s_nop 0")
    e("v_mul_f32 v16, v15, v13")
    allred("v_add_f32", 16, 4, [0, 1, 2, 3, 4])
    e("v_lshlrev_b32 v8, 2, v6")
    e("ds_write_b32 v8, v15 offset:%d" % WL)
    e("v_lshlrev_b32 v8, 2, v10")
    e("s_waitcnt lgkmcnt(0)")
    for i in range(16):
        e("ds_read_b32 v%d, v8 offset:%d" % (20 + i, WL + 8 * i))
    for j in range(4):
        e("v_mov_b32 v%d, 0" % (36 + j))
    e("s_waitcnt vmcnt(0) lgkmcnt(0)")
    for i in range(16):
        for j in range(4):
            e("v_fmac_f32 v%d, v%d, v%d" % (36 + j, 20 + i, apreg(i) + j))
    for j in range(4):
        allred("v_add_f32", 36 + j, 4, [5])
    e("v_rcp_f32 v17, v16")
    e("s_nop 0")
    for j in range(4):
        e("v_mul_f32 v18, v%d, v17" % (36 + j))
        e("v_fma_f32 v19, -v18, v16, v%d" % (36 + j))
        e("v_fma_f32 v%d, v19, v17, v18" % (36 + j))
    rnd_bf16_pair(36, 37, 4)
    rnd_bf16_pair(38, 39, 4)
    e("v_lshlrev_b32 v8, 4, v6")
    e("ds_write_b128 v8, v[36:39] offset:%d" % OL)
    e("v_lshrrev_b32 v8, 3, v0")
    e("v_lshlrev_b32 v8, 2, v8")
    e("s_waitcnt lgkmcnt(0)")
    for i in range(16):
        e("ds_read_b32 v%d, v8 offset:%d" % (20 + i, OL + 32 * i))
    e("s_waitcnt lgkmcnt(0)")
    gemv_rows(16, 64, 20, 48)
    e("s_lshl_b32 s16, s7, 13")
    e("s_lshl_b32 s17, s6, 8")
    e("s_add_u32 s16, s16, s17")
    e("s_add_u32 s16, s16, %d" % YA)
    e("v_lshlrev_b32 v6, 5, v0")
    e("s_mov_b64 exec, 0xff")
    e("buffer_store_dwordx4 v[48:51], v6, %s, s16 offen sc1" % srd(SRD_WS))
    e("buffer_store_dwordx4 v[52:55], v6, %s, s16 offen offset:16 sc1" % srd(SRD_WS))
    e("s_mov_b64 exec, -1")
    e("s_lshl_b32 s17, s7, 5")
    e("s_add_u32 s17, s17, s6")
    set_flag(2)
    stamp(9)
    e("s_cmp_ge_u32 s2, 8")
    e("s_cbranch_scc1 L_end")
    e("v_and_b32 v6, 15, v0")
    e("v_lshlrev_b32 v8, 3, v6")
    e("s_lshl_b32 s16, s7, 7")
    e("buffer_load_dwordx2 v[20:21], v8, %s, s16 offen" % srd(SRD_X))
    e("v_and_b32 v12, 31, v0")
    e("s_lshl_b32 s16, s7, 5")
    e("v_add_u32 v12, s16, v12")
    e("v_lshlrev_b32 v12, 3, v12")
    e("v_add_u32 v12, %d, v12" % (FLG + 4096))
    poll("L_poll_f", 12, 10)
    stamp(10)
    e("v_lshrrev_b32 v10, 4, v0")
    e("v_lshlrev_b32 v8, 8, v10")
    e("v_lshl_add_u32 v8, v6, 4, v8")
    e("s_lshl_b32 s16, s7, 13")
    for i in range(8):
        e("s_add_u32 s17, s16, %d" % (YA + i * 1024))
        e("buffer_load_dwordx4 v[%d:%d], v8, %s, s17 offen sc1" % (32 + 4 * i, 35 + 4 * i, srd(SRD_WS)))
    for i in range(8):
        e("s_add_u32 s17, s16, %d" % (YB + i * 1024))
        e("buffer_load_dwordx4 v[%d:%d], v8, %s, s17 offen sc1" % (64 + 4 * i, 67 + 4 * i, srd(SRD_WS)))
    e("s_waitcnt vmcnt(0)")
    for b in (32, 64):
        for i in range(1, 8):
            for j in range(4):
                e("v_add_f32 v%d, v%d, v%d" % (b + j, b + j, b + 4 * i + j))
        for j in range(4):
            allred("v_add_f32", b + j, 4, [4, 5])
    rnd_bf16_pair(32, 33, 4)
    rnd_bf16_pair(34, 35, 4)
    rnd_bf16_pair(64, 65, 4)
    rnd_bf16_pair(66, 67, 4)
    e("v_lshlrev_b32 v22, 16, v20")
    e("v_and_b32 v23, 0xffff0000, v20")
    e("v_lshlrev_b32 v24, 16, v21")
    e("v_and_b32 v25, 0xffff0000, v21")
    for j in range(4):
        e("v_add_f32 v%d, v%d, v%d" % (32 + j, 22 + j, 32 + j))
    rnd_bf16_pair(32, 33, 4)
    rnd_bf16_pair(34, 35, 4)
    for j in range(4):
        e("v_add_f32 v%d, v%d, v%d" % (32 + j, 32 + j, 64 + j))
    e("v_cvt_pk_bf16_f32 v36, v32, v33")
    e("v_cvt_pk_bf16_f32 v37, v34, v35")
    e("v_lshlrev_b32 v8, 3, v6")
    e("s_lshl_b32 s16, s7, 7")
    e("s_mov_b64 exec, 0xffff")
    e("buffer_store_dwordx2 v[36:37], v8, %s, s16 offen" % srd(SRD_OUT))
    e("s_mov_b64 exec, -1")
    stamp(11)

gen()
txt = "\n".join(header() + L + footer(168)) + "\n"
open(OUT, "w").write(txt)
print("wrote", OUT, len(txt), "bytes")
```
